```python
import torch

def _softmax(x, axis=-1):
    return torch.softmax(x, dim=axis)

def _gelu(x):
    return torch.nn.functional.gelu(x, approximate='tanh')

def _silu(x):
    return torch.nn.functional.silu(x)

def _sigmoid(x):
    return torch.sigmoid(x)

def _layernorm(x, axis=-1, eps=1e-05):
    m = x.mean(dim=axis, keepdim=True)
    v = x.var(dim=axis, keepdim=True, unbiased=False)
    return (x - m) / torch.sqrt(v + eps)

def _scatter_add(tgt, idx, src, axis=0):
    return tgt.clone().index_add_(axis, idx, src)

def _segment_sum(src, seg, n):
    out = torch.zeros((n,) + src.shape[1:], dtype=src.dtype)
    return out.index_add_(0, seg, src)

def _pad(x, pw):
    flat = tuple((v for pair in reversed(pw) for v in pair))
    return torch.nn.functional.pad(x, flat)
kernel_name = 'concat_heads__memory_aug_recurrent_mem_tr__mha_block__prompt'

def setup_inputs():

    _w = lambda a: (lambda t: t.to(torch.bfloat16) if t.is_floating_point() else t)(torch.as_tensor(a))

    def _A_setup():
        B, S, Dm = (1, 2048, 512)
        H, Dh = (32, 128)
        M, seg = (8, 32)
        seg = min(seg, S)
        S = S // seg * seg
        return {'x': _w((lambda *s: torch.randn(*s, dtype=torch.bfloat16) * 0.05)(B, S, Dm)), 'mem0': _w((lambda *s: torch.randn(*s, dtype=torch.bfloat16) * 0.8)(B, M, Dm)), 'Wq': _w((lambda *s: torch.randn(*s, dtype=torch.bfloat16) * 1.6)(Dm, H, Dh) * Dm ** (-0.5)), 'Wk': _w((lambda *s: torch.randn(*s, dtype=torch.bfloat16) * 1.6)(Dm, H, Dh) * Dm ** (-0.5)), 'Wv': _w((lambda *s: torch.randn(*s, dtype=torch.bfloat16) * 0.8)(Dm, H, Dh) * Dm ** (-0.5)), 'Wo': _w((lambda *s: torch.randn(*s, dtype=torch.bfloat16) * 0.8)(H, Dh, Dm) * (H * Dh) ** (-0.5)), 'seg_len': seg}
    _A_in = _A_setup()

    def _B_setup():
        B, S, D, H = (1, 2048, 512, 32)
        return {'x': _w((lambda *s: torch.randn(*s, dtype=torch.bfloat16) * 0.2)(B, S, D)), 'wqkv': _w((lambda *s: torch.randn(*s, dtype=torch.bfloat16) * 0.2)(D, 3 * D)), 'wo': _w((lambda *s: torch.randn(*s, dtype=torch.bfloat16) * 0.05)(D, D))}
    _B_in = _B_setup()
    return {'A_x': _A_in['x'], 'A_mem0': _A_in['mem0'], 'A_Wq': _A_in['Wq'], 'A_Wk': _A_in['Wk'], 'A_Wv': _A_in['Wv'], 'A_Wo': _A_in['Wo'], 'A_seg_len': _A_in['seg_len'], 'B_x': _B_in['x'], 'B_wqkv': _B_in['wqkv'], 'B_wo': _B_in['wo']}

def reference(A_x, A_mem0, A_Wq, A_Wk, A_Wv, A_Wo, A_seg_len, B_x, B_wqkv, B_wo):

    def _A_ref(x, mem0, Wq, Wk, Wv, Wo, seg_len):
        B, S, Dm = x.shape
        H, Dh = (Wq.shape[1], Wq.shape[2])
        M = mem0.shape[1]
        scale = Dh ** (-0.5)
        n_seg = S // seg_len
        L = M + seg_len
        idx = torch.arange(L)
        mask = (idx[:, None] < M) | (idx[:, None] >= idx[None, :])
        mem = mem0
        outs = []
        for s in range(n_seg):
            xs = x[:, s * seg_len:(s + 1) * seg_len, :].clone()
            h = torch.concatenate([mem, xs], axis=1)
            q = torch.einsum('btd,dhe->bhte', h, Wq)
            k = torch.einsum('btd,dhe->bhte', h, Wk)
            v = torch.einsum('btd,dhe->bhte', h, Wv)
            scores = torch.einsum('bhqe,bhke->bhqk', q, k) * scale
            scores = torch.where(mask[None, None], scores, -1000000000.0)
            p = _softmax(scores, axis=-1)
            o = torch.einsum('bhqk,bhke->bhqe', p, v)
            o = torch.einsum('bhte,hed->btd', o, Wo)
            mem = o[:, :M, :].clone()
            outs.append(o[:, M:, :])
        return torch.concatenate(outs, axis=1)

    def _B_ref(x, wqkv, wo):
        B, S, D = x.shape
        H = 32
        Dh = D // H
        qkv = (lambda x, *d: x.permute(*d))((x @ wqkv).reshape(B, S, 3, H, Dh), 2, 0, 3, 1, 4)
        q, k, v = (qkv[0], qkv[1], qkv[2])
        scores = torch.einsum('bhqd,bhkd->bhqk', q, k) * Dh ** (-0.5)
        p = _softmax(scores, axis=-1)
        o = torch.einsum('bhqk,bhkd->bhqd', p, v)
        return (lambda x, *d: x.permute(*d))(o, 0, 2, 1, 3).reshape(B, S, D) @ wo
    a = _A_ref(A_x, A_mem0, A_Wq, A_Wk, A_Wv, A_Wo, A_seg_len)
    b = _B_ref(B_x, B_wqkv, B_wo)
    return torch.concatenate([a, b], axis=-1)
```

```python
NAME = 'concat_heads__memory_aug_recurrent_mem_tr__mha_block__prompt'
HEADER = open('cdna_kernels/%s.s.ref' % NAME).read().split('; Override launch')[0]

class Asm:
    def __init__(self):
        self.lines = []
        self.nlab = 0
    def __call__(self, s, *a):
        if a:
            s = s % a
        for l in s.split('\n'):
            l = l.strip()
            if l:
                self.lines.append('  ' + l if not l.endswith(':') else l)
    def label(self, base='L'):
        self.nlab += 1
        return '%s_%d' % (base, self.nlab)
    def comment(self, s):
        self.lines.append('  ; ' + s)
    def nop(self, n):
        while n > 0:
            k = min(n, 16)
            self('s_nop %d' % (k - 1))
            n -= k
    def text(self):
        return '\n'.join(self.lines) + '\n'

def v(i, n=1):
    return 'v%d' % i if n == 1 else 'v[%d:%d]' % (i, i + n - 1)
def a(i, n=1):
    return 'a%d' % i if n == 1 else 'a[%d:%d]' % (i, i + n - 1)
def s(i, n=1):
    return 's%d' % i if n == 1 else 's[%d:%d]' % (i, i + n - 1)

def kernel_file(kernels, single=True):
    out = [HEADER.rstrip('\n')]
    if single:
        k = kernels[0]
        out.append('; @launch grid=(%d,%d,%d) block=(%d,%d,%d) lds=%d' % (*k['grid'], *k['block'], k['lds']))
    else:
        for k in kernels:
            out.append('; @launch kernel=%s grid=(%d,%d,%d) block=(%d,%d,%d) lds=%d' % (k['name'], *k['grid'], *k['block'], k['lds']))
    out.append('.amdgcn_target "amdgcn-amd-amdhsa--gfx950"')
    out.append('.text')
    seen = set()
    for k in kernels:
        if k['name'] in seen:
            continue
        seen.add(k['name'])
        out.append('.globl %s\n.p2align 8\n.type %s,@function\n%s:' % (k['name'], k['name'], k['name']))
        out.append(k['body'].rstrip('\n'))
    out.append('.section .rodata,"a"')
    seen = set()
    for k in kernels:
        if k['name'] in seen:
            continue
        seen.add(k['name'])
        out.append('.p2align 6\n.amdhsa_kernel %s' % k['name'])
        out.append('  .amdhsa_next_free_vgpr %d' % k['vgpr'])
        out.append('  .amdhsa_next_free_sgpr %d' % k.get('sgpr', 102))
        out.append('  .amdhsa_accum_offset %d' % k['accum'])
        out.append('  .amdhsa_group_segment_fixed_size 0')
        out.append('  .amdhsa_kernarg_size 104')
        out.append('  .amdhsa_user_sgpr_count 2')
        out.append('  .amdhsa_user_sgpr_kernarg_segment_ptr 1')
        out.append('  .amdhsa_system_sgpr_workgroup_id_x 1')
        out.append('.end_amdhsa_kernel')
    return '\n'.join(out) + '\n'

def srd(A, dst, ptr, nbytes):
    A('s_mov_b32 s%d, s%d' % (dst, ptr))
    A('s_and_b32 s%d, s%d, 0xffff' % (dst + 1, ptr + 1))
    A('s_mov_b32 s%d, 0x%x' % (dst + 2, nbytes))
    A('s_mov_b32 s%d, 0x20000' % (dst + 3))
```

```python
from common import *

def nseg_of_group(g):
    return len(range(g, 64, 3))

def p_phase(A, opt):
    A('L_aworker:')
    A('s_sub_u32 s60, s%d, 1' % sGRP)
    ld = QKVLoader(A, 4, 5, 6, 32768, 64)
    A('v_and_b32 v1, 15, v0')
    A('v_lshlrev_b32 v1, 10, v1')
    A('v_lshrrev_b32 v2, 4, v0')
    A('v_lshl_add_u32 v1, v2, 4, v1')
    A('s_lshr_b32 s68, s%d, 1' % sWAVE)
    A('s_lshl_b32 s68, s68, 14')
    A('s_and_b32 s69, s%d, 1' % sWAVE)
    A('s_lshl_b32 s69, s69, 9')
    A('s_add_u32 s68, s68, s69')
    A('v_add_u32 v7, s68, v1')
    A('v_lshlrev_b32 v8, 4, v0')
    A('s_lshl_b32 s68, s%d, 13' % sIDX)
    A('s_lshl_b32 s69, s%d, 10' % sWAVE)
    A('s_add_u32 s68, s68, s69')
    A('v_add_u32 v9, s68, v8')
    A('v_add_u32 v10, s69, v9')
    A('s_lshl_b32 s68, s60, 5')
    A('s_add_u32 s68, s68, s%d' % sIDX)
    A('s_lshl_b32 s68, s68, 7')
    A('v_mov_b32 v11, s68')
    A('s_lshl_b32 s70, s%d, 13' % sWAVE)
    def xdma(sseg, sbuf):
        for i in range(8):
            A('s_add_u32 m0, s%d, %d' % (sbuf, i * 1024))
            A('s_add_u32 s69, s%d, %d' % (sseg, i * 64))
            A('buffer_load_dwordx4 v7, %s, s69 offen lds' % S(XA))
    A('s_lshl_b32 s71, s60, 15')
    xdma(71, 70)
    mats = [(WK, 'a', 0), (WV, 'a', 128), (WQ, 'v', 128)]
    for i in range(32):
        ld.dma(mats[0][0], i)
    for m in range(3):
        for ks in range(16):
            last = (m == 2)
            A('s_waitcnt vmcnt(%d)' % (30 if not last else 30 - 2 * ks))
            ld.tr(mats[m][1], mats[m][2], ks)
            if not last:
                A('s_waitcnt lgkmcnt(0)')
                ld.dma(mats[m + 1][0], 2 * ks)
                ld.dma(mats[m + 1][0], 2 * ks + 1)
    A('s_waitcnt lgkmcnt(0)')
    wait_dbg_word(A, D_CLR, 1, 1, 2)
    A('s_mov_b32 s72, s60')
    A('s_mov_b32 s73, 0')
    A('s_mov_b32 s74, 32768')
    XF = 16
    ACC = 32
    PK = 80
    def acc(m, i, j): return ACC + m * 16 + (i * 2 + j) * 4
    A('L_p_loop:')
    A('s_waitcnt vmcnt(6)')
    A('s_barrier')
    A('s_add_u32 s75, s72, 4')
    A('s_min_u32 s75, s75, 63')
    A('s_lshl_b32 s71, s75, 15')
    A('s_add_u32 s76, s74, s70')
    xdma(71, 76)
    def rd(ks):
        b = XF + (ks & 1) * 8
        A('ds_read_b128 v[%d:%d], v8 offset:%d' % (b, b + 3, ks * 1024))
        A('ds_read_b128 v[%d:%d], v8 offset:%d' % (b + 4, b + 7, 16384 + ks * 1024))
    rd(0)
    for ks in range(16):
        if ks < 15:
            rd(ks + 1)
            A('s_waitcnt lgkmcnt(2)')
        else:
            A('s_waitcnt lgkmcnt(0)')
        b = XF + (ks & 1) * 8
        for m, (kind, base) in enumerate((('a', 0), ('v', 128))):
            for et in range(2):
                for tt in range(2):
                    d = acc(m, et, tt); wr = base + et * 64 + ks * 4
                    A('v_mfma_f32_16x16x32_bf16 v[%d:%d], %s[%d:%d], v[%d:%d], %s' % (d, d + 3, kind, wr, wr + 3, b + 4 * tt, b + 4 * tt + 3, '0' if ks == 0 else 'v[%d:%d]' % (d, d + 3)))
        for tt in range(2):
            for et in range(2):
                d = acc(2, tt, et); wr = 128 + et * 64 + ks * 4
                A('v_mfma_f32_16x16x32_bf16 v[%d:%d], v[%d:%d], a[%d:%d], %s' % (d, d + 3, b + 4 * tt, b + 4 * tt + 3, wr, wr + 3, '0' if ks == 0 else 'v[%d:%d]' % (d, d + 3)))
        if ks == 7:
            A('s_waitcnt vmcnt(8)')
            A('s_barrier')
            A('v_mov_b32 v12, s73')
            A('s_mov_b64 exec, 1')
            A('buffer_store_dword v12, v11, %s, 0 offen sc1' % S(WS))
            A('s_mov_b64 exec, -1')
    A('s_lshl_b32 s77, s72, 18')
    for m, base in ((0, KX), (2, VX), (1, QX)):
        for j in range(2):
            p = PK + (0 if m == 0 else (8 if m == 2 else 16)) + 4 * j
            for i in range(2):
                d = acc(m, i, j)
                A('v_cvt_pk_bf16_f32 v%d, v%d, v%d' % (p + 2 * i, d, d + 1))
                A('v_cvt_pk_bf16_f32 v%d, v%d, v%d' % (p + 2 * i + 1, d + 2, d + 3))
            if m == 2:
                A('s_add_u32 s78, s77, %d' % (base + j * 1024))
                A('buffer_store_dwordx4 v[%d:%d], v10, %s, s78 offen sc1' % (p, p + 3, S(WS)))
            else:
                A('s_add_u32 s78, s77, %d' % (base + j * 4096))
                A('buffer_store_dwordx4 v[%d:%d], v9, %s, s78 offen sc1' % (p, p + 3, S(WS)))
    A('s_add_u32 s73, s73, 1')
    A('v_xor_b32 v8, 0x8000, v8')
    A('s_xor_b32 s74, s74, 32768')
    A('s_cmp_eq_u32 s73, 1')
    A('s_cbranch_scc1 L_p_pub')
    A('s_add_u32 s72, s72, 4')
    A('s_cmp_lt_u32 s72, 64')
    A('s_cbranch_scc1 L_p_loop')
    A('s_sub_u32 s72, s72, 4')
    A('L_p_pub:')
    A('s_waitcnt vmcnt(0)')
    A('s_barrier')
    A('v_mov_b32 v12, s73')
    A('s_mov_b64 exec, 1')
    A('buffer_store_dword v12, v11, %s, 0 offen sc1' % S(WS))
    A('s_mov_b64 exec, -1')
    A('s_add_u32 s72, s72, 4')
    A('s_cmp_lt_u32 s72, 64')
    A('s_cbranch_scc1 L_p_loop')


def o_phase(A, opt):
    import chain
    WOR = chain.WOR
    ST, KE, OE, FB = 0, 8192, 12288, 32768
    CA = chain.CA
    vIdx, vSel = 4, 8
    aQ, aL, aF, aKEw, aKEr, aOEw, aG, aOPst, aOPld, aOut, aFl, aFlAll = 5, 6, 7, 12, 13, 14, 15, 16, 17, 18, 19, 20
    vNeg = 21
    R0, R1, R2, T = 24, 56, 88, 120
    mOdd, mC = 96, 88
    sK, sSeg, sFb, sM0 = 70, 71, 72, 73
    A('L_o_start:')
    A('v_and_b32 v1, 15, v0')
    A('v_lshrrev_b32 v2, 4, v0')
    A('v_lshlrev_b32 v3, 12, v2')
    A('v_lshl_add_u32 v3, v1, 3, v3')
    A('s_lshl_b32 s61, s%d, 17' % sIDX)
    A('s_lshl_b32 s62, s%d, 8' % sWAVE)
    A('s_add_u32 s61, s61, s62')
    A('v_add_u32 v22, s61, v3')
    for blk in range(8):
        for u in range(4):
            chain.wo_load(A, 22, blk, u, dense=True)
    A('v_lshlrev_b32 v%d, 4, v0' % aL)
    A('s_lshl_b32 s61, s%d, 11' % sWAVE)
    A('v_add_u32 v%d, s61, v%d' % (aQ, aL))
    A('s_add_u32 s%d, s61, %d' % (sM0, FB))
    A('s_lshl_b32 s62, s%d, 13' % sIDX)
    A('v_add_u32 v%d, s62, v%d' % (aG, aQ))
    A('v_add_u32 v%d, %d, v%d' % (aF, FB, aL))
    A('v_bfe_u32 v3, v0, 1, 1')
    A('v_mov_b32 v%d, 0x4444' % vIdx)
    A('v_mov_b32 v26, 0xeeee')
    A('v_cmp_eq_u32 vcc, 1, v3')
    A('v_cndmask_b32 v%d, v%d, v26, vcc' % (vIdx, vIdx))
    A('v_and_b32 v29, 1, v0')
    A('v_mov_b32 v27, 0x3f80')
    A('v_mov_b32 v28, 0x3f800000')
    A('v_cmp_eq_u32 vcc, 1, v29')
    A('v_cndmask_b32 v27, v27, v28, vcc')
    A('v_lshrrev_b32 v26, 1, v1')
    for u in range(4):
        A('v_cmp_eq_u32 vcc, %d, v26' % u)
        A('v_cndmask_b32 v%d, 0, v27, vcc' % (vSel + u))
    A('v_lshlrev_b32 v27, 4, v1')
    A('v_lshl_add_u32 v27, v2, 2, v27')
    A('s_lshl_b32 s62, s%d, 9' % sWAVE)
    A('v_add_u32 v%d, s62, v27' % aKEw)
    A('v_lshrrev_b32 v27, 2, v0')
    A('v_lshlrev_b32 v27, 4, v27')
    A('v_lshl_add_u32 v%d, v3, 3, v27' % aKEr)
    A('v_lshlrev_b32 v27, 17, v2')
    A('v_lshl_add_u32 v27, v1, 4, v27')
    A('s_lshl_b32 s62, s%d, 10' % sIDX)
    A('s_lshl_b32 s63, s%d, 8' % sWAVE)
    A('s_add_u32 s62, s62, s63')
    A('v_add_u32 v%d, s62, v27' % aOPst)
    A('v_lshlrev_b32 v27, 10, v2')
    A('v_lshl_add_u32 v27, v1, 4, v27')
    A('s_lshl_b32 s62, s%d, 15' % sIDX)
    A('s_add_u32 s62, s62, s63')
    A('v_add_u32 v%d, s62, v27' % aOPld)
    A('v_lshlrev_b32 v27, 7, v2')
    A('v_lshl_add_u32 v27, v1, 3, v27')
    A('s_lshl_b32 s62, s%d, 11' % sIDX)
    A('s_add_u32 s62, s62, s63')
    A('v_add_u32 v%d, s62, v27' % aOut)
    A('s_lshl_b32 s62, s60, 12')
    A('s_add_u32 s62, s62, %d' % F_OP)
    A('v_and_b32 v27, 31, v0')
    A('v_lshlrev_b32 v27, 7, v27')
    A('v_add_u32 v%d, s62, v27' % aFlAll)
    A('s_lshl_b32 s63, s%d, 7' % sIDX)
    A('s_add_u32 s62, s62, s63')
    A('v_mov_b32 v%d, s62' % aFl)
    A('v_mov_b32 v%d, 0x%x' % (vNeg, f2u(-1e30)))
    A('s_mov_b32 s%d, 0xffff0000' % mOdd); A('s_mov_b32 s%d, 0xffff0000' % (mOdd + 1))
    A('v_lshlrev_b32 v27, 2, v2')
    for rho in range(4):
        A('v_add_u32 v28, %d, v27' % rho)
        A('v_cmp_le_u32 s[%d:%d], v28, v1' % (mC + 2 * rho, mC + 2 * rho + 1))
    A('s_mov_b32 s79, 0x%x' % f2u(CA))
    A('s_mov_b32 s61, 0x05040100')
    A('s_mov_b32 s62, 0x07060302')
    for blk in range(8):
        A('s_waitcnt vmcnt(%d)' % (56 - 8 * blk))
        chain.wo_fix(A, blk, 48, 61, 62)
    wait_dbg_word(A, D_ARR, 32, 1, 2, mask=0xffff)
    def prefetch(sseg):
        A('s_lshl_b32 s61, s%d, 18' % sseg)
        for i, base in enumerate((QX, KX, VX)):
            A('s_add_u32 s62, s61, %d' % base)
            A('s_add_u32 m0, s%d, %d' % (sM0, i * 8192))
            A('buffer_load_dwordx4 v%d, %s, s62 offen sc1 lds' % (aG, S(WS)))
            A('buffer_load_dwordx4 v%d, %s, s62 offen offset:1024 sc1 lds' % (aG, S(WS)))
        A('s_xor_b32 s%d, s%d, %d' % (sM0, sM0, 32768 ^ 65536))
    def pub_flag():
        A('v_mov_b32 v1, s%d' % sK)
        A('s_mov_b64 exec, 1')
        A('buffer_store_dword v1, v%d, %s, 0 offen sc1' % (aFl, S(WS)))
        A('s_mov_b64 exec, -1')
    def red_issue():
        lp = A.label('L_o_fw')
        A('%s:' % lp)
        spin_check(A)
        A('buffer_load_dword v1, v%d, %s, 0 offen sc1' % (aFlAll, S(WS)))
        A('s_waitcnt vmcnt(0)')
        A('v_cmp_gt_u32 vcc, s%d, v1' % sK)
        A('s_cbranch_vccnz %s' % lp)
        A('s_sub_u32 s61, s%d, 4' % sSeg)
        A('s_lshl_b32 s61, s61, 20')
        A('s_add_u32 s61, s61, %d' % OP)
        for i in range(8):
            A('buffer_load_dwordx4 v[%d:%d], v%d, %s, s61 offen sc1' % (R2 + 4 * i, R2 + 4 * i + 3, aOPld, S(WS)))
            if i < 7:
                A('s_add_u32 s61, s61, 4096')
    def red_finish(D):
        for i in range(8):
            A('v_mfma_f32_16x16x32_bf16 v[%d:%d], v[%d:%d], v[%d:%d], %s' % (D, D + 3, vSel, vSel + 3, R2 + 4 * i, R2 + 4 * i + 3, '0' if i == 0 else 'v[%d:%d]' % (D, D + 3)))
        A('s_sub_u32 s61, s%d, 4' % sSeg)
        A('s_lshl_b32 s61, s61, 16')
        A('v_cvt_pk_bf16_f32 v%d, v%d, v%d' % (D, D, D + 1))
        A('v_cvt_pk_bf16_f32 v%d, v%d, v%d' % (D + 1, D + 2, D + 3))
        A('s_mov_b32 exec_hi, 0')
        A('buffer_store_dwordx2 v[%d:%d], v%d, %s, s61 offen' % (D, D + 1, aOut, S(OUT)))
        A('s_mov_b64 exec, -1')
    A('s_barrier')
    A('s_mov_b32 s%d, 0' % sK)
    A('s_mov_b32 s%d, s60' % sSeg)
    prefetch(sSeg)
    A('L_o_loop:')
    KA, VA = R2, R2 + 8
    for i in range(16):
        A('v_mov_b32 v%d, 0' % (KA + i))
    A('s_lshl_b32 s63, s%d, 13' % sSeg)
    A('s_add_u32 s63, s63, %d' % MH)
    A('L_o_pa:')
    spin_check(A)
    A('buffer_load_dwordx4 v[%d:%d], v%d, %s, s63 offen sc1' % (T, T + 3, aQ, S(WS)))
    A('buffer_load_dwordx4 v[%d:%d], v%d, %s, s63 offen offset:1024 sc1' % (T + 4, T + 7, aQ, S(WS)))
    A('s_waitcnt vmcnt(0)')
    A('v_max3_u32 v1, v%d, v%d, v%d' % (T, T + 1, T + 2))
    A('v_max3_u32 v2, v%d, v%d, v%d' % (T + 3, T + 4, T + 5))
    A('v_max3_u32 v1, v1, v%d, v%d' % (T + 6, T + 7))
    A('v_max_u32 v1, v1, v2')
    A('v_cmp_eq_u32 vcc, -1, v1')
    A('s_cbranch_vccz L_o_got')
    A('s_sleep 4')
    A('s_branch L_o_pa')
    A('L_o_got:')
    A('ds_write_b128 v%d, v[%d:%d] offset:%d' % (aQ, T, T + 3, ST))
    A('ds_write_b128 v%d, v[%d:%d] offset:%d' % (aQ, T + 4, T + 7, ST + 1024))
    A('s_waitcnt lgkmcnt(0)')
    A('s_barrier')
    pub_flag()
    AF = R0
    for t in range(8):
        A('ds_read_b128 v[%d:%d], v%d offset:%d' % (AF + 4 * t, AF + 4 * t + 3, aL, ST + 1024 * t))
    QF = R1
    for m, acc in ((0, KA), (1, VA)):
        for t in range(8):
            if m == 0:
                A('s_waitcnt lgkmcnt(%d)' % (7 - t))
            else:
                A('ds_read_b128 v[%d:%d], v%d offset:%d' % (QF + 4 * t, QF + 4 * t + 3, aF, 1024 * t))
            for tile in range(2):
                b = m * 128 + tile * 64 + t * 8
                A('v_smfmac_f32_16x16x64_bf16 v[%d:%d], v[%d:%d], a[%d:%d], v%d' % (acc + 4 * tile, acc + 4 * tile + 3, AF + 4 * t, AF + 4 * t + 3, b, b + 7, vIdx))
    for tile in range(2):
        d = KA + 4 * tile
        A('v_pk_add_f32 v[%d:%d], v[%d:%d], v[%d:%d]' % (d, d + 1, d, d + 1, d + 2, d + 3))
    for tile in range(2):
        d = KA + 4 * tile
        A('v_cvt_pk_bf16_f32 v%d, v%d, v%d' % (d, d, d + 1))
    A('ds_write_b32 v%d, v%d offset:%d' % (aKEw, KA, KE))
    A('ds_write_b32 v%d, v%d offset:%d' % (aKEw, KA + 4, KE + 256))
    for i in range(8):
        A('ds_read_b128 v[%d:%d], v%d offset:%d' % (R0 + 4 * i, R0 + 4 * i + 3, aF, 8192 + 1024 * i))
    A('s_waitcnt lgkmcnt(0)')
    A('s_barrier')
    SM = [R2 + 16, R2 + 20]; SX0 = [R2 + 24, R2 + 28]; SX1 = R2
    def smma(d, ab, qt):
        for ks in range(4):
            A('v_mfma_f32_16x16x32_bf16 v[%d:%d], v[%d:%d], v[%d:%d], %s' % (d, d + 3, ab + 4 * ks, ab + 4 * ks + 3, QF + 16 * qt + 4 * ks, QF + 16 * qt + 4 * ks + 3, '0' if ks == 0 else 'v[%d:%d]' % (d, d + 3)))
    smma(SX1, R0 + 16, 1)
    for ks in range(4):
        for u in range(2):
            A('ds_read_b64_tr_b16 v[%d:%d], v%d offset:%d' % (R0 + 16 + 4 * ks + 2 * u, R0 + 16 + 4 * ks + 2 * u + 1, aKEr, KE + ks * 512 + u * 256))
    smma(SX0[0], R0, 0)
    smma(SX0[1], R0, 1)
    for tile in range(2):
        d = VA + 4 * tile
        A('v_pk_add_f32 v[%d:%d], v[%d:%d], v[%d:%d]' % (d, d + 1, d, d + 1, d + 2, d + 3))
        A('v_cvt_pk_bf16_f32 v%d, v%d, v%d' % (d + 2, d, d + 1))
        A('v_cndmask_b32 v%d, v%d, 0, s[%d:%d]' % (d, d + 2, mOdd, mOdd + 1))
        A('v_cndmask_b32 v%d, 0, v%d, s[%d:%d]' % (d + 1, d + 2, mOdd, mOdd + 1))
    A('s_waitcnt lgkmcnt(0)')
    smma(SM[0], R0 + 16, 0)
    smma(SM[1], R0 + 16, 1)
    VXF = R0
    A('s_lshl_b32 s61, s%d, 11' % sWAVE)
    A('v_add_u32 v3, s61, v%d' % aF)
    A('ds_read_b128 v[%d:%d], v3 offset:%d' % (VXF, VXF + 3, 16384))
    A('ds_read_b128 v[%d:%d], v3 offset:%d' % (VXF + 4, VXF + 7, 16384 + 1024))
    A('v_xor_b32 v%d, %d, v%d' % (aF, 32768 ^ 65536, aF))
    for d in (SX0[0], SX1):
        for rho in range(4):
            A('v_cndmask_b32 v%d, v%d, v%d, s[%d:%d]' % (d + rho, vNeg, d + rho, mC + 2 * rho, mC + 2 * rho + 1))
    PX = [R1, R1 + 4]; PM = [R1 + 8, R1 + 10]; RL = [R1 + 12, R1 + 13]
    OT = R0 + 8
    for qt in range(2):
        xs = [SX0[qt] + i for i in range(4)] + ([SX1 + i for i in range(4)] if qt else [])
        ms = [SM[qt] + i for i in range(4)]
        al = ms + xs
        A('v_max3_f32 v1, v%d, v%d, v%d' % tuple(al[:3]))
        k = 3
        while k + 1 < len(al):
            A('v_max3_f32 v1, v1, v%d, v%d' % (al[k], al[k + 1])); k += 2
        if k < len(al):
            A('v_max_f32 v1, v1, v%d' % al[k])
        chain.xred(A, 'v_max_f32', 1, 2)
        A('v_mul_f32 v1, s79, v1')
        for r in al:
            A('v_fma_f32 v%d, v%d, s79, -v1' % (r, r))
        for r in al:
            A('v_exp_f32 v%d, v%d' % (r, r))
        for i in range(4):
            if 2 * i < len(xs):
                A('v_cvt_pk_bf16_f32 v%d, v%d, v%d' % (PX[qt] + i, xs[2 * i], xs[2 * i + 1]))
            else:
                A('v_mov_b32 v%d, 0' % (PX[qt] + i))
        for i in range(2):
            A('v_cvt_pk_bf16_f32 v%d, v%d, v%d' % (PM[qt] + i, ms[2 * i], ms[2 * i + 1]))
        if qt == 0:
            A('s_waitcnt lgkmcnt(0)')
        for et in range(2):
            d = OT + (et * 2 + qt) * 4
            A('v_mfma_f32_16x16x32_bf16 v[%d:%d], v[%d:%d], v[%d:%d], 0' % (d, d + 3, VXF + 4 * et, VXF + 4 * et + 3, PX[qt], PX[qt] + 3))
        for et in range(2):
            d = OT + (et * 2 + qt) * 4
            A('v_mfma_f32_16x16x16_bf16 v[%d:%d], v[%d:%d], v[%d:%d], v[%d:%d]' % (d, d + 3, VA + 4 * et, VA + 4 * et + 1, PM[qt], PM[qt] + 1, d, d + 3))
        A('v_add_f32 v1, v%d, v%d' % (ms[0], ms[1]))
        A('v_add_f32 v2, v%d, v%d' % (ms[2], ms[3]))
        A('v_add_f32 v1, v1, v2')
        A('v_mul_f32 v1, 0.5, v1')
        for r in xs:
            A('v_add_f32 v1, v1, v%d' % r)
        chain.xred(A, 'v_add_f32', 1, 2)
        A('v_rcp_f32 v%d, v1' % RL[qt])
    for qt in range(2):
        for et in range(2):
            d = OT + (et * 2 + qt) * 4
            for i in range(4):
                A('v_mul_f32 v%d, v%d, v%d' % (d + i, d + i, RL[qt]))
            A('v_cvt_pk_bf16_f32 v%d, v%d, v%d' % (T + 4 * qt + 2 * et, d, d + 1))
            A('v_cvt_pk_bf16_f32 v%d, v%d, v%d' % (T + 4 * qt + 2 * et + 1, d + 2, d + 3))
        A('ds_write_b128 v%d, v[%d:%d] offset:%d' % (aQ, T + 4 * qt, T + 4 * qt + 3, OE + 1024 * qt))
    A('s_waitcnt lgkmcnt(0)')
    A('s_barrier')
    OA = R1
    for tt in range(2):
        for ks in range(4):
            b = OA + 16 * tt + 4 * ks
            A('ds_read_b128 v[%d:%d], v%d offset:%d' % (b, b + 3, aL, OE + 2048 * ks + 1024 * tt))
    A('s_cmp_eq_u32 s%d, 0' % sK)
    A('s_cbranch_scc1 L_o_nored')
    red_issue()
    A('L_o_nored:')
    A('s_add_u32 s63, s%d, 4' % sSeg)
    A('s_min_u32 s63, s63, 63')
    prefetch(63)
    A('s_waitcnt lgkmcnt(0)')
    A('s_lshl_b32 s63, s%d, 20' % sSeg)
    A('s_add_u32 s63, s63, %d' % OP)
    OC = R0
    for tt in range(2):
        for ks in range(4):
            for j in range(8):
                d = OC + 4 * j; wr = WOR(j, ks // 2) + 4 * (ks % 2); b = OA + 16 * tt + 4 * ks
                A('v_mfma_f32_16x16x32_bf16 v[%d:%d], v[%d:%d], v[%d:%d], %s' % (d, d + 3, b, b + 3, wr, wr + 3, '0' if ks == 0 else 'v[%d:%d]' % (d, d + 3)))
        for rho in range(4):
            G = T + 4 * (rho & 1)
            for u in range(4):
                A('v_cvt_pk_bf16_f32 v%d, v%d, v%d' % (G + u, OC + 8 * u + rho, OC + 8 * u + 4 + rho))
            A('s_add_u32 s61, s63, %d' % ((16 * tt + rho) * 32768))
            A('buffer_store_dwordx4 v[%d:%d], v%d, %s, s61 offen sc1' % (G, G + 3, aOPst, S(WS)))
    A('s_cmp_eq_u32 s%d, 0' % sK)
    A('s_cbranch_scc1 L_o_nored2')
    A('s_waitcnt vmcnt(14)')
    red_finish(R1)
    A('L_o_nored2:')
    A('s_add_u32 s%d, s%d, 1' % (sK, sK))
    A('s_add_u32 s%d, s%d, 4' % (sSeg, sSeg))
    A('s_cmp_lt_u32 s%d, 64' % sSeg)
    A('s_cbranch_scc1 L_o_loop')
    A('s_waitcnt vmcnt(0)')
    A('s_barrier')
    pub_flag()
    red_issue()
    A('s_waitcnt vmcnt(0)')
    red_finish(R1)
```

```python
from common import *

CB = 0.25 * LOG2E
NT = 6

def bworker(A, opt):
    A('L_bworker:')
    sJ, sU = 60, 70
    mHi16 = 96
    A('s_sub_u32 s%d, s%d, 5' % (sJ, sGRP))
    A('s_lshl_b32 s%d, s%d, 2' % (sU, sJ))
    A('s_add_u32 s%d, s%d, s%d' % (sU, sU, sWAVE))
    A('s_mov_b32 s%d, 0xffff0000' % mHi16); A('s_mov_b32 s%d, 0xffff0000' % (mHi16 + 1))
    MS = 16384 + 128
    A('v_lshrrev_b32 v1, 1, v0')
    A('v_mul_u32_u24 v1, 3072, v1')
    A('v_and_b32 v2, 1, v0')
    A('v_lshl_add_u32 v1, v2, 4, v1')
    A('s_lshl_b32 s61, s%d, 5' % sIDX)
    A('s_mul_i32 s62, s%d, %d' % (sWAVE, 128 * 3072))
    A('s_add_u32 s61, s61, s62')
    A('v_add_u32 v1, s61, v1')
    A('s_lshl_b32 s63, s%d, 12' % sWAVE)
    for mat in range(3):
        for i in range(4):
            A('s_add_u32 m0, s63, %d' % (mat * MS + i * 1024))
            A('s_mov_b32 s61, %d' % (mat * 1024 + i * 32 * 3072))
            A('buffer_load_dwordx4 v1, %s, s61 offen lds' % S(WQKV))
    WOI = 131072
    A('v_lshrrev_b32 v1, 2, v0')
    A('v_lshlrev_b32 v1, 10, v1')
    A('v_and_b32 v2, 3, v0')
    A('v_lshl_add_u32 v1, v2, 4, v1')
    A('s_and_b32 s61, s%d, 15' % sIDX)
    A('s_lshl_b32 s61, s61, 6')
    A('s_lshl_b32 s62, s%d, 17' % sWAVE)
    A('s_add_u32 s61, s61, s62')
    A('v_add_u32 v1, s61, v1')
    A('s_lshl_b32 s63, s%d, 13' % sWAVE)
    for i in range(8):
        A('s_add_u32 m0, s63, %d' % (WOI + i * 1024))
        A('s_mov_b32 s61, %d' % (i * 16384))
        A('buffer_load_dwordx4 v1, %s, s61 offen lds' % S(BWO))
    aL, aX, aTq, aTv, aKV, aVr, aFl, aBO, aOut, aTo = 4, 5, 6, 7, 8, 9, 10, 11, 12, 13
    vOne = 14
    A('v_lshlrev_b32 v%d, 4, v0' % aL)
    A('v_and_b32 v1, 31, v0')
    A('v_lshrrev_b32 v2, 5, v0')
    A('v_lshlrev_b32 v3, 10, v1')
    A('v_lshl_add_u32 v%d, v2, 4, v3' % aX)
    A('v_bfe_u32 v3, v0, 2, 2')
    A('v_lshl_add_u32 v3, v2, 3, v3')
    A('v_lshlrev_b32 v3, 5, v3')
    A('v_and_b32 v15, 3, v0')
    A('v_lshl_add_u32 v3, v15, 3, v3')
    A('v_add_u32 v%d, %d, v3' % (aTv, 2 * MS))
    A('v_bfe_u32 v16, v0, 4, 1')
    A('v_mul_u32_u24 v17, %d, v16' % MS)
    A('v_add_u32 v%d, v17, v3' % aTq)
    A('v_bfe_u32 v3, v0, 2, 2')
    A('v_lshl_add_u32 v3, v2, 2, v3')
    A('v_lshlrev_b32 v3, 6, v3')
    A('v_and_b32 v17, 1, v0')
    A('v_lshl_add_u32 v3, v17, 5, v3')
    A('v_lshl_add_u32 v3, v16, 4, v3')
    A('v_bfe_u32 v17, v0, 1, 1')
    A('v_lshl_add_u32 v3, v17, 3, v3')
    A('v_add_u32 v%d, %d, v3' % (aTo, WOI))
    A('s_lshl_b32 s61, s%d, 16' % sIDX)
    A('v_add_u32 v%d, s61, v%d' % (aKV, aL))
    A('v_and_b32 v3, 15, v0')
    A('v_lshl_add_u32 v3, v2, 5, v3')
    A('v_lshlrev_b32 v3, 4, v3')
    A('v_add_u32 v%d, 65536, v3' % aVr)
    A('s_lshl_b32 s61, s%d, 10' % sIDX)
    A('v_add_u32 v%d, s61, v%d' % (aBO, aL))
    A('v_lshlrev_b32 v3, 11, v1')
    A('v_lshl_add_u32 v3, v2, 5, v3')
    A('s_and_b32 s61, s%d, 15' % sIDX)
    A('s_lshl_b32 s61, s61, 6')
    A('s_add_u32 s61, s61, 1024')
    A('v_add_u32 v%d, s61, v3' % aOut)
    A('v_mov_b32 v%d, 0x3f803f80' % vOne)
    A('s_mov_b32 s79, 0x%x' % f2u(CB))
    A('s_waitcnt vmcnt(0)')
    A('s_barrier')
    for ks in range(32):
        for u in range(2):
            A('ds_read_b64_tr_b16 a[%d:%d], v%d offset:%d' % (4 * ks + 2 * u, 4 * ks + 2 * u + 1, aTq, ks * 512 + u * 128))
            A('ds_read_b64_tr_b16 a[%d:%d], v%d offset:%d' % (128 + 4 * ks + 2 * u, 128 + 4 * ks + 2 * u + 1, aTv, ks * 512 + u * 128))
        if ks % 2 == 1:
            A('s_waitcnt lgkmcnt(0)')
    QF = 24
    DQ, DV = 64, 80
    PKK, PKV = 48, 52
    XF = 128
    A('s_mov_b32 s71, 0')
    A('s_mov_b32 s72, s%d' % sU)
    for i in range(NT):
        A('s_min_u32 s73, s72, 63')
        A('s_lshl_b32 s61, s73, 15')
        for ks in range(32):
            A('buffer_load_dwordx4 v[%d:%d], v%d, %s, s61 offen offset:%d' % (XF + 4 * ks, XF + 4 * ks + 3, aX, S(XB), ks * 32))
        for ks in range(32):
            A('s_waitcnt vmcnt(%d)' % (31 - ks))
            x = 'v[%d:%d]' % (XF + 4 * ks, XF + 4 * ks + 3)
            A('v_mfma_f32_32x32x16_bf16 v[%d:%d], a[%d:%d], %s, %s' % (DQ, DQ + 15, 4 * ks, 4 * ks + 3, x, '0' if ks == 0 else 'v[%d:%d]' % (DQ, DQ + 15)))
            A('v_mfma_f32_32x32x16_bf16 v[%d:%d], %s, a[%d:%d], %s' % (DV, DV + 15, x, 128 + 4 * ks, 128 + 4 * ks + 3, '0' if ks == 0 else 'v[%d:%d]' % (DV, DV + 15)))
        for r in range(8):
            A('v_mul_f32 v%d, s79, v%d' % (DQ + r, DQ + r))
        for r in range(4):
            A('v_cvt_pk_bf16_f32 v%d, v%d, v%d' % (QF + 4 * i + r, DQ + 2 * r, DQ + 2 * r + 1))
            A('v_cvt_pk_bf16_f32 v%d, v%d, v%d' % (PKK + r, DQ + 8 + 2 * r, DQ + 9 + 2 * r))
        for r in range(8):
            A('v_cvt_pk_bf16_f32 v%d, v%d, v%d' % (PKV + r, DV + 2 * r, DV + 2 * r + 1))
        for r in range(4):
            A('v_cndmask_b32 v%d, v%d, v%d, s[%d:%d]' % (PKV + r, PKV + r, PKV + 4 + r, mHi16, mHi16 + 1))
        A('s_lshl_b32 s61, s73, 10')
        A('s_add_u32 s62, s61, %d' % BK)
        A('buffer_store_dwordx4 v[%d:%d], v%d, %s, s62 offen sc1' % (PKK, PKK + 3, aKV, S(WS)))
        A('s_add_u32 s62, s61, %d' % BV)
        A('buffer_store_dwordx4 v[%d:%d], v%d, %s, s62 offen sc1' % (PKV, PKV + 3, aKV, S(WS)))
        A('s_add_u32 s72, s72, 12')
    wait_dbg_word(A, D_CLR, 1, 1, 2)
    A('s_barrier')
    A('s_lshl_b32 s61, s%d, 9' % sIDX)
    A('s_add_u32 s61, s61, %d' % F_BKV)
    A('s_lshl_b32 s62, s%d, 7' % sJ)
    A('s_add_u32 s62, s62, s61')
    A('v_mov_b32 v1, s62')
    A('v_mov_b32 v2, 1')
    A('s_mov_b64 exec, 1')
    A('buffer_store_dword v2, v1, %s, 0 offen sc1' % S(WS))
    A('s_mov_b64 exec, -1')
    for ks in range(32):
        for u in range(2):
            A('ds_read_b64_tr_b16 a[%d:%d], v%d offset:%d' % (128 + 4 * ks + 2 * u, 128 + 4 * ks + 2 * u + 1, aTo, ks * 1024 + u * 512))
        if ks % 4 == 3:
            A('s_waitcnt lgkmcnt(0)')
    A('v_min_u32 v1, 2, v0')
    A('v_lshlrev_b32 v1, 7, v1')
    A('v_add_u32 v1, s61, v1')
    A('L_b_w1:')
    spin_check(A)
    A('buffer_load_dword v2, v1, %s, 0 offen sc1' % S(WS))
    A('s_waitcnt vmcnt(0)')
    A('v_cmp_ne_u32 vcc, 1, v2')
    A('s_cbranch_vccz L_b_g1')
    A('s_sleep 8')
    A('s_branch L_b_w1')
    A('L_b_g1:')
    A('s_lshl_b32 s63, s%d, 14' % sWAVE)
    for m, base in enumerate((BK, BV)):
        for i in range(4):
            A('s_add_u32 m0, s63, %d' % (m * 65536 + i * 4096))
            A('s_add_u32 s61, s63, %d' % (base + i * 4096))
            for q in range(4):
                A('buffer_load_dwordx4 v%d, %s, s61 offen offset:%d sc1 lds' % (aKV, S(WS), q * 1024))
    MX = 48
    for i in range(NT):
        A('v_mov_b32 v%d, 0x%x' % (MX + i, f2u(-3e38)))
    for r in range(16 * NT):
        A('v_accvgpr_write_b32 a%d, 0' % r)
    A('s_waitcnt vmcnt(0)')
    A('s_barrier')
    KF = [56, 60]
    SB = [64, 80, 96]
    A('v_mov_b32 v15, v%d' % aL)
    A('ds_read_b128 v[%d:%d], v15' % (KF[0], KF[0] + 3))
    A('s_mov_b32 s71, 0')
    A('L_b_p1:')
    seq = [(p, i) for p in range(2) for i in range(NT)]
    def s1(n):
        p, i = seq[n]; d = SB[n % 3]
        A('v_mfma_f32_32x32x16_bf16 v[%d:%d], v[%d:%d], v[%d:%d], 0' % (d, d + 15, KF[p], KF[p] + 3, QF + 4 * i, QF + 4 * i + 3))
    def m1(n):
        p, i = seq[n]; d = SB[n % 3]
        for r in range(8):
            A('v_max3_f32 v%d, v%d, v%d, v%d' % (MX + i, MX + i, d + 2 * r, d + 2 * r + 1))
    A('ds_read_b128 v[%d:%d], v15 offset:1024' % (KF[1], KF[1] + 3))
    A('s_waitcnt lgkmcnt(1)')
    s1(0); s1(1)
    for n in range(len(seq)):
        if n + 2 < len(seq):
            if n + 2 == NT:
                A('s_waitcnt lgkmcnt(0)')
            s1(n + 2)
            if n + 2 == NT:
                A('ds_read_b128 v[%d:%d], v15 offset:2048' % (KF[0], KF[0] + 3))
        m1(n)
    A('v_add_u32 v15, 2048, v15')
    A('s_add_u32 s71, s71, 2')
    A('s_cmp_lt_u32 s71, 64')
    A('s_cbranch_scc1 L_b_p1')
    NEG = 160
    for i in range(NT):
        A('v_mov_b32 v1, v%d' % (MX + i))
        A('v_permlane32_swap_b32 v%d, v1' % (MX + i))
        A('v_max_f32 v1, v1, v%d' % (MX + i))
        for r in range(16):
            A('v_sub_f32 v%d, 0, v1' % (NEG + 16 * i + r))
    VF = [112, 120]
    PB_ = [128, 136]
    A('s_waitcnt lgkmcnt(0)')
    A('v_mov_b32 v15, v%d' % aL)
    A('v_mov_b32 v16, v%d' % aVr)
    def rdkv(p, off):
        A('ds_read_b128 v[%d:%d], v15 offset:%d' % (KF[p], KF[p] + 3, off))
        A('ds_read_b128 v[%d:%d], v16 offset:%d' % (VF[p], VF[p] + 3, off))
        A('ds_read_b128 v[%d:%d], v16 offset:%d' % (VF[p] + 4, VF[p] + 7, off + 256))
    def fixv(p):
        for r in range(8):
            A('v_cndmask_b32 v%d, v%d, v%d, s[%d:%d]' % (VF[p] + r, VF[p] + r, vOne, mHi16, mHi16 + 1))
    def s2(n):
        p, i = seq[n]; d = SB[n % 2]
        A('v_mfma_f32_32x32x16_bf16 v[%d:%d], v[%d:%d], v[%d:%d], v[%d:%d]' % (d, d + 15, KF[p], KF[p] + 3, QF + 4 * i, QF + 4 * i + 3, NEG + 16 * i, NEG + 16 * i + 15))
    def e2(n):
        p, i = seq[n]; d = SB[n % 2]; pk = PB_[n % 2]
        for hf in range(2):
            for r in range(8):
                A('v_exp_f32 v%d, v%d' % (d + 8 * hf + r, d + 8 * hf + r))
            for r in range(4):
                A('v_cvt_pk_bf16_f32 v%d, v%d, v%d' % (pk + 4 * hf + r, d + 8 * hf + 2 * r, d + 8 * hf + 2 * r + 1))
            if hf == 0 and n > 0:
                pv(n - 1, 1)
        pv(n, 0)
    def pv(n, hf):
        p, i = seq[n]; pk = PB_[n % 2]
        A('v_mfma_f32_32x32x16_bf16 a[%d:%d], v[%d:%d], v[%d:%d], a[%d:%d]' % (16 * i, 16 * i + 15, VF[p] + 4 * hf, VF[p] + 4 * hf + 3, pk + 4 * hf, pk + 4 * hf + 3, 16 * i, 16 * i + 15))
    rdkv(0, 0)
    A('s_mov_b32 s71, 0')
    A('L_b_p2:')
    A('s_waitcnt lgkmcnt(0)')
    rdkv(1, 1024)
    s2(0)
    fixv(0)
    for n in range(len(seq)):
        if n + 1 < len(seq):
            if n + 1 == NT:
                A('s_waitcnt lgkmcnt(0)')
                fixv(1)
            s2(n + 1)
        e2(n)
        if n == NT:
            rdkv(0, 2048)
    pv(len(seq) - 1, 1)
    A('v_add_u32 v15, 2048, v15')
    A('v_add_u32 v16, 2048, v16')
    A('s_add_u32 s71, s71, 2')
    A('s_cmp_lt_u32 s71, 64')
    A('s_cbranch_scc1 L_b_p2')
    A('s_mov_b32 s72, s%d' % sU)
    for i in range(NT):
        D = 64 + 16 * (i % 2)
        for r in range(9):
            A('v_accvgpr_read_b32 v%d, a%d' % (D + r, 16 * i + r))
        A('v_rcp_f32 v%d, v%d' % (D + 8, D + 8))
        for r in range(8):
            A('v_mul_f32 v%d, v%d, v%d' % (D + r, D + r, D + 8))
        for r in range(4):
            A('v_cvt_pk_bf16_f32 v%d, v%d, v%d' % (D + 12 + r, D + 2 * r, D + 2 * r + 1))
        A('s_min_u32 s73, s72, 63')
        A('s_lshl_b32 s61, s73, 15')
        A('s_add_u32 s61, s61, %d' % BO)
        A('buffer_store_dwordx4 v[%d:%d], v%d, %s, s61 offen sc1' % (D + 12, D + 15, aBO, S(WS)))
        A('s_add_u32 s72, s72, 12')
    A('s_waitcnt vmcnt(0) lgkmcnt(0)')
    A('s_barrier')
    A('s_lshl_b32 s61, s%d, 12' % sJ)
    A('s_add_u32 s61, s61, %d' % F_BO)
    A('s_lshl_b32 s62, s%d, 7' % sIDX)
    A('s_add_u32 s62, s62, s61')
    A('v_mov_b32 v1, s62')
    A('v_mov_b32 v2, 1')
    A('s_mov_b64 exec, 1')
    A('buffer_store_dword v2, v1, %s, 0 offen sc1' % S(WS))
    A('s_mov_b64 exec, -1')
    A('v_and_b32 v1, 31, v0')
    A('v_lshlrev_b32 v1, 7, v1')
    A('v_add_u32 v1, s61, v1')
    A('L_b_w2:')
    spin_check(A)
    A('buffer_load_dword v2, v1, %s, 0 offen sc1' % S(WS))
    A('s_waitcnt vmcnt(0)')
    A('v_cmp_ne_u32 vcc, 1, v2')
    A('s_cbranch_vccz L_b_g2')
    A('s_sleep 8')
    A('s_branch L_b_w2')
    A('L_b_g2:')
    A('s_lshr_b32 s72, s%d, 4' % sIDX)
    A('s_mul_i32 s72, s72, 36')
    A('s_add_u32 s72, s72, s%d' % sU)
    A('s_mov_b32 s71, 0')
    A('L_b_3:')
    A('s_cmp_ge_u32 s72, 64')
    A('s_cbranch_scc1 L_exit')
    A('s_lshl_b32 s61, s72, 15')
    A('s_add_u32 s61, s61, %d' % BO)
    for ks in range(32):
        A('buffer_load_dwordx4 v[%d:%d], v%d, %s, s61 offen offset:%d sc1' % (XF + 4 * ks, XF + 4 * ks + 3, aL, S(WS), (ks % 4) * 1024))
        if ks % 4 == 3:
            A('s_add_u32 s61, s61, 4096')
    for ks in range(32):
        A('s_waitcnt vmcnt(%d)' % (31 - ks))
        A('v_mfma_f32_32x32x16_bf16 v[%d:%d], a[%d:%d], v[%d:%d], %s' % (DQ, DQ + 15, 128 + 4 * ks, 128 + 4 * ks + 3, XF + 4 * ks, XF + 4 * ks + 3, '0' if ks == 0 else 'v[%d:%d]' % (DQ, DQ + 15)))
    for r in range(8):
        A('v_cvt_pk_bf16_f32 v%d, v%d, v%d' % (DV + r, DQ + 2 * r, DQ + 2 * r + 1))
    A('s_lshl_b32 s61, s72, 16')
    A('buffer_store_dwordx4 v[%d:%d], v%d, %s, s61 offen' % (DV, DV + 3, aOut, S(OUT)))
    A('buffer_store_dwordx4 v[%d:%d], v%d, %s, s61 offen offset:16' % (DV + 4, DV + 7, aOut, S(OUT)))
    A('s_add_u32 s72, s72, 12')
    A('s_add_u32 s71, s71, 1')
    A('s_cmp_lt_u32 s71, 3')
    A('s_cbranch_scc1 L_b_3')
    A('s_endpgm')
```

```python
from common import *

ST, QE, KE, OE, KB, WVB = 0, 8192, 10240, 12288, 14336, 32768
CA = (128 ** -0.5) * LOG2E
vIdx, vSel = 4, 8
aPBst, aPBld, aMRst, aQ, aL, aWV, aKB, aQEw, aQEr, aKEr, aOEw, aOEr, aKXg, vSent, vMem, vFlag, aFlag = 5, 6, 7, 12, 13, 14, 15, 16, 17, 18, 19, 20, 21, 22, 23, 24, 25
VXN, VXC = 28, 36
AF = 44
QA, KA, VA = 76, 84, 92
QF = 100
T = 116
def WOR(j, t): return 128 + (j * 2 + t) * 8
sS, sRing, sRst, sTag, sG1, sK1, sKBm0, sC = 70, 71, 72, 73, 74, 75, 76, 77
mQ4, mOdd, mLo8 = 96, 98, 100

def wo_load(A, vaddr, blk, u, dense=False):
    t, hb, half = blk >> 2, (blk >> 1) & 1, blk & 1
    e0 = 64 * t + 32 * (u % 2) + 8 * hb + 2 * (u // 2)
    if dense:
        e0 = 32 * (2 * t + hb) + 16 * (u // 2) + 2 * (u % 2)
    r = WOR(4 * half + u, t) + 4 * hb
    A('s_mov_b32 s68, %d' % (e0 * 1024 + half * 128))
    A('buffer_load_dwordx2 v[%d:%d], v%d, %s, s68 offen' % (r, r + 1, vaddr, S(WO)))
    A('buffer_load_dwordx2 v[%d:%d], v%d, %s, s68 offen offset:1024' % (r + 2, r + 3, vaddr, S(WO)))

def wo_fix(A, blk, tmp, sLo, sHi):
    t, hb, half = blk >> 2, (blk >> 1) & 1, blk & 1
    for u in range(4):
        r = WOR(4 * half + u, t) + 4 * hb
        for j in range(4):
            A('v_perm_b32 v%d, v%d, v%d, s%d' % (tmp + j * 4 + u, r + 2 + j // 2, r + j // 2, sHi if j & 1 else sLo))
    for j in range(4):
        for u in range(4):
            A('v_mov_b32 v%d, v%d' % (WOR(4 * half + j, t) + 4 * hb + u, tmp + j * 4 + u))

def xred(A, op, x, y):
    A('v_mov_b32 v%d, v%d' % (y, x))
    A('v_permlane16_swap_b32 v%d, v%d' % (x, y))
    A('%s v%d, v%d, v%d' % (op, x, x, y))
    A('v_mov_b32 v%d, v%d' % (y, x))
    A('v_permlane32_swap_b32 v%d, v%d' % (x, y))
    A('%s v%d, v%d, v%d' % (op, x, x, y))

def setup(A, opt):
    A('L_chain:')
    A('s_setprio 3')
    A('v_and_b32 v1, 15, v0')
    A('v_lshrrev_b32 v2, 4, v0')
    A('v_lshlrev_b32 v%d, 4, v0' % aL)
    A('s_lshl_b32 s60, s%d, 11' % sWAVE)
    A('v_add_u32 v%d, s60, v%d' % (aQ, aL))
    A('s_lshl_b32 s61, s%d, 13' % sIDX)
    A('v_add_u32 v%d, s61, v%d' % (aKXg, aQ))
    A('s_lshl_b32 s61, s%d, 15' % sWAVE)
    A('s_add_u32 s61, s61, %d' % WVB)
    A('v_add_u32 v%d, s61, v%d' % (aWV, aL))
    A('v_add_u32 v%d, %d, v%d' % (aKB, KB, aL))
    A('s_add_u32 s%d, s60, %d' % (sKBm0, KB))
    A('v_bfe_u32 v3, v0, 1, 1')
    A('v_mov_b32 v%d, 0x4444' % vIdx)
    A('v_mov_b32 v26, 0xeeee')
    A('v_cmp_eq_u32 vcc, 1, v3')
    A('v_cndmask_b32 v%d, v%d, v26, vcc' % (vIdx, vIdx))
    A('v_and_b32 v26, 3, v0')
    A('v_mov_b32 v27, 0')
    A('v_mov_b32 v28, 0x3f80')
    A('v_cmp_eq_u32 vcc, 0, v26')
    A('v_cndmask_b32 v27, v27, v28, vcc')
    A('v_mov_b32 v28, 0x3f800000')
    A('v_cmp_eq_u32 vcc, 1, v26')
    A('v_cndmask_b32 v27, v27, v28, vcc')
    A('v_lshrrev_b32 v26, 2, v1')
    for u in range(4):
        A('v_cmp_eq_u32 vcc, %d, v26' % u)
        A('v_cndmask_b32 v%d, 0, v27, vcc' % (vSel + u))
    A('v_lshl_add_u32 v27, v26, 2, v2')
    A('v_lshlrev_b32 v27, 11, v27')
    A('v_and_b32 v28, 3, v0')
    A('v_lshl_add_u32 v27, v28, 4, v27')
    A('s_lshl_b32 s61, s%d, 16' % sWAVE)
    A('s_lshl_b32 s62, s%d, 6' % sIDX)
    A('s_add_u32 s61, s61, s62')
    A('s_add_u32 s61, s61, %d' % PB)
    A('v_add_u32 v%d, s61, v27' % aPBst)
    A('s_and_b32 s61, s%d, 1' % sWAVE)
    A('s_lshl_b32 s61, s61, 5')
    A('s_add_u32 s61, s61, s%d' % sIDX)
    A('s_lshr_b32 s62, s61, 4')
    A('s_lshl_b32 s62, s62, 5')
    A('s_and_b32 s61, s61, 15')
    A('s_add_u32 s61, s61, s62')
    A('s_lshr_b32 s62, s%d, 1' % sWAVE)
    A('s_lshl_b32 s62, s62, 4')
    A('s_add_u32 s%d, s61, s62' % sC)
    A('s_lshl_b32 s61, s%d, 11' % sC)
    A('s_add_u32 s61, s61, %d' % PB)
    A('v_add_u32 v%d, s61, v%d' % (aPBld, aL))
    A('v_lshlrev_b32 v27, 4, v2')
    A('v_lshl_add_u32 v27, v28, 2, v27')
    A('s_lshl_b32 s61, s%d, 6' % sC)
    A('v_add_u32 v%d, s61, v27' % aMRst)
    A('v_lshlrev_b32 v27, 4, v1')
    A('v_lshl_add_u32 v27, v2, 2, v27')
    A('s_lshl_b32 s61, s%d, 9' % sWAVE)
    A('s_add_u32 s62, s61, %d' % QE)
    A('v_add_u32 v%d, s62, v27' % aQEw)
    A('v_lshrrev_b32 v27, 2, v0')
    A('v_lshlrev_b32 v27, 4, v27')
    A('v_and_b32 v29, 1, v0')
    A('v_lshl_add_u32 v%d, v29, 3, v27' % aQEr)
    A('v_lshl_add_u32 v%d, v3, 3, v27' % aKEr)
    A('v_and_b32 v27, 7, v0')
    A('v_lshlrev_b32 v27, 4, v27')
    A('v_lshl_add_u32 v27, v2, 7, v27')
    A('v_add_u32 v%d, s61, v27' % aOEw)
    A('v_lshl_add_u32 v27, v26, 1, v29')
    A('v_lshlrev_b32 v27, 4, v27')
    A('v_lshl_add_u32 v27, v2, 7, v27')
    A('v_lshl_add_u32 v%d, v3, 9, v27' % aOEr)
    A('v_mov_b32 v%d, -1' % vSent)
    A('v_min_u32 v27, 3, v0')
    A('v_lshlrev_b32 v27, 12, v27')
    A('s_lshl_b32 s61, s%d, 7' % sIDX)
    A('v_add_u32 v%d, s61, v27' % aFlag)
    A('s_mov_b32 s%d, 0x000f000f' % mQ4); A('s_mov_b32 s%d, 0x000f000f' % (mQ4 + 1))
    A('s_mov_b32 s%d, 0xffff0000' % mOdd); A('s_mov_b32 s%d, 0xffff0000' % (mOdd + 1))
    A('s_mov_b32 s%d, 0x00ff00ff' % mLo8); A('s_mov_b32 s%d, 0x00ff00ff' % (mLo8 + 1))
    A('s_and_b32 s61, s%d, 3' % sC)
    A('s_lshl_b32 s61, s61, 11')
    A('s_lshr_b32 s62, s%d, 2' % sC)
    A('s_lshl_b32 s62, s62, 5')
    A('s_add_u32 s61, s61, s62')
    A('v_and_b32 v27, 1, v2')
    A('v_lshlrev_b32 v27, 10, v27')
    A('v_lshl_add_u32 v27, v28, 3, v27')
    A('v_lshrrev_b32 v29, 1, v2')
    A('v_lshl_add_u32 v27, v29, 2, v27')
    A('v_add_u32 v27, s61, v27')
    A('buffer_load_dword v%d, v27, %s, 0 offen' % (vMem, S(MEM0)))
    for i in range(4):
        A('v_mov_b32 v%d, 0' % (32 + i))
        A('v_mov_b32 v%d, -1' % (36 + i))
    A('buffer_store_dwordx4 v[32:35], v%d, %s, 0 offen sc1' % (aPBst, S(WS)))
    A('s_mov_b32 s61, 32768')
    A('buffer_store_dwordx4 v[32:35], v%d, %s, s61 offen sc1' % (aPBst, S(WS)))
    A('v_lshrrev_b32 v27, 2, v0')
    A('v_lshlrev_b32 v27, 13, v27')
    A('v_lshl_add_u32 v27, v28, 4, v27')
    A('s_lshl_b32 s61, s%d, 6' % sC)
    A('v_add_u32 v27, s61, v27')
    for i in range(4):
        A('s_mov_b32 s61, %d' % (MH + i * 16 * 8192))
        A('buffer_store_dwordx4 v[36:39], v27, %s, s61 offen sc1' % S(WS))
    A('s_mov_b64 exec, 0xfff')
    A('s_mov_b32 s61, %d' % MR)
    A('buffer_store_dwordx4 v[36:39], v27, %s, s61 offen sc1' % S(WS))
    A('s_mov_b64 exec, -1')
    A('v_and_b32 v27, 1, v2')
    A('v_lshlrev_b32 v27, 14, v27')
    A('v_lshl_add_u32 v27, v29, 12, v27')
    A('v_lshl_add_u32 v27, v1, 3, v27')
    A('s_lshl_b32 s61, s%d, 17' % sIDX)
    A('s_lshl_b32 s62, s%d, 8' % sWAVE)
    A('s_add_u32 s61, s61, s62')
    A('v_add_u32 v43, s61, v27')
    ld = QKVLoader(A, 40, 41, 42, WVB, 64)
    for i in range(32):
        ld.dma(WQ, i)
    for ks in range(16):
        A('s_waitcnt vmcnt(30)')
        if ks == 0:
            A('s_barrier')
            A('s_cmp_lg_u32 s%d, 0' % sWAVE)
            A('s_cbranch_scc1 L_c_noarr')
            A('s_lshl_b32 s61, s%d, 16' % sFOR)
            A('s_add_u32 s61, s61, 1')
            A('v_mov_b32 v32, s61')
            A('v_mov_b32 v33, %d' % D_ARR)
            A('s_mov_b64 exec, 1')
            A('buffer_atomic_add v32, v33, %s, 0 offen' % S(DBG))
            A('s_mov_b64 exec, -1')
            A('L_c_noarr:')
        ld.tr('a', 0, ks)
        A('s_waitcnt lgkmcnt(0)')
        ld.dma(WK, 2 * ks); ld.dma(WK, 2 * ks + 1)
    for ks in range(16):
        A('s_waitcnt vmcnt(30)')
        ld.tr('a', 128, ks)
        A('s_waitcnt lgkmcnt(0)')
        ld.dma(WV, 2 * ks); ld.dma(WV, 2 * ks + 1)
    for ks in range(16):
        A('s_waitcnt vmcnt(%d)' % (30 + 2 * ks))
        for tile, ad in ((0, 41), (1, 42)):
            for u in range(2):
                r = 48 + tile * 4 + 2 * u
                A('ds_read_b64_tr_b16 v[%d:%d], v%d offset:%d' % (r, r + 1, ad, ks * 2048 + u * 256))
        wo_load(A, 43, ks // 2, 2 * (ks % 2)); wo_load(A, 43, ks // 2, 2 * (ks % 2) + 1)
        A('s_waitcnt lgkmcnt(0)')
        A('ds_write_b128 v%d, v[48:51] offset:%d' % (aWV, ks * 2048))
        A('ds_write_b128 v%d, v[52:55] offset:%d' % (aWV, ks * 2048 + 1024))
        A('s_waitcnt lgkmcnt(0)')
    A('s_mov_b32 s61, 0x05040100')
    A('s_mov_b32 s62, 0x07060302')
    for blk in range(8):
        A('s_waitcnt vmcnt(%d)' % (56 - 8 * blk))
        wo_fix(A, blk, 48, 61, 62)
    A('v_min_u32 v%d, 0xfffffffe, v%d' % (vMem, vMem))
    wait_dbg_word(A, D_CLR, 1, 1, 2)
    wait_dbg_word(A, D_ARR, 32, 1, 2, mask=0xffff)
    A('s_lshr_b32 s63, s57, 16')

def ensure_kv(A, tag):
    ok = A.label('L_kv_ok'); lp = A.label('L_kv_lp')
    A('%s:' % lp)
    A('v_readlane_b32 s60, v%d, s%d' % (vFlag, sG1))
    A('s_cmp_gt_u32 s60, s%d' % sK1)
    A('s_cbranch_scc1 %s' % ok)
    spin_check(A)
    A('buffer_load_dword v%d, v%d, %s, 0 offen sc1' % (vFlag, aFlag, S(WS)))
    A('s_waitcnt vmcnt(0)')
    A('s_branch %s' % lp)
    A('%s:' % ok)

def prefetch_kv(A, sseg):
    A('s_lshl_b32 s60, s%d, 18' % sseg)
    A('s_add_u32 s61, s60, %d' % KX)
    A('s_mov_b32 m0, s%d' % sKBm0)
    A('buffer_load_dwordx4 v%d, %s, s61 offen sc1 lds' % (aKXg, S(WS)))
    A('buffer_load_dwordx4 v%d, %s, s61 offen offset:1024 sc1 lds' % (aKXg, S(WS)))
    A('s_add_u32 s61, s60, %d' % VX)
    A('buffer_load_dwordx4 v[%d:%d], v%d, %s, s61 offen sc1' % (VXN, VXN + 3, aKXg, S(WS)))
    A('buffer_load_dwordx4 v[%d:%d], v%d, %s, s61 offen offset:1024 sc1' % (VXN + 4, VXN + 7, aKXg, S(WS)))

def adv_gk(A):
    A('s_add_u32 s%d, s%d, 1' % (sG1, sG1))
    A('s_cmp_eq_u32 s%d, 4' % sG1)
    A('s_cselect_b32 s%d, 0, s%d' % (sG1, sG1))
    A('s_addc_u32 s%d, s%d, 0' % (sK1, sK1))

def loop(A, opt, SC, tag):
    stamp = opt.get('stamp')
    A('L_c_start%s:' % tag)
    A('s_mov_b32 s%d, 0' % sS)
    A('s_mov_b32 s%d, %d' % (sRing, MR))
    A('s_mov_b32 s%d, %d' % (sRst, MR + 2 * 8192))
    A('s_mov_b32 s%d, 1' % sTag)
    A('s_mov_b32 s%d, 0' % sG1)
    A('s_mov_b32 s%d, 0' % sK1)
    A('s_mov_b32 s78, 8192')
    A('s_mov_b32 s79, 0x%x' % f2u(CA))
    A('s_mov_b64 exec, s[%d:%d]' % (mQ4, mQ4 + 1))
    A('buffer_store_dword v%d, v%d, %s, s%d offen %s' % (vMem, aMRst, S(WS), sRing, SC))
    A('s_mov_b64 exec, -1')
    A('v_mov_b32 v%d, 0' % vFlag)
    ensure_kv(A, tag)
    prefetch_kv(A, sS)
    A('s_add_u32 s%d, s%d, s78' % (sKBm0, sKBm0))
    adv_gk(A)
    A('L_c_loop%s:' % tag)
    for i in range(24):
        A('v_mov_b32 v%d, 0' % (QA + i))
    A('L_c_pa%s:' % tag)
    spin_check(A)
    A('buffer_load_dwordx4 v[%d:%d], v%d, %s, s%d offen sc1' % (T, T + 3, aQ, S(WS), sRing))
    A('buffer_load_dwordx4 v[%d:%d], v%d, %s, s%d offen offset:1024 sc1' % (T + 4, T + 7, aQ, S(WS), sRing))
    A('s_waitcnt vmcnt(0)')
    A('v_max3_u32 v1, v%d, v%d, v%d' % (T, T + 1, T + 2))
    A('v_max3_u32 v2, v%d, v%d, v%d' % (T + 3, T + 4, T + 5))
    A('v_max3_u32 v1, v1, v%d, v%d' % (T + 6, T + 7))
    A('v_max_u32 v1, v1, v2')
    A('v_cmp_eq_u32 vcc, -1, v1')
    A('s_cbranch_vccnz L_c_pa%s' % tag)
    A('ds_write_b128 v%d, v[%d:%d] offset:%d' % (aQ, T, T + 3, ST))
    A('ds_write_b128 v%d, v[%d:%d] offset:%d' % (aQ, T + 4, T + 7, ST + 1024))
    A('s_waitcnt lgkmcnt(0)')
    A('s_barrier')
    for t in range(8):
        A('ds_read_b128 v[%d:%d], v%d offset:%d' % (AF + 4 * t, AF + 4 * t + 3, aL, ST + 1024 * t))
    for i in range(8):
        A('v_mov_b32 v%d, v%d' % (VXC + i, VXN + i))
    A('s_lshl_b32 s60, s%d, 13' % sS)
    A('s_add_u32 s60, s60, %d' % MH)
    A('s_mov_b64 exec, s[%d:%d]' % (mQ4, mQ4 + 1))
    A('buffer_store_dword v%d, v%d, %s, s60 offen sc1' % (vMem, aMRst, S(WS)))
    A('s_mov_b64 exec, -1')
    ensure_kv(A, tag)
    A('s_add_u32 s62, s%d, 1' % sS)
    prefetch_kv(A, 62)
    A('s_sub_u32 s78, 0, s78')
    A('s_add_u32 s%d, s%d, s78' % (sKBm0, sKBm0))
    adv_gk(A)
    A('buffer_load_dword v%d, v%d, %s, 0 offen sc1' % (vFlag, aFlag, S(WS)))
    for m, acc in ((0, QA), (1, KA)):
        for t in range(8):
            if m == 0:
                A('s_waitcnt lgkmcnt(%d)' % (7 - t))
            for tile in range(2):
                b = m * 128 + tile * 64 + t * 8
                A('v_smfmac_f32_16x16x64_bf16 v[%d:%d], v[%d:%d], a[%d:%d], v%d' % (acc + 4 * tile, acc + 4 * tile + 3, AF + 4 * t, AF + 4 * t + 3, b, b + 7, vIdx))
    for acc, off in ((QA, 0), (KA, KE - QE)):
        for tile in range(2):
            d = acc + 4 * tile
            A('v_pk_add_f32 v[%d:%d], v[%d:%d], v[%d:%d]' % (d, d + 1, d, d + 1, d + 2, d + 3))
        for tile in range(2):
            d = acc + 4 * tile
            A('v_cvt_pk_bf16_f32 v%d, v%d, v%d' % (d, d, d + 1))
        A('ds_write_b32 v%d, v%d offset:%d' % (aQEw, acc, off))
        A('ds_write_b32 v%d, v%d offset:%d' % (aQEw, acc + 4, off + 256))
    A('s_waitcnt lgkmcnt(0)')
    A('s_barrier')
    bufs = [QF, QF + 8, T]
    seq = [(t, tile) for t in range(8) for tile in range(2)]
    def wv_rd(i):
        t, tile = seq[i]; b = bufs[i % 3]
        A('ds_read_b128 v[%d:%d], v%d offset:%d' % (b, b + 3, aWV, (2 * t) * 2048 + tile * 1024))
        A('ds_read_b128 v[%d:%d], v%d offset:%d' % (b + 4, b + 7, aWV, (2 * t + 1) * 2048 + tile * 1024))
    wv_rd(0); wv_rd(1)
    for i in range(16):
        if i + 2 < 16:
            wv_rd(i + 2)
        A('s_waitcnt lgkmcnt(%d)' % (2 * min(2, 15 - i)))
        t, tile = seq[i]; b = bufs[i % 3]
        A('v_smfmac_f32_16x16x64_bf16 v[%d:%d], v[%d:%d], v[%d:%d], v%d' % (VA + 4 * tile, VA + 4 * tile + 3, AF + 4 * t, AF + 4 * t + 3, b, b + 7, vIdx))
    A('s_nop 3')
    for ks in range(4):
        for u in range(2):
            A('ds_read_b64_tr_b16 v[%d:%d], v%d offset:%d' % (QF + 4 * ks + 2 * u, QF + 4 * ks + 2 * u + 1, aQEr, QE + ks * 512 + u * 256))
    for ks in range(4):
        for u in range(2):
            A('ds_read_b64_tr_b16 v[%d:%d], v%d offset:%d' % (AF + 4 * ks + 2 * u, AF + 4 * ks + 2 * u + 1, aKEr, KE + ks * 512 + u * 256))
    for ks in range(4):
        A('ds_read_b128 v[%d:%d], v%d offset:%d' % (AF + 16 + 4 * ks, AF + 19 + 4 * ks, aKB, ks * 1024))
    A('s_waitcnt lgkmcnt(0)')
    SM, SX = T, QA
    for ks in range(4):
        A('v_mfma_f32_16x16x32_bf16 v[%d:%d], v[%d:%d], v[%d:%d], %s' % (SM, SM + 3, AF + 4 * ks, AF + 4 * ks + 3, QF + 4 * ks, QF + 4 * ks + 3, '0' if ks == 0 else 'v[%d:%d]' % (SM, SM + 3)))
    for ks in range(4):
        A('v_mfma_f32_16x16x32_bf16 v[%d:%d], v[%d:%d], v[%d:%d], %s' % (SX, SX + 3, AF + 16 + 4 * ks, AF + 19 + 4 * ks, QF + 4 * ks, QF + 4 * ks + 3, '0' if ks == 0 else 'v[%d:%d]' % (SX, SX + 3)))
    for ks in range(4):
        A('ds_read_b128 v[%d:%d], v%d offset:%d' % (AF + 4 * ks, AF + 3 + 4 * ks, aKB, 4096 + ks * 1024))
    A('s_waitcnt lgkmcnt(0)')
    for ks in range(4):
        A('v_mfma_f32_16x16x32_bf16 v[%d:%d], v[%d:%d], v[%d:%d], %s' % (SX + 4, SX + 7, AF + 4 * ks, AF + 3 + 4 * ks, QF + 4 * ks, QF + 4 * ks + 3, '0' if ks == 0 else 'v[%d:%d]' % (SX + 4, SX + 7)))
    A('v_subrev_u32 v%d, s78, v%d' % (aKB, aKB))
    for tile in range(2):
        d = VA + 4 * tile
        A('v_pk_add_f32 v[%d:%d], v[%d:%d], v[%d:%d]' % (d, d + 1, d, d + 1, d + 2, d + 3))
        A('v_cvt_pk_bf16_f32 v%d, v%d, v%d' % (d + 2, d, d + 1))
        A('v_cndmask_b32 v%d, v%d, 0, s[%d:%d]' % (d, d + 2, mOdd, mOdd + 1))
        A('v_cndmask_b32 v%d, 0, v%d, s[%d:%d]' % (d + 1, d + 2, mOdd, mOdd + 1))
    A('v_max3_f32 v1, v%d, v%d, v%d' % (SM, SM + 1, SM + 2))
    A('v_max3_f32 v1, v1, v%d, v%d' % (SM + 3, SX))
    A('v_max3_f32 v1, v1, v%d, v%d' % (SX + 1, SX + 2))
    A('v_max3_f32 v1, v1, v%d, v%d' % (SX + 3, SX + 4))
    A('v_max3_f32 v1, v1, v%d, v%d' % (SX + 5, SX + 6))
    A('v_max_f32 v1, v1, v%d' % (SX + 7))
    xred(A, 'v_max_f32', 1, 2)
    A('v_mul_f32 v1, s79, v1')
    for r in [SM + i for i in range(4)] + [SX + i for i in range(8)]:
        A('v_fma_f32 v%d, v%d, s79, -v1' % (r, r))
    for r in [SM + i for i in range(4)] + [SX + i for i in range(8)]:
        A('v_exp_f32 v%d, v%d' % (r, r))
    PX, PM = T + 4, T + 8
    for i in range(4):
        A('v_cvt_pk_bf16_f32 v%d, v%d, v%d' % (PX + i, SX + 2 * i, SX + 2 * i + 1))
    for i in range(2):
        A('v_cvt_pk_bf16_f32 v%d, v%d, v%d' % (PM + i, SM + 2 * i, SM + 2 * i + 1))
    OT = KA
    for tile in range(2):
        A('v_mfma_f32_16x16x32_bf16 v[%d:%d], v[%d:%d], v[%d:%d], 0' % (OT + 4 * tile, OT + 4 * tile + 3, VXC + 4 * tile, VXC + 4 * tile + 3, PX, PX + 3))
    for tile in range(2):
        A('v_mfma_f32_16x16x16_bf16 v[%d:%d], v[%d:%d], v[%d:%d], v[%d:%d]' % (OT + 4 * tile, OT + 4 * tile + 3, VA + 4 * tile, VA + 4 * tile + 1, PM, PM + 1, OT + 4 * tile, OT + 4 * tile + 3))
    A('v_add_f32 v1, v%d, v%d' % (SM, SM + 1))
    A('v_add_f32 v2, v%d, v%d' % (SM + 2, SM + 3))
    A('v_add_f32 v1, v1, v2')
    A('v_mul_f32 v1, 0.5, v1')
    for i in range(8):
        A('v_add_f32 v1, v1, v%d' % (SX + i))
    xred(A, 'v_add_f32', 1, 2)
    A('v_rcp_f32 v1, v1')
    for i in range(32):
        A('v_mov_b32 v%d, 0' % (AF + i))
    for i in range(8):
        A('v_mul_f32 v%d, v%d, v1' % (OT + i, OT + i))
    for i in range(4):
        A('v_cvt_pk_bf16_f32 v%d, v%d, v%d' % (T + i, OT + 2 * i, OT + 2 * i + 1))
    A('s_mov_b64 exec, s[%d:%d]' % (mLo8, mLo8 + 1))
    A('ds_write_b128 v%d, v[%d:%d] offset:%d' % (aOEw, T, T + 3, OE))
    A('s_mov_b64 exec, -1')
    A('s_waitcnt lgkmcnt(0)')
    A('s_barrier')
    OA = QF
    A('ds_read_b128 v[%d:%d], v%d offset:%d' % (OA, OA + 3, aOEr, OE))
    A('ds_read_b128 v[%d:%d], v%d offset:%d' % (OA + 4, OA + 7, aOEr, OE + 1024))
    A('s_waitcnt lgkmcnt(0)')
    OC = AF
    A('s_mov_b32 s61, 32768')
    for hf in range(2):
        for t in range(2):
            for j in range(4 * hf, 4 * hf + 4):
                A('v_smfmac_f32_16x16x64_bf16 v[%d:%d], v[%d:%d], v[%d:%d], v%d' % (OC + 4 * j, OC + 4 * j + 3, OA + 4 * t, OA + 4 * t + 3, WOR(j, t), WOR(j, t) + 7, vIdx))
    for hf in range(2):
        for j in range(4 * hf, 4 * hf + 4):
            d = OC + 4 * j
            A('v_pk_add_f32 v[%d:%d], v[%d:%d], v[%d:%d]' % (d, d + 1, d, d + 1, d + 2, d + 3))
        G = T + 4 * hf
        for u in range(4):
            hi, b = u >> 1, u & 1
            j = 4 * hf + 2 * hi
            A('v_cvt_pk_bf16_f32 v%d, v%d, v%d' % (G + u, OC + 4 * j + b, OC + 4 * (j + 1) + b))
        A('v_bfi_b32 v%d, 1, s%d, v%d' % (G, sTag, G))
        A('buffer_store_dwordx4 v[%d:%d], v%d, %s, %s offen %s' % (G, G + 3, aPBst, S(WS), 's61' if hf else '0', SC))
    R = QF
    A('L_c_pb%s:' % tag)
    spin_check(A)
    A('buffer_load_dwordx4 v[%d:%d], v%d, %s, 0 offen sc1' % (R, R + 3, aPBld, S(WS)))
    A('buffer_load_dwordx4 v[%d:%d], v%d, %s, 0 offen offset:1024 sc1' % (R + 4, R + 7, aPBld, S(WS)))
    A('s_waitcnt vmcnt(0)')
    A('v_xor_b32 v1, s%d, v%d' % (sTag, R))
    A('v_xor_b32 v2, s%d, v%d' % (sTag, R + 4))
    A('v_or_b32 v1, v1, v2')
    A('v_and_b32 v1, 1, v1')
    A('v_cmp_ne_u32 vcc, 0, v1')
    A('s_cbranch_vccnz L_c_pb%s' % tag)
    D = R + 8
    A('v_mfma_f32_16x16x32_bf16 v[%d:%d], v[%d:%d], v[%d:%d], 0' % (D, D + 3, vSel, vSel + 3, R, R + 3))
    A('v_mfma_f32_16x16x32_bf16 v[%d:%d], v[%d:%d], v[%d:%d], v[%d:%d]' % (D, D + 3, vSel, vSel + 3, R + 4, R + 7, D, D + 3))
    A('s_add_u32 s%d, s%d, 8192' % (sRing, sRing))
    A('s_cmp_eq_u32 s%d, %d' % (sRing, MR + 3 * 8192))
    A('s_cselect_b32 s%d, %d, s%d' % (sRing, MR, sRing))
    A('s_add_u32 s%d, s%d, 8192' % (sRst, sRst))
    A('s_cmp_eq_u32 s%d, %d' % (sRst, MR + 3 * 8192))
    A('s_cselect_b32 s%d, %d, s%d' % (sRst, MR, sRst))
    A('s_xor_b32 s%d, s%d, 1' % (sTag, sTag))
    A('s_add_u32 s%d, s%d, 1' % (sS, sS))
    for rot in (4, 8):
        A('v_add_f32_dpp v%d, v%d, v%d row_ror:%d row_mask:0xf bank_mask:0xf' % (D, D, D, rot))
        A('v_add_f32_dpp v%d, v%d, v%d row_ror:%d row_mask:0xf bank_mask:0xf' % (D + 1, D + 1, D + 1, rot))
    A('v_cvt_pk_bf16_f32 v%d, v%d, v%d' % (vMem, D, D + 1))
    A('v_min_u32 v%d, 0xfffffffe, v%d' % (vMem, vMem))
    A('s_mov_b64 exec, s[%d:%d]' % (mQ4, mQ4 + 1))
    A('s_cmp_eq_u32 s%d, 63' % sS)
    A('s_cbranch_scc1 L_c_done')
    A('buffer_store_dword v%d, v%d, %s, s%d offen %s' % (vMem, aMRst, S(WS), sRing, SC))
    A('buffer_store_dword v%d, v%d, %s, s%d offen %s' % (vSent, aMRst, S(WS), sRst, SC))
    A('s_mov_b64 exec, -1')
    A('s_branch L_c_loop%s' % tag)

def chain(A, opt):
    setup(A, opt)
    A('s_cmp_lg_u32 s63, 0')
    A('s_cbranch_scc1 L_c_start_s')
    loop(A, opt, '', '_f')
    loop(A, opt, 'sc1', '_s')
    A('L_c_done:')
    A('s_mov_b32 s60, %d' % (MH + 63 * 8192))
    A('buffer_store_dword v%d, v%d, %s, s60 offen sc1' % (vMem, aMRst, S(WS)))
    A('s_endpgm')
```

```python
from asmlib import *
import hazard

FLG = 0x0000000
PB = 0x0100000
MR = 0x0180000
MH = 0x0200000
TS = 0x0300000
QX = 0x1000000
KX = 0x2000000
VX = 0x3000000
OP = 0x4000000
BK = 0x8000000
BV = 0x8200000
BO = 0x8400000
NA = 4
NB = 3
F_KV = FLG
F_OP = FLG + 128 * 128
F_BKV = FLG + 256 * 128
F_BO = FLG + 384 * 128
NFLAGS = 512
D_ARR = 56 * 4
D_CLR = 57 * 4
D_ERR = 58 * 4
D_OVF = 59 * 4
def d_cnt_off(x): return 0 if x == 0 else 64 + 4 * x

XA, MEM0, WQ, WK, WV, WO, XB, WQKV, BWO, OUT, DBG, WS = [8 + 4 * i for i in range(12)]
def S(r): return 's[%d:%d]' % (r, r + 3)
sXCC, sWAVE, sGRP, sIDX, sFOR = 3, 4, 5, 6, 7
sBUD = 56
LOG2E = 1.4426950408889634

import struct
def f2u(f): return struct.unpack('<I', struct.pack('<f', f))[0]

def spin_check(A):
    A('s_sub_u32 s%d, s%d, 1' % (sBUD, sBUD))
    A('s_cbranch_scc1 L_timeout')

def prologue(A, fake=None):
    A('s_cmp_ge_u32 s2, 256')
    A('s_cbranch_scc1 L_exit')
    A('s_load_dwordx16 s[64:79], s[0:1], 0')
    A('s_load_dwordx8 s[80:87], s[0:1], 64')
    A('s_load_dwordx2 s[88:89], s[0:1], 96')
    A('s_getreg_b32 s%d, hwreg(HW_REG_XCC_ID)' % sXCC)
    A('s_and_b32 s%d, s%d, 0xf' % (sXCC, sXCC))
    if fake == 'shift':
        pass
    if fake == 'ovf':
        A('s_mov_b32 s%d, 9' % sXCC)
    if fake == 'half':
        A('s_bitcmp1_b32 s2, 3')
        A('s_cselect_b32 s%d, 9, s%d' % (sXCC, sXCC))
    A('v_lshrrev_b32 v1, 6, v0')
    A('v_and_b32 v0, 63, v0')
    A('v_readfirstlane_b32 s%d, v1' % sWAVE)
    A('s_mov_b32 s%d, 0x400000' % sBUD)
    A('s_waitcnt lgkmcnt(0)')
    sizes = {XA: (64, 2048 * 512 * 2), MEM0: (66, 8192), WQ: (68, 1 << 22), WK: (70, 1 << 22), WV: (72, 1 << 22), WO: (74, 1 << 22),
             XB: (78, 2048 * 512 * 2), WQKV: (80, 512 * 1536 * 2), BWO: (82, 512 * 512 * 2), OUT: (84, 2048 * 1024 * 2), DBG: (86, 256), WS: (88, 1 << 28)}
    for r in (DBG, WS, XA, MEM0, WQ, WK, WV, WO, XB, WQKV, BWO, OUT):
        srd(A, r, sizes[r][0], sizes[r][1])
    A('s_cmp_lg_u32 s%d, 0' % sWAVE)
    A('s_cbranch_scc1 L_role_wait')
    A('s_lshl_b32 s57, s%d, 2' % sXCC)
    A('s_add_u32 s57, s57, 64')
    A('s_cmp_eq_u32 s%d, 0' % sXCC)
    A('s_cselect_b32 s57, 0, s57')
    A('v_mov_b32 v2, s57')
    A('v_mov_b32 v3, 1')
    A('s_mov_b64 exec, 1')
    A('buffer_atomic_add v3, v2, %s, 0 offen sc0' % S(DBG))
    A('s_waitcnt vmcnt(0)')
    A('s_mov_b64 exec, -1')
    A('v_readfirstlane_b32 s58, v3')
    A('s_lshl_b32 s59, s%d, 5' % sXCC)
    A('s_add_u32 s59, s59, s58')
    A('s_cmp_ge_u32 s58, 32')
    A('s_cbranch_scc1 L_ovf')
    A('s_cmp_ge_u32 s%d, 8' % sXCC)
    A('s_cbranch_scc0 L_role_done')
    A('L_ovf:')
    A('v_mov_b32 v2, %d' % D_OVF)
    A('v_mov_b32 v3, 1')
    A('s_mov_b64 exec, 1')
    A('buffer_atomic_add v3, v2, %s, 0 offen sc0' % S(DBG))
    A('s_waitcnt vmcnt(0)')
    A('s_mov_b64 exec, -1')
    A('v_readfirstlane_b32 s58, v3')
    A('v_lshlrev_b32 v2, 2, v0')
    A('v_add_u32 v2, 64, v2')
    A('v_cmp_eq_u32 vcc, 0, v0')
    A('v_cndmask_b32 v2, v2, 0, vcc')
    A('L_ovf_wait:')
    spin_check(A)
    A('s_sleep 8')
    A('buffer_load_dword v3, v2, %s, 0 offen sc1' % S(DBG))
    A('s_waitcnt vmcnt(0)')
    A('s_mov_b32 s60, 0')
    for x in range(16):
        A('v_readlane_b32 s61, v3, %d' % x)
        A('s_add_u32 s60, s60, s61')
    A('s_cmp_lt_u32 s60, 256')
    A('s_cbranch_scc1 L_ovf_wait')
    A('s_mov_b32 s59, 0x1000')
    for x in range(8):
        lab = A.label('L_ovf_n')
        A('v_readlane_b32 s61, v3, %d' % x)
        A('s_min_u32 s61, s61, 32')
        A('s_sub_u32 s60, 32, s61')
        A('s_cmp_lt_u32 s58, s60')
        A('s_cbranch_scc0 %s' % lab)
        A('s_add_u32 s59, s61, s58')
        A('s_add_u32 s59, s59, %d' % (x * 32 + 0x10000))
        A('s_branch L_role_done')
        A('%s:' % lab)
        A('s_sub_u32 s58, s58, s60')
    A('L_role_done:')
    A('v_mov_b32 v2, 0')
    A('v_mov_b32 v3, s59')
    A('ds_write_b32 v2, v3')
    A('s_waitcnt lgkmcnt(0)')
    A('L_role_wait:')
    A('s_barrier')
    A('v_mov_b32 v2, 0')
    A('ds_read_b32 v3, v2')
    A('s_waitcnt lgkmcnt(0)')
    A('v_readfirstlane_b32 s59, v3')
    A('s_barrier')
    A('s_lshr_b32 s%d, s59, 16' % sFOR)
    A('s_bfe_u32 s%d, s59, 0x80005' % sGRP)
    A('s_and_b32 s%d, s59, 31' % sIDX)
    A('s_cmp_ge_u32 s%d, 8' % sGRP)
    A('s_cbranch_scc1 L_exit')

def epilogue(A):
    A('L_timeout:')
    A('s_mov_b64 exec, 1')
    A('v_mov_b32 v2, %d' % D_ERR)
    A('v_mov_b32 v3, s%d' % sGRP)
    A('v_add_u32 v3, 0x100, v3')
    A('buffer_store_dword v3, v2, %s, 0 offen sc1' % S(DBG))
    A('L_exit:')
    A('s_endpgm')

def wait_dbg_word(A, off, minval, vt, va, mask=None):
    lab = A.label('L_wd')
    A('v_mov_b32 v%d, %d' % (va, off))
    A('%s:' % lab)
    spin_check(A)
    A('buffer_load_dword v%d, v%d, %s, 0 offen sc1' % (vt, va, S(DBG)))
    A('s_waitcnt vmcnt(0)')
    A('v_readfirstlane_b32 s57, v%d' % vt)
    if mask is not None:
        A('s_and_b32 s58, s57, 0x%x' % mask)
        A('s_cmp_lt_u32 s58, %d' % minval)
    else:
        A('s_cmp_lt_u32 s57, %d' % minval)
    A('s_cbranch_scc1 %s' % lab)

class QKVLoader:
    def __init__(self, A, vg, va, vb, lds_base, stmp):
        self.A = A; self.vg = vg; self.va = va; self.vb = vb; self.base = lds_base; self.st = stmp
        A('v_lshrrev_b32 v1, 2, v0')
        A('v_lshlrev_b32 v1, 13, v1')
        A('v_and_b32 v2, 3, v0')
        A('v_lshrrev_b32 v3, 5, v0')
        A('v_lshlrev_b32 v3, 1, v3')
        A('v_xor_b32 v2, v2, v3')
        A('v_lshlrev_b32 v2, 4, v2')
        A('v_add_u32 v1, v1, v2')
        A('s_lshl_b32 s%d, s%d, 8' % (stmp, sIDX))
        A('s_lshl_b32 s%d, s%d, 6' % (stmp + 1, sWAVE))
        A('s_add_u32 s%d, s%d, s%d' % (stmp, stmp, stmp + 1))
        A('v_add_u32 v%d, s%d, v1' % (vg, stmp))
        A('s_lshl_b32 s%d, s%d, 15' % (stmp + 2, sWAVE))
        A('s_add_u32 s%d, s%d, %d' % (stmp + 2, stmp + 2, lds_base))
        A('v_lshrrev_b32 v1, 4, v0')
        A('v_lshlrev_b32 v2, 9, v1')
        A('v_bfe_u32 v3, v0, 2, 2')
        A('v_lshl_add_u32 v2, v3, 6, v2')
        A('v_and_b32 v3, 3, v0')
        A('v_lshl_add_u32 v2, v3, 3, v2')
        A('v_and_b32 v1, 1, v1')
        A('v_lshl_add_u32 v2, v1, 5, v2')
        A('v_add_u32 v%d, s%d, v2' % (va, stmp + 2))
        A('v_xor_b32 v%d, 32, v%d' % (vb, va))
    def dma(self, srd_, i):
        A = self.A; st = self.st
        A('s_add_u32 m0, s%d, %d' % (st + 2, i * 1024))
        A('s_mov_b32 s%d, %d' % (st + 3, i * 16 * 8192))
        A('buffer_load_dwordx4 v%d, %s, s%d offen lds' % (self.vg, S(srd_), st + 3))
    def tr(self, kind, dst, ks):
        for tile, ad in ((0, self.va), (1, self.vb)):
            for u in range(2):
                r = dst + tile * 64 + ks * 4 + 2 * u
                self.A('ds_read_b64_tr_b16 %s[%d:%d], v%d offset:%d' % (kind, r, r + 1, ad, ks * 2048 + u * 256))
```

```python
import re

REG = re.compile(r'^(-|abs\()?([vas])(\d+)\)?$')
RNG = re.compile(r'^(-)?([vas])\[(\d+):(\d+)\]$')
TRANS = ('v_exp_', 'v_log_', 'v_rcp_', 'v_rsq_', 'v_sqrt_', 'v_sin_', 'v_cos_')

def regs(op):
    op = op.strip()
    m = REG.match(op)
    if m:
        return {(m.group(2), int(m.group(3)))}
    m = RNG.match(op)
    if m:
        return {(m.group(2), i) for i in range(int(m.group(3)), int(m.group(4)) + 1)}
    if op == 'vcc':
        return {('s', 106), ('s', 107)}
    if op in ('vcc_lo',):
        return {('s', 106)}
    if op in ('vcc_hi',):
        return {('s', 107)}
    if op == 'm0':
        return {('m', 0)}
    if op == 'exec':
        return {('x', 0)}
    return set()

class I:
    __slots__ = ('text', 'mn', 'ops', 'cls', 'wr', 'rd', 'passes', 'srcc', 'ab', 'dpp', 'ws', 'target', 'store_data', 'lds_dma', 'dst')
    def __init__(self, text):
        self.text = text
        t = text.split(';')[0].strip()
        p = t.split(None, 1)
        self.mn = mn = p[0]
        rest = p[1] if len(p) > 1 else ''
        ops = []; cur = ''; depth = 0
        for ch in rest:
            if ch in '[(':
                depth += 1
            if ch in '])':
                depth -= 1
            if ch == ',' and depth == 0:
                ops.append(cur.strip()); cur = ''
            else:
                cur += ch
        if cur.strip():
            ops.append(cur.strip())
        mods = ''
        if ops:
            last = ops[-1].split(None, 1)
            ops[-1] = last[0]
            mods = last[1] if len(last) > 1 else ''
        self.ops = ops
        self.wr = set(); self.rd = set(); self.passes = 0; self.srcc = set(); self.ab = set()
        self.dpp = False; self.ws = 1; self.target = None; self.store_data = set(); self.lds_dma = False
        self.dst = set()
        R = [regs(o) for o in ops]
        if mn.startswith('v_mfma') or mn.startswith('v_smfmac'):
            self.cls = 'mfma'
            self.passes = 8 if '32x32' in mn else 4
            self.wr = R[0]
            if mn.startswith('v_smfmac'):
                self.srcc = R[0]; self.ab = R[1] | R[2] | R[3]
            else:
                self.srcc = R[3]; self.ab = R[1] | R[2]
            self.rd = self.srcc | self.ab
        elif mn.startswith('v_'):
            self.cls = 'valu'
            self.dpp = ('dpp' in mn) or ('row_' in mods) or ('quad_perm' in mods)
            if mn.startswith('v_permlane') and 'swap' in mn:
                self.wr = R[0] | R[1]; self.rd = R[0] | R[1]
            elif mn in ('v_nop',):
                pass
            else:
                self.wr = R[0]
                k = 1
                if re.match(r'v_(add|sub|subrev|addc|subb)_co', mn):
                    self.wr |= R[1]; k = 2
                for r in R[k:]:
                    self.rd |= r
                if mn.startswith('v_fmac') or mn.startswith('v_pk_fmac') or self.dpp or mn.startswith('v_writelane') or mn.startswith('v_dot2c'):
                    self.rd |= R[0]
                if mn.startswith('v_cndmask') and len(ops) == 3:
                    self.rd |= regs('vcc')
        elif mn.startswith('buffer_') or mn.startswith('global_'):
            self.cls = 'vmem'
            allm = ' ' + mods + ' '
            if ' lds ' in allm:
                self.lds_dma = True
                for r in R:
                    self.rd |= r
            elif '_load' in mn:
                self.wr = R[0]; self.dst = R[0]
                for r in R[1:]:
                    self.rd |= r
            elif '_store' in mn or 'atomic' in mn:
                for r in R:
                    self.rd |= r
                if 'x4' in mn or 'x3' in mn:
                    self.store_data = R[0] if mn.startswith('buffer_') else R[1]
                if 'atomic' in mn and ' sc0 ' in allm:
                    self.wr = R[0]
            else:
                pass
        elif mn.startswith('ds_'):
            self.cls = 'ds'
            if 'read' in mn or 'permute' in mn or 'swizzle' in mn:
                self.wr = R[0]; self.dst = R[0]
                for r in R[1:]:
                    self.rd |= r
            else:
                for r in R:
                    self.rd |= r
        else:
            self.cls = 'salu'
            if mn == 's_nop':
                self.ws = int(ops[0], 0) + 1
            elif mn.startswith('s_cbranch') or mn == 's_branch':
                self.target = ops[0]
            elif mn.startswith('s_cmp') or mn.startswith('s_bitcmp') or mn in ('s_waitcnt', 's_barrier', 's_endpgm', 's_sleep', 's_setprio'):
                pass
            elif R:
                self.wr = R[0]

def vg(S):
    return {r for r in S if r[0] in 'va'}
def sg(S):
    return {r for r in S if r[0] == 's'}

def need(p, c):
    n = 0
    if p.cls == 'valu':
        w = vg(p.wr)
        if w:
            if c.cls == 'mfma' and (w & c.rd):
                n = max(n, 2)
            if c.cls == 'valu':
                if (c.mn.startswith('v_permlane') or c.dpp) and (w & c.rd):
                    n = max(n, 2)
                if (c.mn.startswith('v_readlane') or c.mn.startswith('v_readfirstlane')) and (w & c.rd):
                    n = max(n, 1)
                if (p.mn.startswith(TRANS) or p.mn.startswith('v_pk_')) and (w & c.rd):
                    n = max(n, 1)
            if p.mn.startswith(TRANS) and c.cls in ('vmem', 'ds') and (w & c.rd):
                n = max(n, 1)
        sw = sg(p.wr)
        if sw:
            if c.cls == 'valu' and (sw & c.rd):
                n = max(n, 4 if (c.mn.startswith('v_readlane') or c.mn.startswith('v_writelane')) else 2)
            if c.cls == 'vmem' and (sw & c.rd):
                n = max(n, 5)
            if c.cls == 'salu':
                rs = set()
                for o in c.ops:
                    rs |= regs(o)
                if sw & rs:
                    n = max(n, 1)
    elif p.cls == 'mfma':
        big = 12 if p.passes == 8 else 8
        if c.cls == 'mfma':
            if p.wr & c.ab:
                n = max(n, big)
            if p.wr & c.srcc:
                if not (p.wr == c.srcc and p.passes == c.passes):
                    n = max(n, 10 if p.passes == 8 else 6)
            elif p.wr & c.wr:
                n = max(n, 10 if p.passes == 8 else 6)
        elif c.cls == 'valu':
            if p.wr & (c.rd | c.wr):
                n = max(n, big)
            if p.srcc & c.wr:
                n = max(n, 7 if p.passes == 8 else 3)
        elif c.cls in ('vmem', 'ds'):
            if p.wr & (c.rd | c.wr):
                n = max(n, big)
    elif p.cls == 'vmem':
        if p.store_data and (p.store_data & c.wr):
            n = max(n, 2 if c.cls in ('valu', 'mfma') else 1)
    elif p.cls == 'salu':
        if ('m', 0) in p.wr and c.lds_dma:
            n = max(n, 1)
    return n

MAXD = 13

def fix(lines):
    items = []
    for l in lines:
        t = l.strip()
        if not t or t.startswith(';') or t.startswith('.'):
            items.append(('x', l))
        elif t.endswith(':'):
            items.append(('l', t[:-1]))
        else:
            items.append(('i', I(t)))
    pad = [0] * len(items)
    incoming = {}
    ninserted = 0
    for iteration in range(4):
        changed = False
        state = []
        newinc = {}
        for k, (kind, it) in enumerate(items):
            if kind == 'x':
                continue
            if kind == 'l':
                merged = {}
                for st in [state] + incoming.get(it, []) + newinc.get(it, []):
                    for (p, d) in st:
                        if id(p) not in merged or merged[id(p)][1] > d:
                            merged[id(p)] = (p, d)
                state = list(merged.values())
                continue
            req = 0
            for (p, d) in state:
                r = need(p, it) - d
                if r > req:
                    req = r
            if req > pad[k]:
                pad[k] = req; changed = True
            adv = pad[k] + it.ws
            state = [(p, d + adv) for (p, d) in state if d + adv < MAXD]
            if it.cls != 'salu' or ('m', 0) in it.wr:
                state.append((it, 0))
            if it.target is not None:
                newinc.setdefault(it.target, []).append(list(state))
            if it.mn in ('s_branch', 's_endpgm'):
                state = []
        incoming = newinc
        if not changed and iteration > 0:
            break
    out = []
    for k, (kind, it) in enumerate(items):
        if kind == 'x':
            out.append(it)
        elif kind == 'l':
            out.append(it + ':')
        else:
            n = pad[k]
            ninserted += n
            while n > 0:
                q = min(n, 16)
                out.append('  s_nop %d' % (q - 1))
                n -= q
            out.append('  ' + it.text)
    return out, ninserted
```

```python
import sys
from common import *
import aworker

def clear_flags(A):
    lab = A.label('L_noclr')
    A('s_cmp_lg_u32 s59, %d' % (5 * 32))
    A('s_cbranch_scc0 L_doclr')
    A('s_cmp_lg_u32 s59, %d' % (5 * 32 + 0x10000))
    A('s_cbranch_scc1 %s' % lab)
    A('L_doclr:')
    A('s_cmp_lg_u32 s%d, 3' % sWAVE)
    A('s_cbranch_scc1 %s' % lab)
    A('v_lshlrev_b32 v1, 7, v0')
    A('v_mov_b32 v2, 0')
    for i in range(NFLAGS // 64):
        A('s_mov_b32 s57, %d' % (FLG + i * 8192))
        A('buffer_store_dword v2, v1, %s, s57 offen sc1' % S(WS))
    A('s_waitcnt vmcnt(0)')
    A('v_mov_b32 v1, %d' % D_CLR)
    A('v_mov_b32 v2, 1')
    A('s_mov_b64 exec, 1')
    A('buffer_store_dword v2, v1, %s, 0 offen sc1' % S(DBG))
    A('s_mov_b64 exec, -1')
    A('%s:' % lab)

def build(opt):
    A = Asm()
    prologue(A, opt.get('fake'))
    clear_flags(A)
    A('s_cmp_eq_u32 s%d, 0' % sGRP)
    A('s_cbranch_scc1 L_chain')
    A('s_cmp_ge_u32 s%d, 5' % sGRP)
    A('s_cbranch_scc1 L_bworker')
    aworker.p_phase(A, opt)
    if 'o' in opt['roles']:
        aworker.o_phase(A, opt)
    A('s_endpgm')
    if 'c' in opt['roles']:
        import chain
        chain.chain(A, opt)
    else:
        A('L_chain:')
        A('s_endpgm')
    if 'b' in opt['roles']:
        import bworker
        bworker.bworker(A, opt)
    else:
        A('L_bworker:')
        A('s_endpgm')
    epilogue(A)
    lines, n = hazard.fix(A.lines)
    body = '\n'.join(lines) + '\n'
    return kernel_file([dict(name=NAME + '_kernel', body=body, grid=(256, 1, 1), block=(256, 1, 1), lds=163840, vgpr=512, accum=256)])

if __name__ == '__main__':
    out = sys.argv[1]
    opt = dict(roles=sys.argv[2])
    for kv in sys.argv[3:]:
        k, v_ = kv.split('=')
        opt[k] = v_
    open(out, 'w').write(build(opt))
```

```python
from common import *

def nseg_of_group(g):
    return len(range(g, 64, 3))

def p_phase(A, opt):
    A('L_aworker:')
    if 'p' not in opt['roles']:
        A('s_endpgm')
    A('s_and_b32 s60, s%d, 3' % sIDX)
    A('s_lshr_b32 s61, s%d, 2' % sIDX)
    A('s_sub_u32 s62, s%d, 1' % sGRP)
    A('s_lshl_b32 s62, s62, 3')
    A('s_add_u32 s%d, s61, s62' % sIDX)
    A('s_add_u32 s%d, s60, 1' % sGRP)
    ld = RowLoader(A, 104, 106, 32768, 64)
    mats = [(WK, 'a', 0), (WV, 'a', 128), (WQ, 'v', 128)]
    for c in range(8):
        ld.dma(mats[0][0], c)
    ld.init_tr()
    A('v_lshlrev_b32 v8, 4, v0')
    A('s_and_b32 s69, s%d, 1' % sWAVE)
    A('s_lshl_b32 s69, s69, 7')
    A('v_xor_b32 v110, s69, v8')
    for i in range(1, 8):
        A('v_xor_b32 v%d, %d, v110' % (110 + i, 16 * i))
    A('v_and_b32 v1, 15, v0')
    A('v_lshrrev_b32 v2, 4, v0')
    A('v_xor_b32 v2, v2, v1')
    A('v_lshlrev_b32 v2, 4, v2')
    A('v_lshl_add_u32 v4, v1, 10, v2')
    for q in range(1, 4):
        A('v_xor_b32 v%d, %d, v4' % (4 + q, 64 * q))
    A('s_lshl_b32 s68, s%d, 13' % sIDX)
    A('s_lshl_b32 s69, s%d, 10' % sWAVE)
    A('s_add_u32 s68, s68, s69')
    A('v_add_u32 v9, s68, v8')
    A('v_add_u32 v10, s69, v9')
    A('s_lshl_b32 s68, s60, 5')
    A('s_add_u32 s68, s68, s%d' % sIDX)
    A('s_lshl_b32 s68, s68, 7')
    A('v_mov_b32 v11, s68')
    A('s_lshl_b32 s70, s%d, 13' % sWAVE)
    def xdma1(sseg, sbuf, i):
        return ['s_add_u32 m0, s%d, %d' % (sbuf, i * 1024),
                's_add_u32 s69, s%d, %d' % (sseg, i * 1024),
                'buffer_load_dwordx4 v%d, %s, s69 offen lds' % (110 + i, S(XA))]
    A('s_lshl_b32 s71, s60, 15')
    A('s_add_u32 s71, s71, s70')
    for i in range(8):
        for x in xdma1(71, 70, i):
            A(x)
    for n in range(24):
        m, c = n // 8, n % 8
        young = 4 * (min(23, max(7, n + 6)) - n) + (8 if n < 8 else 0)
        A('s_waitcnt vmcnt(%d) lgkmcnt(0)' % young)
        A('s_barrier')
        if 1 <= n <= 16:
            ld.dma(mats[(n + 7) // 8][0], (n - 1) % 8)
        for tile in range(2):
            ld.tr(c, tile, mats[m][1], mats[m][2] + tile * 64 + 8 * c)
    A('s_waitcnt lgkmcnt(0)')
    wait_dbg_word(A, D_CLR, 1, 1, 2)
    rt_stamp(A, opt, 1)
    if opt.get('loadonly'):
        A('s_endpgm')
    A('s_mov_b32 s72, s60')
    A('s_mov_b32 s73, 0')
    A('s_mov_b32 s74, 32768')
    XF = 16
    ACC = 32
    PK = 80
    def acc(m, i, j): return ACC + m * 16 + (i * 2 + j) * 4
    A('s_mov_b32 s77, 0x40000000')
    def stores():
        r = []
        for m, base in ((0, KX), (2, VX), (1, QX)):
            for j in range(2):
                p = PK + (0 if m == 0 else (8 if m == 2 else 16)) + 4 * j
                r.append(['s_add_u32 s78, s77, %d' % (base + j * (1024 if m == 2 else 4096)),
                          'buffer_store_dwordx4 v[%d:%d], v%d, %s, s78 offen sc1' % (p, p + 3, 10 if m == 2 else 9, S(WS))])
        return r
    def cvts(m):
        r = []
        for j in range(2):
            p = PK + (0 if m == 0 else (8 if m == 2 else 16)) + 4 * j
            for i in range(2):
                d = acc(m, i, j)
                o0, o1 = (2 * i, 2 * i + 1) if m == 2 else (i, i + 2)
                r.append('v_cvt_pk_bf16_f32 v%d, v%d, v%d' % (p + o0, d, d + 1))
                r.append('v_cvt_pk_bf16_f32 v%d, v%d, v%d' % (p + o1, d + 2, d + 3))
        return r
    def pub():
        A('s_barrier')
        A('v_mov_b32 v12, s73')
        A('s_mov_b64 exec, 1')
        A('buffer_store_dword v12, v11, %s, 0 offen sc1' % S(WS))
        A('s_mov_b64 exec, -1')
    A('L_p_loop:')
    A('s_waitcnt vmcnt(1)')
    A('s_barrier')
    A('s_add_u32 s75, s72, 4')
    A('s_min_u32 s75, s75, 63')
    A('s_lshl_b32 s71, s75, 15')
    A('s_add_u32 s71, s71, s70')
    A('s_add_u32 s76, s74, s70')
    def rd(ks):
        b = XF + (ks & 1) * 8
        return ['ds_read_b128 v[%d:%d], v%d offset:%d' % (b + 4 * tt, b + 4 * tt + 3, 4 + ks % 4, tt * 16384 + (ks // 4) * 256) for tt in range(2)]
    for x in rd(0):
        A(x)
    st = stores()
    for ks in range(16):
        b = XF + (ks & 1) * 8
        M = []
        for m, (kind, base) in enumerate((('a', 0), ('v', 128))):
            for et in range(2):
                for tt in range(2):
                    d = acc(m, et, tt); wr = base + et * 64 + ks * 4
                    M.append('v_mfma_f32_16x16x32_bf16 v[%d:%d], %s[%d:%d], v[%d:%d], %s' % (d, d + 3, kind, wr, wr + 3, b + 4 * tt, b + 4 * tt + 3, '0' if ks == 0 else 'v[%d:%d]' % (d, d + 3)))
        for tt in range(2):
            for et in range(2):
                d = acc(2, tt, et); wr = 128 + et * 64 + ks * 4
                M.append('v_mfma_f32_16x16x32_bf16 v[%d:%d], v[%d:%d], a[%d:%d], %s' % (d, d + 3, b + 4 * tt, b + 4 * tt + 3, wr, wr + 3, '0' if ks == 0 else 'v[%d:%d]' % (d, d + 3)))
        F = [[] for _ in range(12)]
        if ks < 15:
            r = rd(ks + 1); F[0] = [r[0]]; F[1] = [r[1]]
        if ks < 3:
            F[3] = st[2 * ks]; F[7] = st[2 * ks + 1]
        elif ks < 11:
            F[4] = xdma1(71, 76, ks - 3)
        if ks == 15:
            c0, c1 = cvts(0), cvts(1)
            for q in range(4):
                F[5 + q] = c0[2 * q:2 * q + 2]
            for q in range(3):
                F[9 + q] = c1[2 * q:2 * q + 2]
            F[11] = F[11] + c1[6:] + cvts(2)
        A('s_waitcnt lgkmcnt(0)')
        for mi, f in zip(M, F):
            A(mi)
            for x in f:
                A(x)
        if ks == 13:
            A('s_waitcnt vmcnt(8)')
            pub()
    A('s_lshl_b32 s77, s72, 18')
    A('s_add_u32 s73, s73, 1')
    if opt.get('stamp'):
        A('s_add_u32 s89, s73, 8')
        rt_stamp(A, opt, 's89')
    for q in range(4):
        A('v_xor_b32 v%d, 0x8000, v%d' % (4 + q, 4 + q))
    A('s_xor_b32 s74, s74, 32768')
    A('s_add_u32 s72, s72, 4')
    A('s_cmp_lt_u32 s72, 64')
    A('s_cbranch_scc1 L_p_loop')
    for x in st:
        A(x[0]); A(x[1])
    A('s_waitcnt vmcnt(0)')
    pub()


def o_phase(A, opt):
    import chain
    WOR = chain.WOR
    ST, KE, OE, FB = 0, 8192, 12288, 32768
    CA = chain.CA
    vIdx, vSel = 4, 8
    aQ, aL, aF, aKEw, aKEr, aOEw, aG, aOPst, aOPld, aOut, aFl, aFlAll = 5, 6, 7, 12, 13, 14, 15, 16, 17, 18, 19, 20
    vNeg = 21
    R0, R1, R2, T = 24, 56, 88, 120
    mOdd, mC = 96, 80
    sK, sSeg, sFb, sM0 = 70, 71, 72, 73
    A('L_o_start:')
    rt_stamp(A, opt, 2)
    A('v_and_b32 v1, 15, v0')
    A('v_lshrrev_b32 v2, 4, v0')
    A('v_lshlrev_b32 v3, 12, v2')
    A('v_lshl_add_u32 v3, v1, 3, v3')
    A('s_lshl_b32 s61, s%d, 17' % sIDX)
    A('s_lshl_b32 s62, s%d, 8' % sWAVE)
    A('s_add_u32 s61, s61, s62')
    A('v_add_u32 v22, s61, v3')
    for blk in range(8):
        for u in range(4):
            chain.wo_load(A, 22, blk, u, dense=True)
    A('v_lshlrev_b32 v%d, 4, v0' % aL)
    A('s_lshl_b32 s61, s%d, 11' % sWAVE)
    A('v_add_u32 v%d, s61, v%d' % (aQ, aL))
    A('s_add_u32 s%d, s61, %d' % (sM0, FB))
    A('s_lshl_b32 s62, s%d, 13' % sIDX)
    A('v_add_u32 v%d, s62, v%d' % (aG, aQ))
    A('v_add_u32 v%d, %d, v%d' % (aF, FB, aL))
    A('v_bfe_u32 v3, v0, 1, 1')
    A('v_mov_b32 v%d, 0x4444' % vIdx)
    A('v_mov_b32 v26, 0xeeee')
    A('v_cmp_eq_u32 vcc, 1, v3')
    A('v_cndmask_b32 v%d, v%d, v26, vcc' % (vIdx, vIdx))
    A('v_and_b32 v29, 1, v0')
    A('v_mov_b32 v27, 0x3f80')
    A('v_mov_b32 v28, 0x3f800000')
    A('v_cmp_eq_u32 vcc, 1, v29')
    A('v_cndmask_b32 v27, v27, v28, vcc')
    A('v_lshrrev_b32 v26, 1, v1')
    for u in range(4):
        A('v_cmp_eq_u32 vcc, %d, v26' % u)
        A('v_cndmask_b32 v%d, 0, v27, vcc' % (vSel + u))
    A('v_lshlrev_b32 v27, 4, v1')
    A('v_lshl_add_u32 v27, v2, 2, v27')
    A('s_lshl_b32 s62, s%d, 9' % sWAVE)
    A('v_add_u32 v%d, s62, v27' % aKEw)
    A('v_bfe_u32 v27, v0, 3, 1')
    A('v_lshlrev_b32 v27, 8, v27')
    A('v_lshl_add_u32 v27, v2, 6, v27')
    A('v_bfe_u32 v28, v0, 2, 1')
    A('v_lshl_add_u32 v27, v28, 4, v27')
    A('v_lshl_add_u32 v%d, v3, 3, v27' % aKEr)
    A('v_lshlrev_b32 v27, 17, v2')
    A('v_lshl_add_u32 v27, v1, 4, v27')
    A('s_lshl_b32 s62, s%d, 10' % sIDX)
    A('s_lshl_b32 s63, s%d, 8' % sWAVE)
    A('s_add_u32 s62, s62, s63')
    A('v_add_u32 v%d, s62, v27' % aOPst)
    A('v_lshlrev_b32 v27, 10, v2')
    A('v_lshl_add_u32 v27, v1, 4, v27')
    A('s_lshl_b32 s62, s%d, 15' % sIDX)
    A('s_add_u32 s62, s62, s63')
    A('v_add_u32 v%d, s62, v27' % aOPld)
    A('v_lshlrev_b32 v27, 7, v2')
    A('v_lshl_add_u32 v27, v1, 3, v27')
    A('s_lshl_b32 s62, s%d, 11' % sIDX)
    A('s_add_u32 s62, s62, s63')
    A('v_add_u32 v%d, s62, v27' % aOut)
    A('s_lshl_b32 s62, s60, 12')
    A('s_add_u32 s62, s62, %d' % F_OP)
    A('v_and_b32 v27, 31, v0')
    A('v_lshlrev_b32 v27, 7, v27')
    A('v_add_u32 v%d, s62, v27' % aFlAll)
    A('s_lshl_b32 s63, s%d, 7' % sIDX)
    A('s_add_u32 s62, s62, s63')
    A('v_mov_b32 v%d, s62' % aFl)
    A('v_mov_b32 v%d, 0x%x' % (vNeg, f2u(-1e30)))
    A('s_mov_b32 s%d, 0xffff0000' % mOdd); A('s_mov_b32 s%d, 0xffff0000' % (mOdd + 1))
    A('v_lshlrev_b32 v27, 2, v2')
    for rho in range(4):
        A('v_add_u32 v28, %d, v27' % rho)
        A('v_cmp_le_u32 s[%d:%d], v28, v1' % (mC + 2 * rho, mC + 2 * rho + 1))
    A('s_mov_b32 s79, 0x%x' % f2u(CA))
    A('s_mov_b32 s61, 0x05040100')
    A('s_mov_b32 s62, 0x07060302')
    for blk in range(8):
        A('s_waitcnt vmcnt(%d)' % (56 - 8 * blk))
        chain.wo_fix(A, blk, 48, 61, 62)
    wait_dbg_word(A, D_ARR, 32, 1, 2, mask=0xffff)
    def prefetch(sseg):
        A('s_lshl_b32 s61, s%d, 18' % sseg)
        for i, base in enumerate((QX, KX, VX)):
            A('s_add_u32 s62, s61, %d' % base)
            A('s_add_u32 m0, s%d, %d' % (sM0, i * 8192))
            A('buffer_load_dwordx4 v%d, %s, s62 offen sc1 lds' % (aG, S(WS)))
            A('buffer_load_dwordx4 v%d, %s, s62 offen offset:1024 sc1 lds' % (aG, S(WS)))
        A('s_xor_b32 s%d, s%d, %d' % (sM0, sM0, 32768 ^ 65536))
    def pub_flag():
        A('v_mov_b32 v1, s%d' % sK)
        A('s_mov_b64 exec, 1')
        A('buffer_store_dword v1, v%d, %s, 0 offen sc1' % (aFl, S(WS)))
        A('s_mov_b64 exec, -1')
    def red_issue():
        lp = A.label('L_o_fw')
        A('%s:' % lp)
        spin_check(A)
        A('buffer_load_dword v1, v%d, %s, 0 offen sc1' % (aFlAll, S(WS)))
        A('s_waitcnt vmcnt(0)')
        A('v_cmp_gt_u32 vcc, s%d, v1' % sK)
        A('s_cbranch_vccnz %s' % lp)
        A('s_sub_u32 s61, s%d, 4' % sSeg)
        A('s_lshl_b32 s61, s61, 20')
        A('s_add_u32 s61, s61, %d' % OP)
        for i in range(8):
            A('buffer_load_dwordx4 v[%d:%d], v%d, %s, s61 offen sc1' % (R2 + 4 * i, R2 + 4 * i + 3, aOPld, S(WS)))
            if i < 7:
                A('s_add_u32 s61, s61, 4096')
    def red_finish(D):
        for i in range(8):
            A('v_mfma_f32_16x16x32_bf16 v[%d:%d], v[%d:%d], v[%d:%d], %s' % (D, D + 3, vSel, vSel + 3, R2 + 4 * i, R2 + 4 * i + 3, '0' if i == 0 else 'v[%d:%d]' % (D, D + 3)))
        A('s_sub_u32 s61, s%d, 4' % sSeg)
        A('s_lshl_b32 s61, s61, 16')
        A('v_cvt_pk_bf16_f32 v%d, v%d, v%d' % (D, D, D + 1))
        A('v_cvt_pk_bf16_f32 v%d, v%d, v%d' % (D + 1, D + 2, D + 3))
        A('s_mov_b32 exec_hi, 0')
        A('buffer_store_dwordx2 v[%d:%d], v%d, %s, s61 offen' % (D, D + 1, aOut, S(OUT)))
        A('s_mov_b64 exec, -1')
    A('s_barrier')
    A('s_mov_b32 s%d, 0' % sK)
    A('s_mov_b32 s%d, s60' % sSeg)
    prefetch(sSeg)
    rt_stamp(A, opt, 3)
    A('L_o_loop:')
    KA, VA = R2, R2 + 8
    for i in range(16):
        A('v_mov_b32 v%d, 0' % (KA + i))
    A('s_lshl_b32 s63, s%d, 13' % sSeg)
    A('s_add_u32 s63, s63, %d' % MH)
    A('L_o_pa:')
    spin_check(A)
    A('buffer_load_dwordx4 v[%d:%d], v%d, %s, s63 offen sc1' % (T, T + 3, aQ, S(WS)))
    A('buffer_load_dwordx4 v[%d:%d], v%d, %s, s63 offen offset:1024 sc1' % (T + 4, T + 7, aQ, S(WS)))
    A('s_waitcnt vmcnt(0)')
    A('v_max3_u32 v1, v%d, v%d, v%d' % (T, T + 1, T + 2))
    A('v_max3_u32 v2, v%d, v%d, v%d' % (T + 3, T + 4, T + 5))
    A('v_max3_u32 v1, v1, v%d, v%d' % (T + 6, T + 7))
    A('v_max_u32 v1, v1, v2')
    A('v_cmp_eq_u32 vcc, -1, v1')
    A('s_cbranch_vccz L_o_got')
    A('s_sleep 4')
    A('s_branch L_o_pa')
    A('L_o_got:')
    A('ds_write_b128 v%d, v[%d:%d] offset:%d' % (aQ, T, T + 3, ST))
    A('ds_write_b128 v%d, v[%d:%d] offset:%d' % (aQ, T + 4, T + 7, ST + 1024))
    A('s_waitcnt lgkmcnt(0)')
    A('s_barrier')
    pub_flag()
    AF = R0
    for t in range(8):
        A('ds_read_b128 v[%d:%d], v%d offset:%d' % (AF + 4 * t, AF + 4 * t + 3, aL, ST + 1024 * t))
    QF = R1
    for m, acc in ((0, KA), (1, VA)):
        for t in range(8):
            if m == 0:
                A('s_waitcnt lgkmcnt(%d)' % (7 - t))
            else:
                A('ds_read_b128 v[%d:%d], v%d offset:%d' % (QF + 4 * t, QF + 4 * t + 3, aF, 1024 * t))
            for tile in range(2):
                b = m * 128 + tile * 64 + t * 8
                A('v_smfmac_f32_16x16x64_bf16 v[%d:%d], v[%d:%d], a[%d:%d], v%d' % (acc + 4 * tile, acc + 4 * tile + 3, AF + 4 * t, AF + 4 * t + 3, b, b + 7, vIdx))
    for tile in range(2):
        d = KA + 4 * tile
        A('v_pk_add_f32 v[%d:%d], v[%d:%d], v[%d:%d]' % (d, d + 1, d, d + 1, d + 2, d + 3))
    for tile in range(2):
        d = KA + 4 * tile
        A('v_cvt_pk_bf16_f32 v%d, v%d, v%d' % (d, d, d + 1))
    A('ds_write_b32 v%d, v%d offset:%d' % (aKEw, KA, KE))
    A('ds_write_b32 v%d, v%d offset:%d' % (aKEw, KA + 4, KE + 256))
    for i in range(8):
        A('ds_read_b128 v[%d:%d], v%d offset:%d' % (R0 + 4 * i, R0 + 4 * i + 3, aF, 8192 + 1024 * i))
    A('s_waitcnt lgkmcnt(0)')
    A('s_barrier')
    SM = [R2 + 16, R2 + 20]; SX0 = [R2 + 24, R2 + 28]; SX1 = R2
    def smma(d, ab, qt):
        for ks in range(4):
            A('v_mfma_f32_16x16x32_bf16 v[%d:%d], v[%d:%d], v[%d:%d], %s' % (d, d + 3, ab + 4 * ks, ab + 4 * ks + 3, QF + 16 * qt + 4 * ks, QF + 16 * qt + 4 * ks + 3, '0' if ks == 0 else 'v[%d:%d]' % (d, d + 3)))
    smma(SX1, R0 + 16, 1)
    for ks in range(4):
        for u in range(2):
            A('ds_read_b64_tr_b16 v[%d:%d], v%d offset:%d' % (R0 + 16 + 4 * ks + 2 * u, R0 + 16 + 4 * ks + 2 * u + 1, aKEr, KE + ks * 512 + u * 32))
    smma(SX0[0], R0, 0)
    smma(SX0[1], R0, 1)
    for tile in range(2):
        d = VA + 4 * tile
        A('v_pk_add_f32 v[%d:%d], v[%d:%d], v[%d:%d]' % (d, d + 1, d, d + 1, d + 2, d + 3))
        A('v_cvt_pk_bf16_f32 v%d, v%d, v%d' % (d + 2, d, d + 1))
        A('v_cndmask_b32 v%d, v%d, 0, s[%d:%d]' % (d, d + 2, mOdd, mOdd + 1))
        A('v_cndmask_b32 v%d, 0, v%d, s[%d:%d]' % (d + 1, d + 2, mOdd, mOdd + 1))
    A('s_waitcnt lgkmcnt(0)')
    smma(SM[0], R0 + 16, 0)
    smma(SM[1], R0 + 16, 1)
    VXF = R0
    A('s_lshl_b32 s61, s%d, 11' % sWAVE)
    A('v_add_u32 v3, s61, v%d' % aF)
    A('ds_read_b128 v[%d:%d], v3 offset:%d' % (VXF, VXF + 3, 16384))
    A('ds_read_b128 v[%d:%d], v3 offset:%d' % (VXF + 4, VXF + 7, 16384 + 1024))
    A('v_xor_b32 v%d, %d, v%d' % (aF, 32768 ^ 65536, aF))
    for d in (SX0[0], SX1):
        for rho in range(4):
            A('v_cndmask_b32 v%d, v%d, v%d, s[%d:%d]' % (d + rho, vNeg, d + rho, mC + 2 * rho, mC + 2 * rho + 1))
    PX = [R1, R1 + 4]; PM = [R1 + 8, R1 + 10]; RL = [R1 + 12, R1 + 13]
    OT = R0 + 8
    for qt in range(2):
        xs = [SX0[qt] + i for i in range(4)] + ([SX1 + i for i in range(4)] if qt else [])
        ms = [SM[qt] + i for i in range(4)]
        al = ms + xs
        A('v_max3_f32 v1, v%d, v%d, v%d' % tuple(al[:3]))
        k = 3
        while k + 1 < len(al):
            A('v_max3_f32 v1, v1, v%d, v%d' % (al[k], al[k + 1])); k += 2
        if k < len(al):
            A('v_max_f32 v1, v1, v%d' % al[k])
        chain.xred(A, 'v_max_f32', 1, 2)
        A('v_mul_f32 v1, s79, v1')
        for r in al:
            A('v_fma_f32 v%d, v%d, s79, -v1' % (r, r))
        for r in al:
            A('v_exp_f32 v%d, v%d' % (r, r))
        for i in range(4):
            if 2 * i < len(xs):
                A('v_cvt_pk_bf16_f32 v%d, v%d, v%d' % (PX[qt] + i, xs[2 * i], xs[2 * i + 1]))
            else:
                A('v_mov_b32 v%d, 0' % (PX[qt] + i))
        for i in range(2):
            A('v_cvt_pk_bf16_f32 v%d, v%d, v%d' % (PM[qt] + i, ms[2 * i], ms[2 * i + 1]))
        if qt == 0:
            A('s_waitcnt lgkmcnt(0)')
        for et in range(2):
            d = OT + (et * 2 + qt) * 4
            A('v_mfma_f32_16x16x32_bf16 v[%d:%d], v[%d:%d], v[%d:%d], 0' % (d, d + 3, VXF + 4 * et, VXF + 4 * et + 3, PX[qt], PX[qt] + 3))
        for et in range(2):
            d = OT + (et * 2 + qt) * 4
            A('v_mfma_f32_16x16x16_bf16 v[%d:%d], v[%d:%d], v[%d:%d], v[%d:%d]' % (d, d + 3, VA + 4 * et, VA + 4 * et + 1, PM[qt], PM[qt] + 1, d, d + 3))
        A('v_add_f32 v1, v%d, v%d' % (ms[0], ms[1]))
        A('v_add_f32 v2, v%d, v%d' % (ms[2], ms[3]))
        A('v_add_f32 v1, v1, v2')
        A('v_mul_f32 v1, 0.5, v1')
        for r in xs:
            A('v_add_f32 v1, v1, v%d' % r)
        chain.xred(A, 'v_add_f32', 1, 2)
        A('v_rcp_f32 v%d, v1' % RL[qt])
    for qt in range(2):
        for et in range(2):
            d = OT + (et * 2 + qt) * 4
            for i in range(4):
                A('v_mul_f32 v%d, v%d, v%d' % (d + i, d + i, RL[qt]))
            A('v_cvt_pk_bf16_f32 v%d, v%d, v%d' % (T + 4 * qt + 2 * et, d, d + 1))
            A('v_cvt_pk_bf16_f32 v%d, v%d, v%d' % (T + 4 * qt + 2 * et + 1, d + 2, d + 3))
        A('ds_write_b128 v%d, v[%d:%d] offset:%d' % (aQ, T + 4 * qt, T + 4 * qt + 3, OE + 1024 * qt))
    A('s_waitcnt lgkmcnt(0)')
    A('s_barrier')
    OA = R1
    for tt in range(2):
        for ks in range(4):
            b = OA + 16 * tt + 4 * ks
            A('ds_read_b128 v[%d:%d], v%d offset:%d' % (b, b + 3, aL, OE + 2048 * ks + 1024 * tt))
    A('s_cmp_eq_u32 s%d, 0' % sK)
    A('s_cbranch_scc1 L_o_nored')
    red_issue()
    A('L_o_nored:')
    A('s_add_u32 s63, s%d, 4' % sSeg)
    A('s_min_u32 s63, s63, 63')
    prefetch(63)
    A('s_waitcnt lgkmcnt(0)')
    A('s_lshl_b32 s63, s%d, 20' % sSeg)
    A('s_add_u32 s63, s63, %d' % OP)
    OC = R0
    for tt in range(2):
        for ks in range(4):
            for j in range(8):
                d = OC + 4 * j; wr = WOR(j, ks // 2) + 4 * (ks % 2); b = OA + 16 * tt + 4 * ks
                A('v_mfma_f32_16x16x32_bf16 v[%d:%d], v[%d:%d], v[%d:%d], %s' % (d, d + 3, b, b + 3, wr, wr + 3, '0' if ks == 0 else 'v[%d:%d]' % (d, d + 3)))
        for rho in range(4):
            G = T + 4 * (rho & 1)
            for u in range(4):
                A('v_cvt_pk_bf16_f32 v%d, v%d, v%d' % (G + u, OC + 8 * u + rho, OC + 8 * u + 4 + rho))
            A('s_add_u32 s61, s63, %d' % ((16 * tt + rho) * 32768))
            A('buffer_store_dwordx4 v[%d:%d], v%d, %s, s61 offen sc1' % (G, G + 3, aOPst, S(WS)))
    A('s_cmp_eq_u32 s%d, 0' % sK)
    A('s_cbranch_scc1 L_o_nored2')
    A('s_waitcnt vmcnt(14)')
    red_finish(R1)
    A('L_o_nored2:')
    if opt.get('stamp'):
        A('s_add_u32 s89, s70, 32')
        rt_stamp(A, opt, 's89')
    A('s_add_u32 s%d, s%d, 1' % (sK, sK))
    A('s_add_u32 s%d, s%d, 4' % (sSeg, sSeg))
    A('s_cmp_lt_u32 s%d, 64' % sSeg)
    A('s_cbranch_scc1 L_o_loop')
    A('s_waitcnt vmcnt(0)')
    A('s_barrier')
    pub_flag()
    red_issue()
    A('s_waitcnt vmcnt(0)')
    red_finish(R1)
    rt_stamp(A, opt, 4)
```

```python
from common import *

CB = 0.25 * LOG2E
NT = 6

def bworker(A, opt):
    opt = dict(opt, _b=1)
    A('L_bworker:')
    sJ, sU = 60, 70
    mHi16 = 96
    A('s_sub_u32 s%d, s%d, 5' % (sJ, sGRP))
    A('s_lshl_b32 s%d, s%d, 2' % (sU, sJ))
    A('s_add_u32 s%d, s%d, s%d' % (sU, sU, sWAVE))
    A('s_mov_b32 s%d, 0xffff0000' % mHi16); A('s_mov_b32 s%d, 0xffff0000' % (mHi16 + 1))
    MS = 16384 + 128
    A('v_lshrrev_b32 v1, 1, v0')
    A('v_mul_u32_u24 v1, 3072, v1')
    A('v_and_b32 v2, 1, v0')
    A('v_lshl_add_u32 v1, v2, 4, v1')
    A('s_lshl_b32 s61, s%d, 5' % sIDX)
    A('s_mul_i32 s62, s%d, %d' % (sWAVE, 128 * 3072))
    A('s_add_u32 s61, s61, s62')
    A('v_add_u32 v1, s61, v1')
    A('s_lshl_b32 s63, s%d, 12' % sWAVE)
    for mat in range(3):
        for i in range(4):
            A('s_add_u32 m0, s63, %d' % (mat * MS + i * 1024))
            A('s_mov_b32 s61, %d' % (mat * 1024 + i * 32 * 3072))
            A('buffer_load_dwordx4 v1, %s, s61 offen lds' % S(WQKV))
    WOI = 131072
    A('v_lshrrev_b32 v1, 2, v0')
    A('v_lshlrev_b32 v1, 10, v1')
    A('v_and_b32 v2, 3, v0')
    A('v_lshl_add_u32 v1, v2, 4, v1')
    A('s_and_b32 s61, s%d, 15' % sIDX)
    A('s_lshl_b32 s61, s61, 6')
    A('s_lshl_b32 s62, s%d, 17' % sWAVE)
    A('s_add_u32 s61, s61, s62')
    A('v_add_u32 v1, s61, v1')
    A('s_lshl_b32 s63, s%d, 13' % sWAVE)
    for i in range(8):
        A('s_add_u32 m0, s63, %d' % (WOI + i * 1024))
        A('s_mov_b32 s61, %d' % (i * 16384))
        A('buffer_load_dwordx4 v1, %s, s61 offen lds' % S(BWO))
    aL, aX, aTq, aTv, aKV, aVr, aFl, aBO, aOut, aTo = 4, 5, 6, 7, 8, 9, 10, 11, 12, 13
    vOne = 14
    A('v_lshlrev_b32 v%d, 4, v0' % aL)
    A('v_and_b32 v1, 31, v0')
    A('v_lshrrev_b32 v2, 5, v0')
    A('v_lshlrev_b32 v3, 10, v1')
    A('v_lshl_add_u32 v%d, v2, 4, v3' % aX)
    A('v_bfe_u32 v3, v0, 2, 2')
    A('v_lshl_add_u32 v3, v2, 3, v3')
    A('v_lshlrev_b32 v3, 5, v3')
    A('v_and_b32 v15, 3, v0')
    A('v_lshl_add_u32 v3, v15, 3, v3')
    A('v_add_u32 v%d, %d, v3' % (aTv, 2 * MS))
    A('v_bfe_u32 v16, v0, 4, 1')
    A('v_mul_u32_u24 v17, %d, v16' % MS)
    A('v_add_u32 v%d, v17, v3' % aTq)
    A('v_bfe_u32 v3, v0, 2, 2')
    A('v_lshl_add_u32 v3, v2, 2, v3')
    A('v_lshlrev_b32 v3, 6, v3')
    A('v_and_b32 v17, 1, v0')
    A('v_lshl_add_u32 v3, v17, 5, v3')
    A('v_lshl_add_u32 v3, v16, 4, v3')
    A('v_bfe_u32 v17, v0, 1, 1')
    A('v_lshl_add_u32 v3, v17, 3, v3')
    A('v_add_u32 v%d, %d, v3' % (aTo, WOI))
    A('s_lshl_b32 s61, s%d, 16' % sIDX)
    A('v_add_u32 v%d, s61, v%d' % (aKV, aL))
    A('v_and_b32 v3, 15, v0')
    A('v_lshl_add_u32 v3, v2, 5, v3')
    A('v_lshlrev_b32 v3, 4, v3')
    A('v_add_u32 v%d, 65536, v3' % aVr)
    A('s_lshl_b32 s61, s%d, 10' % sIDX)
    A('v_add_u32 v%d, s61, v%d' % (aBO, aL))
    A('v_lshlrev_b32 v3, 11, v1')
    A('v_lshl_add_u32 v3, v2, 5, v3')
    A('s_and_b32 s61, s%d, 15' % sIDX)
    A('s_lshl_b32 s61, s61, 6')
    A('s_add_u32 s61, s61, 1024')
    A('v_add_u32 v%d, s61, v3' % aOut)
    A('v_mov_b32 v%d, 0x3f803f80' % vOne)
    A('s_mov_b32 s79, 0x%x' % f2u(CB))
    A('s_waitcnt vmcnt(0)')
    A('s_barrier')
    for ks in range(32):
        for u in range(2):
            A('ds_read_b64_tr_b16 a[%d:%d], v%d offset:%d' % (4 * ks + 2 * u, 4 * ks + 2 * u + 1, aTq, ks * 512 + u * 128))
            A('ds_read_b64_tr_b16 a[%d:%d], v%d offset:%d' % (128 + 4 * ks + 2 * u, 128 + 4 * ks + 2 * u + 1, aTv, ks * 512 + u * 128))
        if ks % 2 == 1:
            A('s_waitcnt lgkmcnt(0)')
    rt_stamp(A, opt, 1)
    QF = 24
    DQ, DV = 64, 80
    PKK, PKV = 48, 52
    XF = 128
    A('s_mov_b32 s71, 0')
    A('s_mov_b32 s72, s%d' % sU)
    for i in range(NT):
        A('s_min_u32 s73, s72, 63')
        A('s_lshl_b32 s61, s73, 15')
        for ks in range(32):
            A('buffer_load_dwordx4 v[%d:%d], v%d, %s, s61 offen offset:%d' % (XF + 4 * ks, XF + 4 * ks + 3, aX, S(XB), ks * 32))
        for ks in range(32):
            A('s_waitcnt vmcnt(%d)' % (31 - ks))
            x = 'v[%d:%d]' % (XF + 4 * ks, XF + 4 * ks + 3)
            A('v_mfma_f32_32x32x16_bf16 v[%d:%d], a[%d:%d], %s, %s' % (DQ, DQ + 15, 4 * ks, 4 * ks + 3, x, '0' if ks == 0 else 'v[%d:%d]' % (DQ, DQ + 15)))
            A('v_mfma_f32_32x32x16_bf16 v[%d:%d], %s, a[%d:%d], %s' % (DV, DV + 15, x, 128 + 4 * ks, 128 + 4 * ks + 3, '0' if ks == 0 else 'v[%d:%d]' % (DV, DV + 15)))
        for r in range(8):
            A('v_mul_f32 v%d, s79, v%d' % (DQ + r, DQ + r))
        for r in range(4):
            A('v_cvt_pk_bf16_f32 v%d, v%d, v%d' % (QF + 4 * i + r, DQ + 2 * r, DQ + 2 * r + 1))
            A('v_cvt_pk_bf16_f32 v%d, v%d, v%d' % (PKK + r, DQ + 8 + 2 * r, DQ + 9 + 2 * r))
        for r in range(8):
            A('v_cvt_pk_bf16_f32 v%d, v%d, v%d' % (PKV + r, DV + 2 * r, DV + 2 * r + 1))
        for r in range(4):
            A('v_cndmask_b32 v%d, v%d, v%d, s[%d:%d]' % (PKV + r, PKV + r, PKV + 4 + r, mHi16, mHi16 + 1))
        A('s_lshl_b32 s61, s73, 10')
        A('s_add_u32 s62, s61, %d' % BK)
        A('buffer_store_dwordx4 v[%d:%d], v%d, %s, s62 offen sc1' % (PKK, PKK + 3, aKV, S(WS)))
        A('s_add_u32 s62, s61, %d' % BV)
        A('buffer_store_dwordx4 v[%d:%d], v%d, %s, s62 offen sc1' % (PKV, PKV + 3, aKV, S(WS)))
        A('s_add_u32 s72, s72, 12')
    rt_stamp(A, opt, 2)
    wait_dbg_word(A, D_CLR, 1, 1, 2)
    A('s_barrier')
    A('s_lshl_b32 s61, s%d, 9' % sIDX)
    A('s_add_u32 s61, s61, %d' % F_BKV)
    A('s_lshl_b32 s62, s%d, 7' % sJ)
    A('s_add_u32 s62, s62, s61')
    A('v_mov_b32 v1, s62')
    A('v_mov_b32 v2, 1')
    A('s_mov_b64 exec, 1')
    A('buffer_store_dword v2, v1, %s, 0 offen sc1' % S(WS))
    A('s_mov_b64 exec, -1')
    for ks in range(32):
        for u in range(2):
            A('ds_read_b64_tr_b16 a[%d:%d], v%d offset:%d' % (128 + 4 * ks + 2 * u, 128 + 4 * ks + 2 * u + 1, aTo, ks * 1024 + u * 512))
        if ks % 4 == 3:
            A('s_waitcnt lgkmcnt(0)')
    A('v_min_u32 v1, 2, v0')
    A('v_lshlrev_b32 v1, 7, v1')
    A('v_add_u32 v1, s61, v1')
    A('L_b_w1:')
    spin_check(A)
    A('buffer_load_dword v2, v1, %s, 0 offen sc1' % S(WS))
    A('s_waitcnt vmcnt(0)')
    A('v_cmp_ne_u32 vcc, 1, v2')
    A('s_cbranch_vccz L_b_g1')
    A('s_sleep 8')
    A('s_branch L_b_w1')
    A('L_b_g1:')
    A('s_lshl_b32 s63, s%d, 14' % sWAVE)
    for m, base in enumerate((BK, BV)):
        for i in range(4):
            A('s_add_u32 m0, s63, %d' % (m * 65536 + i * 4096))
            A('s_add_u32 s61, s63, %d' % (base + i * 4096))
            for q in range(4):
                A('buffer_load_dwordx4 v%d, %s, s61 offen offset:%d sc1 lds' % (aKV, S(WS), q * 1024))
    MX = 48
    for i in range(NT):
        A('v_mov_b32 v%d, 0x%x' % (MX + i, f2u(-3e38)))
    for r in range(16 * NT):
        A('v_accvgpr_write_b32 a%d, 0' % r)
    A('s_waitcnt vmcnt(0)')
    A('s_barrier')
    rt_stamp(A, opt, 3)
    KF = [56, 60]
    SB = [64, 80, 96]
    A('v_mov_b32 v15, v%d' % aL)
    A('ds_read_b128 v[%d:%d], v15' % (KF[0], KF[0] + 3))
    A('s_mov_b32 s71, 0')
    A('L_b_p1:')
    seq = [(p, i) for p in range(2) for i in range(NT)]
    def s1(n):
        p, i = seq[n]; d = SB[n % 3]
        A('v_mfma_f32_32x32x16_bf16 v[%d:%d], v[%d:%d], v[%d:%d], 0' % (d, d + 15, KF[p], KF[p] + 3, QF + 4 * i, QF + 4 * i + 3))
    def m1(n):
        p, i = seq[n]; d = SB[n % 3]
        for r in range(8):
            A('v_max3_f32 v%d, v%d, v%d, v%d' % (MX + i, MX + i, d + 2 * r, d + 2 * r + 1))
    A('ds_read_b128 v[%d:%d], v15 offset:1024' % (KF[1], KF[1] + 3))
    A('s_waitcnt lgkmcnt(1)')
    s1(0); s1(1)
    for n in range(len(seq)):
        if n + 2 < len(seq):
            if n + 2 == NT:
                A('s_waitcnt lgkmcnt(0)')
            s1(n + 2)
            if n + 2 == NT:
                A('ds_read_b128 v[%d:%d], v15 offset:2048' % (KF[0], KF[0] + 3))
        m1(n)
    A('v_add_u32 v15, 2048, v15')
    A('s_add_u32 s71, s71, 2')
    A('s_cmp_lt_u32 s71, 64')
    A('s_cbranch_scc1 L_b_p1')
    rt_stamp(A, opt, 4)
    NEG = 160
    for i in range(NT):
        A('v_mov_b32 v1, v%d' % (MX + i))
        A('v_permlane32_swap_b32 v%d, v1' % (MX + i))
        A('v_max_f32 v1, v1, v%d' % (MX + i))
        for r in range(16):
            A('v_sub_f32 v%d, 0, v1' % (NEG + 16 * i + r))
    VF = [112, 120]
    PB_ = [128, 136]
    A('s_waitcnt lgkmcnt(0)')
    A('v_mov_b32 v15, v%d' % aL)
    A('v_mov_b32 v16, v%d' % aVr)
    def rdkv(p, off):
        A('ds_read_b128 v[%d:%d], v15 offset:%d' % (KF[p], KF[p] + 3, off))
        A('ds_read_b128 v[%d:%d], v16 offset:%d' % (VF[p], VF[p] + 3, off))
        A('ds_read_b128 v[%d:%d], v16 offset:%d' % (VF[p] + 4, VF[p] + 7, off + 256))
    def fixv(p):
        for r in range(8):
            A('v_cndmask_b32 v%d, v%d, v%d, s[%d:%d]' % (VF[p] + r, VF[p] + r, vOne, mHi16, mHi16 + 1))
    def s2(n):
        p, i = seq[n]; d = SB[n % 2]
        A('v_mfma_f32_32x32x16_bf16 v[%d:%d], v[%d:%d], v[%d:%d], v[%d:%d]' % (d, d + 15, KF[p], KF[p] + 3, QF + 4 * i, QF + 4 * i + 3, NEG + 16 * i, NEG + 16 * i + 15))
    def e2(n):
        p, i = seq[n]; d = SB[n % 2]; pk = PB_[n % 2]
        for hf in range(2):
            for r in range(8):
                A('v_exp_f32 v%d, v%d' % (d + 8 * hf + r, d + 8 * hf + r))
            for r in range(4):
                A('v_cvt_pk_bf16_f32 v%d, v%d, v%d' % (pk + 4 * hf + r, d + 8 * hf + 2 * r, d + 8 * hf + 2 * r + 1))
            if hf == 0 and n > 0:
                pv(n - 1, 1)
        pv(n, 0)
    def pv(n, hf):
        p, i = seq[n]; pk = PB_[n % 2]
        A('v_mfma_f32_32x32x16_bf16 a[%d:%d], v[%d:%d], v[%d:%d], a[%d:%d]' % (16 * i, 16 * i + 15, VF[p] + 4 * hf, VF[p] + 4 * hf + 3, pk + 4 * hf, pk + 4 * hf + 3, 16 * i, 16 * i + 15))
    rdkv(0, 0)
    A('s_mov_b32 s71, 0')
    A('L_b_p2:')
    A('s_waitcnt lgkmcnt(0)')
    rdkv(1, 1024)
    s2(0)
    fixv(0)
    for n in range(len(seq)):
        if n + 1 < len(seq):
            if n + 1 == NT:
                A('s_waitcnt lgkmcnt(0)')
                fixv(1)
            s2(n + 1)
        e2(n)
        if n == NT:
            rdkv(0, 2048)
    pv(len(seq) - 1, 1)
    A('v_add_u32 v15, 2048, v15')
    A('v_add_u32 v16, 2048, v16')
    A('s_add_u32 s71, s71, 2')
    A('s_cmp_lt_u32 s71, 64')
    A('s_cbranch_scc1 L_b_p2')
    rt_stamp(A, opt, 5)
    A('s_mov_b32 s72, s%d' % sU)
    for i in range(NT):
        D = 64 + 16 * (i % 2)
        for r in range(9):
            A('v_accvgpr_read_b32 v%d, a%d' % (D + r, 16 * i + r))
        A('v_rcp_f32 v%d, v%d' % (D + 8, D + 8))
        for r in range(8):
            A('v_mul_f32 v%d, v%d, v%d' % (D + r, D + r, D + 8))
        for r in range(4):
            A('v_cvt_pk_bf16_f32 v%d, v%d, v%d' % (D + 12 + r, D + 2 * r, D + 2 * r + 1))
        A('s_min_u32 s73, s72, 63')
        A('s_lshl_b32 s61, s73, 15')
        A('s_add_u32 s61, s61, %d' % BO)
        A('buffer_store_dwordx4 v[%d:%d], v%d, %s, s61 offen sc1' % (D + 12, D + 15, aBO, S(WS)))
        A('s_add_u32 s72, s72, 12')
    A('s_waitcnt vmcnt(0) lgkmcnt(0)')
    A('s_barrier')
    A('s_lshl_b32 s61, s%d, 12' % sJ)
    A('s_add_u32 s61, s61, %d' % F_BO)
    A('s_lshl_b32 s62, s%d, 7' % sIDX)
    A('s_add_u32 s62, s62, s61')
    A('v_mov_b32 v1, s62')
    A('v_mov_b32 v2, 1')
    A('s_mov_b64 exec, 1')
    A('buffer_store_dword v2, v1, %s, 0 offen sc1' % S(WS))
    A('s_mov_b64 exec, -1')
    A('v_and_b32 v1, 31, v0')
    A('v_lshlrev_b32 v1, 7, v1')
    A('v_add_u32 v1, s61, v1')
    A('L_b_w2:')
    spin_check(A)
    A('buffer_load_dword v2, v1, %s, 0 offen sc1' % S(WS))
    A('s_waitcnt vmcnt(0)')
    A('v_cmp_ne_u32 vcc, 1, v2')
    A('s_cbranch_vccz L_b_g2')
    A('s_sleep 8')
    A('s_branch L_b_w2')
    A('L_b_g2:')
    rt_stamp(A, opt, 6)
    A('s_lshr_b32 s72, s%d, 4' % sIDX)
    A('s_mul_i32 s72, s72, 36')
    A('s_add_u32 s72, s72, s%d' % sU)
    A('s_mov_b32 s71, 0')
    A('L_b_3:')
    A('s_cmp_ge_u32 s72, 64')
    A('s_cbranch_scc1 L_exit')
    A('s_lshl_b32 s61, s72, 15')
    A('s_add_u32 s61, s61, %d' % BO)
    for ks in range(32):
        A('buffer_load_dwordx4 v[%d:%d], v%d, %s, s61 offen offset:%d sc1' % (XF + 4 * ks, XF + 4 * ks + 3, aL, S(WS), (ks % 4) * 1024))
        if ks % 4 == 3:
            A('s_add_u32 s61, s61, 4096')
    for ks in range(32):
        A('s_waitcnt vmcnt(%d)' % (31 - ks))
        A('v_mfma_f32_32x32x16_bf16 v[%d:%d], a[%d:%d], v[%d:%d], %s' % (DQ, DQ + 15, 128 + 4 * ks, 128 + 4 * ks + 3, XF + 4 * ks, XF + 4 * ks + 3, '0' if ks == 0 else 'v[%d:%d]' % (DQ, DQ + 15)))
    for r in range(8):
        A('v_cvt_pk_bf16_f32 v%d, v%d, v%d' % (DV + r, DQ + 2 * r, DQ + 2 * r + 1))
    A('s_lshl_b32 s61, s72, 16')
    A('buffer_store_dwordx4 v[%d:%d], v%d, %s, s61 offen' % (DV, DV + 3, aOut, S(OUT)))
    A('buffer_store_dwordx4 v[%d:%d], v%d, %s, s61 offen offset:16' % (DV + 4, DV + 7, aOut, S(OUT)))
    A('s_add_u32 s72, s72, 12')
    A('s_add_u32 s71, s71, 1')
    A('s_cmp_lt_u32 s71, 3')
    A('s_cbranch_scc1 L_b_3')
    rt_stamp(A, opt, 7)
    A('s_endpgm')
```

```python
from common import *

ST, QE, KE, OE, KB, WVB = 0, 8192, 10240, 12288, 14336, 32768
CA = (128 ** -0.5) * LOG2E
vIdx, vSel = 4, 8
aPBst, aPBld, aMRst, aQ, aL, aWV, aKB, aQEw, aQEr, aKEr, aOEw, aOEr, aKXg, vSent, vMem, vFlag, aFlag = 5, 6, 7, 12, 13, 14, 15, 16, 17, 18, 19, 20, 21, 22, 23, 24, 25
VXN, VXC = 28, 36
AF = 44
QA, KA, VA = 76, 84, 92
QF = 100
T = 116
def WOR(j, t): return 128 + (j * 2 + t) * 8
sS, sRing, sRst, sTag, sG1, sK1, sKBm0, sC = 70, 71, 72, 73, 74, 75, 76, 77
mQ4, mOdd, mLo8 = 96, 98, 100

def wo_load(A, vaddr, blk, u, dense=False):
    t, hb, half = blk >> 2, (blk >> 1) & 1, blk & 1
    e0 = 64 * t + 32 * (u % 2) + 8 * hb + 2 * (u // 2)
    if dense:
        e0 = 32 * (2 * t + hb) + 16 * (u // 2) + 2 * (u % 2)
    r = WOR(4 * half + u, t) + 4 * hb
    A('s_mov_b32 s68, %d' % (e0 * 1024 + half * 128))
    A('buffer_load_dwordx2 v[%d:%d], v%d, %s, s68 offen' % (r, r + 1, vaddr, S(WO)))
    A('buffer_load_dwordx2 v[%d:%d], v%d, %s, s68 offen offset:1024' % (r + 2, r + 3, vaddr, S(WO)))

def wo_fix(A, blk, tmp, sLo, sHi):
    t, hb, half = blk >> 2, (blk >> 1) & 1, blk & 1
    for u in range(4):
        r = WOR(4 * half + u, t) + 4 * hb
        for j in range(4):
            A('v_perm_b32 v%d, v%d, v%d, s%d' % (tmp + j * 4 + u, r + 2 + j // 2, r + j // 2, sHi if j & 1 else sLo))
    for j in range(4):
        for u in range(4):
            A('v_mov_b32 v%d, v%d' % (WOR(4 * half + j, t) + 4 * hb + u, tmp + j * 4 + u))

def xred(A, op, x, y):
    A('v_mov_b32 v%d, v%d' % (y, x))
    A('v_permlane16_swap_b32 v%d, v%d' % (x, y))
    A('%s v%d, v%d, v%d' % (op, x, x, y))
    A('v_mov_b32 v%d, v%d' % (y, x))
    A('v_permlane32_swap_b32 v%d, v%d' % (x, y))
    A('%s v%d, v%d, v%d' % (op, x, x, y))

ACCS = list(range(36, 48)) + list(range(80, 84))
def ph_init(A, opt):
    if opt.get('stamp') == '2':
        for r in ACCS:
            A('s_mov_b32 s%d, 0' % r)
def ph_on(opt, i):
    return 'phs' not in opt or str(i) in opt['phs'].split(',')
def ph(A, opt, i):
    if opt.get('stamp') == '2' and ph_on(opt, i):
        A('s_memtime s[%d:%d]' % (8 + 2 * i, 9 + 2 * i))
def ph_acc(A, opt, n, tmp=60):
    if opt.get('stamp') == '2':
        A('s_waitcnt lgkmcnt(0)')
        on = [i for i in range(n + 1) if ph_on(opt, i)]
        for i, j in zip(on[:-1], on[1:]):
            A('s_sub_u32 s%d, s%d, s%d' % (tmp, 8 + 2 * j, 8 + 2 * i))
            A('s_add_u32 s%d, s%d, s%d' % (ACCS[i], ACCS[i], tmp))
def ph_out(A, opt, n):
    if opt.get('stamp') == '2':
        A('s_mov_b64 exec, 1')
        for i in range(n):
            A('v_mov_b32 v2, s%d' % ACCS[i])
            A('buffer_store_dword v2, v1, %s, 0 offen offset:%d' % (S(WS), 64 + 4 * i))

def setup(A, opt):
    A('L_chain:')
    A('s_setprio 3')
    A('v_and_b32 v1, 15, v0')
    A('v_lshrrev_b32 v2, 4, v0')
    A('v_lshlrev_b32 v%d, 4, v0' % aL)
    A('s_lshl_b32 s60, s%d, 11' % sWAVE)
    A('v_add_u32 v%d, s60, v%d' % (aQ, aL))
    A('s_lshl_b32 s61, s%d, 13' % sIDX)
    A('v_add_u32 v%d, s61, v%d' % (aKXg, aQ))
    A('s_lshl_b32 s61, s%d, 15' % sWAVE)
    A('s_add_u32 s61, s61, %d' % WVB)
    A('v_add_u32 v%d, s61, v%d' % (aWV, aL))
    A('v_add_u32 v%d, %d, v%d' % (aKB, KB, aL))
    A('s_add_u32 s%d, s60, %d' % (sKBm0, KB))
    A('v_bfe_u32 v3, v0, 1, 1')
    A('v_mov_b32 v%d, 0x4444' % vIdx)
    A('v_mov_b32 v26, 0xeeee')
    A('v_cmp_eq_u32 vcc, 1, v3')
    A('v_cndmask_b32 v%d, v%d, v26, vcc' % (vIdx, vIdx))
    A('v_and_b32 v26, 3, v0')
    A('v_mov_b32 v27, 0')
    A('v_mov_b32 v28, 0x3f80')
    A('v_cmp_eq_u32 vcc, 0, v26')
    A('v_cndmask_b32 v27, v27, v28, vcc')
    A('v_mov_b32 v28, 0x3f800000')
    A('v_cmp_eq_u32 vcc, 1, v26')
    A('v_cndmask_b32 v27, v27, v28, vcc')
    A('v_lshrrev_b32 v26, 2, v1')
    for u in range(4):
        A('v_cmp_eq_u32 vcc, %d, v26' % u)
        A('v_cndmask_b32 v%d, 0, v27, vcc' % (vSel + u))
    A('v_lshl_add_u32 v27, v26, 2, v2')
    A('v_lshlrev_b32 v27, 11, v27')
    A('v_and_b32 v28, 3, v0')
    A('v_lshl_add_u32 v27, v28, 4, v27')
    A('s_lshl_b32 s61, s%d, 16' % sWAVE)
    A('s_lshl_b32 s62, s%d, 6' % sIDX)
    A('s_add_u32 s61, s61, s62')
    A('s_add_u32 s61, s61, %d' % PB)
    A('v_add_u32 v%d, s61, v27' % aPBst)
    A('s_and_b32 s61, s%d, 1' % sWAVE)
    A('s_lshl_b32 s61, s61, 5')
    A('s_add_u32 s61, s61, s%d' % sIDX)
    A('s_lshr_b32 s62, s61, 4')
    A('s_lshl_b32 s62, s62, 5')
    A('s_and_b32 s61, s61, 15')
    A('s_add_u32 s61, s61, s62')
    A('s_lshr_b32 s62, s%d, 1' % sWAVE)
    A('s_lshl_b32 s62, s62, 4')
    A('s_add_u32 s%d, s61, s62' % sC)
    A('s_lshl_b32 s61, s%d, 11' % sC)
    A('s_add_u32 s61, s61, %d' % PB)
    A('v_add_u32 v%d, s61, v%d' % (aPBld, aL))
    A('v_lshlrev_b32 v27, 4, v2')
    A('v_lshl_add_u32 v27, v28, 2, v27')
    A('s_lshl_b32 s61, s%d, 6' % sC)
    A('v_add_u32 v%d, s61, v27' % aMRst)
    A('v_lshlrev_b32 v27, 4, v1')
    A('v_lshl_add_u32 v27, v2, 2, v27')
    A('s_lshl_b32 s61, s%d, 9' % sWAVE)
    A('s_add_u32 s62, s61, %d' % QE)
    A('v_add_u32 v%d, s62, v27' % aQEw)
    A('v_lshrrev_b32 v27, 2, v0')
    A('v_lshlrev_b32 v27, 4, v27')
    A('v_and_b32 v29, 1, v0')
    A('v_lshl_add_u32 v%d, v29, 3, v27' % aQEr)
    A('v_lshl_add_u32 v%d, v3, 3, v27' % aKEr)
    A('v_and_b32 v27, 7, v0')
    A('v_lshlrev_b32 v27, 4, v27')
    A('v_lshl_add_u32 v27, v2, 7, v27')
    A('v_add_u32 v%d, s61, v27' % aOEw)
    A('v_lshl_add_u32 v27, v26, 1, v29')
    A('v_lshlrev_b32 v27, 4, v27')
    A('v_lshl_add_u32 v27, v2, 7, v27')
    A('v_lshl_add_u32 v%d, v3, 9, v27' % aOEr)
    A('v_mov_b32 v%d, -1' % vSent)
    A('v_min_u32 v27, 3, v0')
    A('v_lshlrev_b32 v27, 12, v27')
    A('s_lshl_b32 s61, s%d, 7' % sIDX)
    A('v_add_u32 v%d, s61, v27' % aFlag)
    A('s_mov_b32 s%d, 0x000f000f' % mQ4); A('s_mov_b32 s%d, 0x000f000f' % (mQ4 + 1))
    A('s_mov_b32 s%d, 0xffff0000' % mOdd); A('s_mov_b32 s%d, 0xffff0000' % (mOdd + 1))
    A('s_mov_b32 s%d, 0x00ff00ff' % mLo8); A('s_mov_b32 s%d, 0x00ff00ff' % (mLo8 + 1))
    A('s_and_b32 s61, s%d, 3' % sC)
    A('s_lshl_b32 s61, s61, 11')
    A('s_lshr_b32 s62, s%d, 2' % sC)
    A('s_lshl_b32 s62, s62, 5')
    A('s_add_u32 s61, s61, s62')
    A('v_and_b32 v27, 1, v2')
    A('v_lshlrev_b32 v27, 10, v27')
    A('v_lshl_add_u32 v27, v28, 3, v27')
    A('v_lshrrev_b32 v29, 1, v2')
    A('v_lshl_add_u32 v27, v29, 2, v27')
    A('v_add_u32 v27, s61, v27')
    A('buffer_load_dword v%d, v27, %s, 0 offen' % (vMem, S(MEM0)))
    for i in range(4):
        A('v_mov_b32 v%d, 0' % (32 + i))
        A('v_mov_b32 v%d, -1' % (36 + i))
    A('buffer_store_dwordx4 v[32:35], v%d, %s, 0 offen sc1' % (aPBst, S(WS)))
    A('s_mov_b32 s61, 32768')
    A('buffer_store_dwordx4 v[32:35], v%d, %s, s61 offen sc1' % (aPBst, S(WS)))
    A('v_lshrrev_b32 v27, 2, v0')
    A('v_lshlrev_b32 v27, 13, v27')
    A('v_lshl_add_u32 v27, v28, 4, v27')
    A('s_lshl_b32 s61, s%d, 6' % sC)
    A('v_add_u32 v27, s61, v27')
    for i in range(4):
        A('s_mov_b32 s61, %d' % (MH + i * 16 * 8192))
        A('buffer_store_dwordx4 v[36:39], v27, %s, s61 offen sc1' % S(WS))
    A('s_mov_b64 exec, 0xfff')
    A('s_mov_b32 s61, %d' % MR)
    A('buffer_store_dwordx4 v[36:39], v27, %s, s61 offen sc1' % S(WS))
    A('s_mov_b64 exec, -1')
    A('v_and_b32 v27, 1, v2')
    A('v_lshlrev_b32 v27, 14, v27')
    A('v_lshl_add_u32 v27, v29, 12, v27')
    A('v_lshl_add_u32 v27, v1, 3, v27')
    A('s_lshl_b32 s61, s%d, 17' % sIDX)
    A('s_lshl_b32 s62, s%d, 8' % sWAVE)
    A('s_add_u32 s61, s61, s62')
    A('v_add_u32 v43, s61, v27')
    ld = QKVLoader(A, 40, 41, 42, WVB, 64)
    for i in range(32):
        ld.dma(WQ, i)
    for ks in range(16):
        A('s_waitcnt vmcnt(30)')
        if ks == 0:
            A('s_barrier')
            A('s_cmp_lg_u32 s%d, 0' % sWAVE)
            A('s_cbranch_scc1 L_c_noarr')
            A('s_lshl_b32 s61, s%d, 16' % sFOR)
            A('s_add_u32 s61, s61, 1')
            A('v_mov_b32 v32, s61')
            A('v_mov_b32 v33, %d' % D_ARR)
            A('s_mov_b64 exec, 1')
            A('buffer_atomic_add v32, v33, %s, 0 offen' % S(DBG))
            A('s_mov_b64 exec, -1')
            A('L_c_noarr:')
        ld.tr('a', 0, ks)
        A('s_waitcnt lgkmcnt(0)')
        ld.dma(WK, 2 * ks); ld.dma(WK, 2 * ks + 1)
    for ks in range(16):
        A('s_waitcnt vmcnt(30)')
        ld.tr('a', 128, ks)
        A('s_waitcnt lgkmcnt(0)')
        ld.dma(WV, 2 * ks); ld.dma(WV, 2 * ks + 1)
    for ks in range(16):
        A('s_waitcnt vmcnt(%d)' % (30 + 2 * ks))
        for tile, ad in ((0, 41), (1, 42)):
            for u in range(2):
                r = 48 + tile * 4 + 2 * u
                A('ds_read_b64_tr_b16 v[%d:%d], v%d offset:%d' % (r, r + 1, ad, ks * 2048 + u * 256))
        wo_load(A, 43, ks // 2, 2 * (ks % 2)); wo_load(A, 43, ks // 2, 2 * (ks % 2) + 1)
        A('s_waitcnt lgkmcnt(0)')
        A('ds_write_b128 v%d, v[48:51] offset:%d' % (aWV, ks * 2048))
        A('ds_write_b128 v%d, v[52:55] offset:%d' % (aWV, ks * 2048 + 1024))
        A('s_waitcnt lgkmcnt(0)')
    A('s_mov_b32 s61, 0x05040100')
    A('s_mov_b32 s62, 0x07060302')
    for blk in range(8):
        A('s_waitcnt vmcnt(%d)' % (56 - 8 * blk))
        wo_fix(A, blk, 48, 61, 62)
    A('v_min_u32 v%d, 0xfffffffe, v%d' % (vMem, vMem))
    rt_stamp(A, opt, 1)
    if opt.get('loadonly'):
        A('s_endpgm')
    wait_dbg_word(A, D_CLR, 1, 1, 2)
    wait_dbg_word(A, D_ARR, 32, 1, 2, mask=0xffff)
    A('s_lshr_b32 s63, s57, 16')

def ensure_kv(A, tag):
    ok = A.label('L_kv_ok'); lp = A.label('L_kv_lp')
    A('%s:' % lp)
    A('v_readlane_b32 s60, v%d, s%d' % (vFlag, sG1))
    A('s_cmp_gt_u32 s60, s%d' % sK1)
    A('s_cbranch_scc1 %s' % ok)
    spin_check(A)
    A('buffer_load_dword v%d, v%d, %s, 0 offen sc1' % (vFlag, aFlag, S(WS)))
    A('s_waitcnt vmcnt(0)')
    A('s_branch %s' % lp)
    A('%s:' % ok)

def prefetch_kv(A, sseg):
    A('s_lshl_b32 s60, s%d, 18' % sseg)
    A('s_add_u32 s61, s60, %d' % KX)
    A('s_mov_b32 m0, s%d' % sKBm0)
    A('buffer_load_dwordx4 v%d, %s, s61 offen sc1 lds' % (aKXg, S(WS)))
    A('buffer_load_dwordx4 v%d, %s, s61 offen offset:1024 sc1 lds' % (aKXg, S(WS)))
    A('s_add_u32 s61, s60, %d' % VX)
    A('buffer_load_dwordx4 v[%d:%d], v%d, %s, s61 offen sc1' % (VXN, VXN + 3, aKXg, S(WS)))
    A('buffer_load_dwordx4 v[%d:%d], v%d, %s, s61 offen offset:1024 sc1' % (VXN + 4, VXN + 7, aKXg, S(WS)))

def adv_gk(A):
    A('s_add_u32 s%d, s%d, 1' % (sG1, sG1))
    A('s_cmp_eq_u32 s%d, 4' % sG1)
    A('s_cselect_b32 s%d, 0, s%d' % (sG1, sG1))
    A('s_addc_u32 s%d, s%d, 0' % (sK1, sK1))

def loop(A, opt, SC, tag):
    stamp = opt.get('stamp')
    A('L_c_start%s:' % tag)
    A('s_mov_b32 s%d, 0' % sS)
    A('s_mov_b32 s%d, %d' % (sRing, MR))
    A('s_mov_b32 s%d, %d' % (sRst, MR + 2 * 8192))
    A('s_mov_b32 s%d, 1' % sTag)
    A('s_mov_b32 s%d, 0' % sG1)
    A('s_mov_b32 s%d, 0' % sK1)
    A('s_mov_b32 s78, 8192')
    A('s_mov_b32 s79, 0x%x' % f2u(CA))
    A('s_mov_b64 exec, s[%d:%d]' % (mQ4, mQ4 + 1))
    A('buffer_store_dword v%d, v%d, %s, s%d offen %s' % (vMem, aMRst, S(WS), sRing, SC))
    A('s_mov_b64 exec, -1')
    A('v_mov_b32 v%d, 0' % vFlag)
    ensure_kv(A, tag)
    prefetch_kv(A, sS)
    A('s_add_u32 s%d, s%d, s78' % (sKBm0, sKBm0))
    adv_gk(A)
    rt_stamp(A, opt, 2)
    ph_init(A, opt)
    A('L_c_loop%s:' % tag)
    ph(A, opt, 0)
    for i in range(24):
        A('v_mov_b32 v%d, 0' % (QA + i))
    A('L_c_pa%s:' % tag)
    spin_check(A)
    A('buffer_load_dwordx4 v[%d:%d], v%d, %s, s%d offen sc1' % (T, T + 3, aQ, S(WS), sRing))
    A('buffer_load_dwordx4 v[%d:%d], v%d, %s, s%d offen offset:1024 sc1' % (T + 4, T + 7, aQ, S(WS), sRing))
    A('s_waitcnt vmcnt(0)')
    A('v_max3_u32 v1, v%d, v%d, v%d' % (T, T + 1, T + 2))
    A('v_max3_u32 v2, v%d, v%d, v%d' % (T + 3, T + 4, T + 5))
    A('v_max3_u32 v1, v1, v%d, v%d' % (T + 6, T + 7))
    A('v_max_u32 v1, v1, v2')
    A('v_cmp_eq_u32 vcc, -1, v1')
    A('s_cbranch_vccnz L_c_pa%s' % tag)
    ph(A, opt, 1)
    A('ds_write_b128 v%d, v[%d:%d] offset:%d' % (aQ, T, T + 3, ST))
    A('ds_write_b128 v%d, v[%d:%d] offset:%d' % (aQ, T + 4, T + 7, ST + 1024))
    A('s_waitcnt lgkmcnt(0)')
    A('s_barrier')
    ph(A, opt, 2)
    for t in range(8):
        A('ds_read_b128 v[%d:%d], v%d offset:%d' % (AF + 4 * t, AF + 4 * t + 3, aL, ST + 1024 * t))
    for i in range(8):
        A('v_mov_b32 v%d, v%d' % (VXC + i, VXN + i))
    A('s_lshl_b32 s60, s%d, 13' % sS)
    A('s_add_u32 s60, s60, %d' % MH)
    A('s_mov_b64 exec, s[%d:%d]' % (mQ4, mQ4 + 1))
    A('buffer_store_dword v%d, v%d, %s, s60 offen sc1' % (vMem, aMRst, S(WS)))
    A('s_mov_b64 exec, -1')
    ensure_kv(A, tag)
    A('s_add_u32 s62, s%d, 1' % sS)
    prefetch_kv(A, 62)
    A('s_sub_u32 s78, 0, s78')
    A('s_add_u32 s%d, s%d, s78' % (sKBm0, sKBm0))
    adv_gk(A)
    A('buffer_load_dword v%d, v%d, %s, 0 offen sc1' % (vFlag, aFlag, S(WS)))
    ph(A, opt, 3)
    for m, acc in ((0, QA), (1, KA)):
        for t in range(8):
            if m == 0:
                A('s_waitcnt lgkmcnt(%d)' % (7 - t))
            for tile in range(2):
                b = m * 128 + tile * 64 + t * 8
                A('v_smfmac_f32_16x16x64_bf16 v[%d:%d], v[%d:%d], a[%d:%d], v%d' % (acc + 4 * tile, acc + 4 * tile + 3, AF + 4 * t, AF + 4 * t + 3, b, b + 7, vIdx))
    ph(A, opt, 4)
    for acc, off in ((QA, 0), (KA, KE - QE)):
        for tile in range(2):
            d = acc + 4 * tile
            A('v_pk_add_f32 v[%d:%d], v[%d:%d], v[%d:%d]' % (d, d + 1, d, d + 1, d + 2, d + 3))
        for tile in range(2):
            d = acc + 4 * tile
            A('v_cvt_pk_bf16_f32 v%d, v%d, v%d' % (d, d, d + 1))
        A('ds_write_b32 v%d, v%d offset:%d' % (aQEw, acc, off))
        A('ds_write_b32 v%d, v%d offset:%d' % (aQEw, acc + 4, off + 256))
    A('s_waitcnt lgkmcnt(0)')
    A('s_barrier')
    ph(A, opt, 5)
    bufs = [QF, QF + 8, T]
    seq = [(t, tile) for t in range(8) for tile in range(2)]
    def wv_rd(i):
        t, tile = seq[i]; b = bufs[i % 3]
        A('ds_read_b128 v[%d:%d], v%d offset:%d' % (b, b + 3, aWV, (2 * t) * 2048 + tile * 1024))
        A('ds_read_b128 v[%d:%d], v%d offset:%d' % (b + 4, b + 7, aWV, (2 * t + 1) * 2048 + tile * 1024))
    wv_rd(0); wv_rd(1)
    for i in range(16):
        if i + 2 < 16:
            wv_rd(i + 2)
        A('s_waitcnt lgkmcnt(%d)' % (2 * min(2, 15 - i)))
        t, tile = seq[i]; b = bufs[i % 3]
        A('v_smfmac_f32_16x16x64_bf16 v[%d:%d], v[%d:%d], v[%d:%d], v%d' % (VA + 4 * tile, VA + 4 * tile + 3, AF + 4 * t, AF + 4 * t + 3, b, b + 7, vIdx))
    ph(A, opt, 6)
    A('s_nop 3')
    for ks in range(4):
        for u in range(2):
            A('ds_read_b64_tr_b16 v[%d:%d], v%d offset:%d' % (QF + 4 * ks + 2 * u, QF + 4 * ks + 2 * u + 1, aQEr, QE + ks * 512 + u * 256))
    for ks in range(4):
        for u in range(2):
            A('ds_read_b64_tr_b16 v[%d:%d], v%d offset:%d' % (AF + 4 * ks + 2 * u, AF + 4 * ks + 2 * u + 1, aKEr, KE + ks * 512 + u * 256))
    for ks in range(4):
        A('ds_read_b128 v[%d:%d], v%d offset:%d' % (AF + 16 + 4 * ks, AF + 19 + 4 * ks, aKB, ks * 1024))
    A('s_waitcnt lgkmcnt(0)')
    SM, SX = T, QA
    for ks in range(4):
        A('v_mfma_f32_16x16x32_bf16 v[%d:%d], v[%d:%d], v[%d:%d], %s' % (SM, SM + 3, AF + 4 * ks, AF + 4 * ks + 3, QF + 4 * ks, QF + 4 * ks + 3, '0' if ks == 0 else 'v[%d:%d]' % (SM, SM + 3)))
    for ks in range(4):
        A('v_mfma_f32_16x16x32_bf16 v[%d:%d], v[%d:%d], v[%d:%d], %s' % (SX, SX + 3, AF + 16 + 4 * ks, AF + 19 + 4 * ks, QF + 4 * ks, QF + 4 * ks + 3, '0' if ks == 0 else 'v[%d:%d]' % (SX, SX + 3)))
    for ks in range(4):
        A('ds_read_b128 v[%d:%d], v%d offset:%d' % (AF + 4 * ks, AF + 3 + 4 * ks, aKB, 4096 + ks * 1024))
    A('s_waitcnt lgkmcnt(0)')
    for ks in range(4):
        A('v_mfma_f32_16x16x32_bf16 v[%d:%d], v[%d:%d], v[%d:%d], %s' % (SX + 4, SX + 7, AF + 4 * ks, AF + 3 + 4 * ks, QF + 4 * ks, QF + 4 * ks + 3, '0' if ks == 0 else 'v[%d:%d]' % (SX + 4, SX + 7)))
    A('v_subrev_u32 v%d, s78, v%d' % (aKB, aKB))
    for tile in range(2):
        d = VA + 4 * tile
        A('v_pk_add_f32 v[%d:%d], v[%d:%d], v[%d:%d]' % (d, d + 1, d, d + 1, d + 2, d + 3))
        A('v_cvt_pk_bf16_f32 v%d, v%d, v%d' % (d + 2, d, d + 1))
        A('v_cndmask_b32 v%d, v%d, 0, s[%d:%d]' % (d, d + 2, mOdd, mOdd + 1))
        A('v_cndmask_b32 v%d, 0, v%d, s[%d:%d]' % (d + 1, d + 2, mOdd, mOdd + 1))
    ph(A, opt, 7)
    A('v_max3_f32 v1, v%d, v%d, v%d' % (SM, SM + 1, SM + 2))
    A('v_max3_f32 v1, v1, v%d, v%d' % (SM + 3, SX))
    A('v_max3_f32 v1, v1, v%d, v%d' % (SX + 1, SX + 2))
    A('v_max3_f32 v1, v1, v%d, v%d' % (SX + 3, SX + 4))
    A('v_max3_f32 v1, v1, v%d, v%d' % (SX + 5, SX + 6))
    A('v_max_f32 v1, v1, v%d' % (SX + 7))
    xred(A, 'v_max_f32', 1, 2)
    A('v_mul_f32 v1, s79, v1')
    for r in [SM + i for i in range(4)] + [SX + i for i in range(8)]:
        A('v_fma_f32 v%d, v%d, s79, -v1' % (r, r))
    for r in [SM + i for i in range(4)] + [SX + i for i in range(8)]:
        A('v_exp_f32 v%d, v%d' % (r, r))
    PX, PM = T + 4, T + 8
    for i in range(4):
        A('v_cvt_pk_bf16_f32 v%d, v%d, v%d' % (PX + i, SX + 2 * i, SX + 2 * i + 1))
    for i in range(2):
        A('v_cvt_pk_bf16_f32 v%d, v%d, v%d' % (PM + i, SM + 2 * i, SM + 2 * i + 1))
    OT = KA
    for tile in range(2):
        A('v_mfma_f32_16x16x32_bf16 v[%d:%d], v[%d:%d], v[%d:%d], 0' % (OT + 4 * tile, OT + 4 * tile + 3, VXC + 4 * tile, VXC + 4 * tile + 3, PX, PX + 3))
    for tile in range(2):
        A('v_mfma_f32_16x16x16_bf16 v[%d:%d], v[%d:%d], v[%d:%d], v[%d:%d]' % (OT + 4 * tile, OT + 4 * tile + 3, VA + 4 * tile, VA + 4 * tile + 1, PM, PM + 1, OT + 4 * tile, OT + 4 * tile + 3))
    A('v_add_f32 v1, v%d, v%d' % (SM, SM + 1))
    A('v_add_f32 v2, v%d, v%d' % (SM + 2, SM + 3))
    A('v_add_f32 v1, v1, v2')
    A('v_mul_f32 v1, 0.5, v1')
    for i in range(8):
        A('v_add_f32 v1, v1, v%d' % (SX + i))
    xred(A, 'v_add_f32', 1, 2)
    A('v_rcp_f32 v1, v1')
    for i in range(32):
        A('v_mov_b32 v%d, 0' % (AF + i))
    for i in range(8):
        A('v_mul_f32 v%d, v%d, v1' % (OT + i, OT + i))
    for i in range(4):
        A('v_cvt_pk_bf16_f32 v%d, v%d, v%d' % (T + i, OT + 2 * i, OT + 2 * i + 1))
    ph(A, opt, 8)
    A('s_mov_b64 exec, s[%d:%d]' % (mLo8, mLo8 + 1))
    A('ds_write_b128 v%d, v[%d:%d] offset:%d' % (aOEw, T, T + 3, OE))
    A('s_mov_b64 exec, -1')
    A('s_waitcnt lgkmcnt(0)')
    A('s_barrier')
    OA = QF
    A('ds_read_b128 v[%d:%d], v%d offset:%d' % (OA, OA + 3, aOEr, OE))
    A('ds_read_b128 v[%d:%d], v%d offset:%d' % (OA + 4, OA + 7, aOEr, OE + 1024))
    A('s_waitcnt lgkmcnt(0)')
    OC = AF
    ph(A, opt, 9)
    A('s_mov_b32 s61, 32768')
    for hf in range(2):
        for t in range(2):
            for j in range(4 * hf, 4 * hf + 4):
                A('v_smfmac_f32_16x16x64_bf16 v[%d:%d], v[%d:%d], v[%d:%d], v%d' % (OC + 4 * j, OC + 4 * j + 3, OA + 4 * t, OA + 4 * t + 3, WOR(j, t), WOR(j, t) + 7, vIdx))
    for hf in range(2):
        for j in range(4 * hf, 4 * hf + 4):
            d = OC + 4 * j
            A('v_pk_add_f32 v[%d:%d], v[%d:%d], v[%d:%d]' % (d, d + 1, d, d + 1, d + 2, d + 3))
        G = T + 4 * hf
        for u in range(4):
            hi, b = u >> 1, u & 1
            j = 4 * hf + 2 * hi
            A('v_cvt_pk_bf16_f32 v%d, v%d, v%d' % (G + u, OC + 4 * j + b, OC + 4 * (j + 1) + b))
        A('v_bfi_b32 v%d, 1, s%d, v%d' % (G, sTag, G))
        A('buffer_store_dwordx4 v[%d:%d], v%d, %s, %s offen %s' % (G, G + 3, aPBst, S(WS), 's61' if hf else '0', SC))
    ph(A, opt, 10)
    R = QF
    A('L_c_pb%s:' % tag)
    spin_check(A)
    A('buffer_load_dwordx4 v[%d:%d], v%d, %s, 0 offen sc1' % (R, R + 3, aPBld, S(WS)))
    A('buffer_load_dwordx4 v[%d:%d], v%d, %s, 0 offen offset:1024 sc1' % (R + 4, R + 7, aPBld, S(WS)))
    A('s_waitcnt vmcnt(0)')
    A('v_xor_b32 v1, s%d, v%d' % (sTag, R))
    A('v_xor_b32 v2, s%d, v%d' % (sTag, R + 4))
    A('v_or_b32 v1, v1, v2')
    A('v_and_b32 v1, 1, v1')
    A('v_cmp_ne_u32 vcc, 0, v1')
    A('s_cbranch_vccnz L_c_pb%s' % tag)
    D = R + 8
    ph(A, opt, 11)
    A('v_mfma_f32_16x16x32_bf16 v[%d:%d], v[%d:%d], v[%d:%d], 0' % (D, D + 3, vSel, vSel + 3, R, R + 3))
    A('v_mfma_f32_16x16x32_bf16 v[%d:%d], v[%d:%d], v[%d:%d], v[%d:%d]' % (D, D + 3, vSel, vSel + 3, R + 4, R + 7, D, D + 3))
    A('s_add_u32 s%d, s%d, 8192' % (sRing, sRing))
    A('s_cmp_eq_u32 s%d, %d' % (sRing, MR + 3 * 8192))
    A('s_cselect_b32 s%d, %d, s%d' % (sRing, MR, sRing))
    A('s_add_u32 s%d, s%d, 8192' % (sRst, sRst))
    A('s_cmp_eq_u32 s%d, %d' % (sRst, MR + 3 * 8192))
    A('s_cselect_b32 s%d, %d, s%d' % (sRst, MR, sRst))
    A('s_xor_b32 s%d, s%d, 1' % (sTag, sTag))
    A('s_add_u32 s%d, s%d, 1' % (sS, sS))
    for rot in (4, 8):
        A('v_add_f32_dpp v%d, v%d, v%d row_ror:%d row_mask:0xf bank_mask:0xf' % (D, D, D, rot))
        A('v_add_f32_dpp v%d, v%d, v%d row_ror:%d row_mask:0xf bank_mask:0xf' % (D + 1, D + 1, D + 1, rot))
    A('v_cvt_pk_bf16_f32 v%d, v%d, v%d' % (vMem, D, D + 1))
    A('v_min_u32 v%d, 0xfffffffe, v%d' % (vMem, vMem))
    A('s_mov_b64 exec, s[%d:%d]' % (mQ4, mQ4 + 1))
    A('s_cmp_eq_u32 s%d, 63' % sS)
    A('s_cbranch_scc1 L_c_done')
    A('buffer_store_dword v%d, v%d, %s, s%d offen %s' % (vMem, aMRst, S(WS), sRing, SC))
    A('buffer_store_dword v%d, v%d, %s, s%d offen %s' % (vSent, aMRst, S(WS), sRst, SC))
    A('s_mov_b64 exec, -1')
    ph(A, opt, 12)
    ph_acc(A, opt, 12)
    A('s_branch L_c_loop%s' % tag)

def chain(A, opt):
    setup(A, opt)
    A('s_cmp_lg_u32 s63, 0')
    A('s_cbranch_scc1 L_c_start_s')
    loop(A, opt, '', '_f')
    loop(A, opt, 'sc1', '_s')
    A('L_c_done:')
    A('s_mov_b32 s60, %d' % (MH + 63 * 8192))
    A('buffer_store_dword v%d, v%d, %s, s60 offen sc1' % (vMem, aMRst, S(WS)))
    A('s_mov_b64 exec, -1')
    rt_stamp(A, opt, 3)
    ph_out(A, opt, 12)
    A('s_endpgm')
```

```python
from common import *
from chain import wo_load, wo_fix, WOR, CA, ph, ph_init, ph_acc, ph_out

ST, QE, KE, OE, KB, VB, WSB = 0, 8192, 10496, 12800, 16384, 24576, 32768
vIdx, aPBst, aMRst, aQ, aL, aWS, aQEw, aQEr, aKEw, aKEr, aOEw, aOEr, vMem, vFlag, aPF, vInc = range(4, 20)
AF = 20
SB = 52
QA, KA, VA = 100, 108, 116
vSel = 124
sS, sRing, sRst, sTag, sG1, sK1, sC, sPBld, sCA, sM0K, sM0V = 70, 71, 72, 73, 74, 75, 77, 76, 79, 69, 59
sKoff, sVoff, sMH, sOne, s32k, sX1, sX2, sX3, s8k, s256k, sMRend = 60, 61, 62, 63, 64, 65, 66, 67, 68, 78, 58
mOW = 100
def sm(d, a_, b, kind):
    return 'v_smfmac_f32_16x16x64_bf16 v[%d:%d], v[%d:%d], %s[%d:%d], v%d' % (d, d + 3, a_, a_ + 3, kind, b, b + 7, vIdx)
def mm(d, a_, b, first):
    return 'v_mfma_f32_16x16x32_bf16 v[%d:%d], v[%d:%d], v[%d:%d], %s' % (d, d + 3, a_, a_ + 3, b, b + 3, '0' if first else 'v[%d:%d]' % (d, d + 3))
def z64(r):
    return 'v_mov_b64 v[%d:%d], 0' % (r, r + 1)

def weave(A, main, fill, per=1):
    fill = list(fill)
    for i, m in enumerate(main):
        A(m)
        k = per[i] if isinstance(per, (list, tuple)) else per
        for _ in range(k):
            if fill:
                A(fill.pop(0))
    for f in fill:
        A(f)

def arrive(A):
    A('s_barrier')
    A('s_cmp_lg_u32 s%d, 0' % sWAVE)
    A('s_cbranch_scc1 L_c_noarr')
    A('s_lshl_b32 s61, s%d, 16' % sFOR)
    A('s_add_u32 s61, s61, 1')
    A('v_mov_b32 v108, s61')
    A('v_mov_b32 v109, %d' % D_ARR)
    A('s_mov_b64 exec, 1')
    A('buffer_atomic_add v108, v109, %s, 0 offen' % S(DBG))
    A('s_mov_b64 exec, -1')
    A('L_c_noarr:')

def setup(A, opt, loader):
    A('L_chain:')
    A('s_setprio 3')
    if opt.get('cw', '1') == '1':
        A('s_getpc_b64 s[60:61]')
        A('v_lshlrev_b32 v1, 7, v0')
        A('s_lshl_b32 s62, s%d, 13' % sWAVE)
        A('v_add_u32 v1, s62, v1')
        A('global_load_dword v251, v1, s[60:61]')
    ld = RowLoader(A, 100, 102, WSB, 64)
    for c in range(int(opt.get('depth', 8))):
        ld.dma(WQ, c)
    ld.init_tr()
    A('v_and_b32 v1, 15, v0')
    A('v_lshrrev_b32 v2, 4, v0')
    A('v_bfe_u32 v3, v0, 1, 1')
    A('v_and_b32 v28, 3, v0')
    A('v_and_b32 v29, 1, v0')
    A('v_and_b32 v30, 1, v2')
    A('v_lshrrev_b32 v31, 1, v2')
    A('v_lshrrev_b32 v26, 2, v1')
    A('v_lshlrev_b32 v%d, 4, v0' % aL)
    A('s_lshl_b32 s60, s%d, 11' % sWAVE)
    A('v_add_u32 v%d, s60, v%d' % (aQ, aL))
    A('s_add_u32 s%d, s60, %d' % (sM0K, KB))
    A('s_add_u32 s%d, s60, %d' % (sM0V, VB))
    A('v_add_u32 v%d, s64, v%d' % (aWS, aL))
    A('v_mov_b32 v%d, 0x4444' % vIdx)
    A('v_mov_b32 v27, 0xeeee')
    A('v_cmp_eq_u32 vcc, 1, v3')
    A('v_cndmask_b32 v%d, v%d, v27, vcc' % (vIdx, vIdx))
    A('v_mov_b32 v27, 0')
    A('v_mov_b32 v32, 0x3f80')
    A('v_cmp_eq_u32 vcc, 0, v28')
    A('v_cndmask_b32 v27, v27, v32, vcc')
    A('v_mov_b32 v32, 0x3f800000')
    A('v_cmp_eq_u32 vcc, 1, v28')
    A('v_cndmask_b32 v27, v27, v32, vcc')
    for u in range(4):
        A('v_cmp_eq_u32 vcc, %d, v26' % u)
        A('v_cndmask_b32 v%d, 0, v27, vcc' % (vSel + u))
    A('v_lshl_add_u32 v27, v26, 2, v2')
    A('v_lshlrev_b32 v27, 11, v27')
    A('v_lshl_add_u32 v27, v28, 4, v27')
    A('s_lshl_b32 s61, s%d, 16' % sWAVE)
    A('s_lshl_b32 s62, s%d, 6' % sIDX)
    A('s_add_u32 s61, s61, s62')
    A('s_add_u32 s61, s61, %d' % PB)
    A('v_add_u32 v%d, s61, v27' % aPBst)
    A('s_and_b32 s61, s%d, 1' % sWAVE)
    A('s_lshl_b32 s61, s61, 5')
    A('s_add_u32 s61, s61, s%d' % sIDX)
    A('s_lshr_b32 s62, s61, 4')
    A('s_lshl_b32 s62, s62, 5')
    A('s_and_b32 s61, s61, 15')
    A('s_add_u32 s61, s61, s62')
    A('s_lshr_b32 s62, s%d, 1' % sWAVE)
    A('s_lshl_b32 s62, s62, 4')
    A('s_add_u32 s%d, s61, s62' % sC)
    A('s_lshl_b32 s61, s%d, 11' % sC)
    A('s_add_u32 s%d, s61, %d' % (sPBld, PB))
    A('v_lshlrev_b32 v27, 4, v2')
    A('v_lshl_add_u32 v27, v28, 2, v27')
    A('s_lshl_b32 s61, s%d, 6' % sC)
    A('v_add_u32 v%d, s61, v27' % aMRst)
    A('v_mov_b32 v33, 0x80000000')
    A('v_cmp_lt_u32 vcc, 3, v1')
    A('v_cndmask_b32 v%d, v%d, v33, vcc' % (aMRst, aMRst))
    A('v_lshlrev_b32 v27, 4, v1')
    A('v_lshl_add_u32 v27, v2, 2, v27')
    A('s_mul_i32 s61, s%d, 576' % sWAVE)
    A('s_add_u32 s62, s61, %d' % QE)
    A('v_add_u32 v%d, s62, v27' % aQEw)
    A('v_lshrrev_b32 v27, 1, v26')
    A('v_mul_u32_u24 v27, 288, v27')
    A('v_lshl_add_u32 v27, v2, 6, v27')
    A('v_and_b32 v32, 1, v26')
    A('v_lshl_add_u32 v27, v32, 4, v27')
    A('v_lshl_add_u32 v%d, v3, 3, v27' % aQEr)
    A('v_mul_u32_u24 v27, 288, v30')
    A('v_lshl_add_u32 v27, v31, 7, v27')
    A('v_lshl_add_u32 v27, v1, 3, v27')
    A('s_add_u32 s62, s61, %d' % KE)
    A('v_add_u32 v%d, s62, v27' % aKEw)
    A('v_mul_u32_u24 v27, 576, v31')
    A('v_mul_u32_u24 v32, 288, v29')
    A('v_add_u32 v27, v27, v32')
    A('v_lshl_add_u32 v27, v3, 7, v27')
    A('v_lshl_add_u32 v27, v30, 6, v27')
    A('v_lshl_add_u32 v%d, v26, 3, v27' % aKEr)
    A('v_lshrrev_b32 v27, 3, v1')
    A('v_lshl_add_u32 v27, v27, 2, v28')
    A('v_lshlrev_b32 v27, 4, v27')
    A('v_lshl_add_u32 v27, v2, 7, v27')
    A('s_lshl_b32 s61, s%d, 9' % sWAVE)
    A('v_add_u32 v%d, s61, v27' % aOEw)
    A('v_lshl_add_u32 v27, v26, 1, v29')
    A('v_lshlrev_b32 v27, 4, v27')
    A('v_lshl_add_u32 v27, v2, 7, v27')
    A('v_lshl_add_u32 v%d, v3, 9, v27' % aOEr)
    A('v_lshlrev_b32 v27, 7, v1')
    A('v_lshl_add_u32 v27, v30, 24, v27')
    A('s_lshl_b32 s61, s%d, 13' % sIDX)
    A('s_add_u32 s62, s61, s60')
    A('s_add_u32 s62, s62, %d' % (KX + 2 * 262144))
    A('v_add_u32 v%d, s62, v27' % aPF)
    A('v_lshlrev_b32 v27, 12, v28')
    A('s_lshl_b32 s62, s%d, 7' % sIDX)
    A('v_add_u32 v27, s62, v27')
    A('v_cmp_lt_u32 vcc, 31, v0')
    A('v_cndmask_b32 v%d, v%d, v27, vcc' % (aPF, aPF))
    A('v_mov_b32 v%d, 262144' % vInc)
    A('v_cndmask_b32 v%d, v%d, 0, vcc' % (vInc, vInc))
    A('v_cmp_lt_u32 vcc, 35, v0')
    A('v_cndmask_b32 v%d, v%d, v33, vcc' % (aPF, aPF))
    A('s_mov_b32 s%d, 0x0f0f0f0f' % mOW); A('s_mov_b32 s%d, 0x0f0f0f0f' % (mOW + 1))
    A('s_and_b32 s61, s%d, 3' % sC)
    A('s_lshl_b32 s61, s61, 11')
    A('s_lshr_b32 s62, s%d, 2' % sC)
    A('s_lshl_b32 s62, s62, 5')
    A('s_add_u32 s61, s61, s62')
    A('v_lshlrev_b32 v27, 10, v30')
    A('v_lshl_add_u32 v27, v28, 3, v27')
    A('v_lshl_add_u32 v27, v31, 2, v27')
    A('v_add_u32 v27, s61, v27')
    A('buffer_load_dword v%d, v27, %s, 0 offen' % (vMem, S(MEM0)))
    A('v_lshlrev_b32 v27, 14, v30')
    A('v_lshl_add_u32 v27, v31, 12, v27')
    A('v_lshl_add_u32 v27, v1, 3, v27')
    A('s_lshl_b32 s61, s%d, 17' % sIDX)
    A('s_lshl_b32 s62, s%d, 8' % sWAVE)
    A('s_add_u32 s61, s61, s62')
    A('v_add_u32 v107, s61, v27')
    A('v_lshrrev_b32 v27, 2, v0')
    A('v_lshlrev_b32 v27, 13, v27')
    A('v_lshl_add_u32 v27, v28, 4, v27')
    A('s_lshl_b32 s61, s%d, 6' % sC)
    A('v_add_u32 v106, s61, v27')
    A('v_add_u32 v0, 0x10000, v%d' % aWS)
    for i in range(4):
        A('v_mov_b32 v%d, 0' % (108 + i))
        A('v_mov_b32 v%d, -1' % (112 + i))
    A('buffer_store_dwordx4 v[108:111], v%d, %s, 0 offen sc1' % (aPBst, S(WS)))
    A('s_mov_b32 s61, 32768')
    A('buffer_store_dwordx4 v[108:111], v%d, %s, s61 offen sc1' % (aPBst, S(WS)))
    for i in range(4):
        A('s_mov_b32 s61, %d' % (MH + i * 16 * 8192))
        A('buffer_store_dwordx4 v[112:115], v106, %s, s61 offen sc1' % S(WS))
    A('s_mov_b64 exec, 0xfff')
    A('s_mov_b32 s61, %d' % MR)
    A('buffer_store_dwordx4 v[112:115], v106, %s, s61 offen sc1' % S(WS))
    A('s_mov_b64 exec, -1')
    loader(A, opt, ld, 8)
    rt_stamp(A, opt, 1)
    if opt.get('loadonly'):
        A('s_endpgm')
    A('s_mov_b32 s57, s67')
    A('s_cmp_eq_u32 s66, 1')
    A('s_cbranch_scc1 L_c_ready')
    wait_dbg_word(A, D_CLR, 1, 1, 2)
    wait_dbg_word(A, D_ARR, 32, 1, 2, mask=0xffff)
    A('s_mov_b32 s58, %d' % MR)
    A('buffer_store_dword v%d, v%d, %s, s58 offen sc1' % (vMem, aMRst, S(WS)))
    A('s_lshr_b32 s57, s57, 16')
    A('L_c_ready:')

def ensure_kv(A):
    ok = A.label('L_kv_ok'); lp = A.label('L_kv_lp')
    A('%s:' % lp)
    A('v_readlane_b32 s57, v%d, s%d' % (vFlag, sG1))
    A('s_cmp_gt_u32 s57, s%d' % sK1)
    A('s_cbranch_scc1 %s' % ok)
    spin_check(A)
    A('s_mov_b32 exec_lo, 0')
    A('buffer_load_dword v%d, v%d, %s, 0 offen sc1' % (vFlag, aPF, S(WS)))
    A('s_mov_b32 exec_lo, -1')
    A('s_waitcnt vmcnt(0)')
    A('s_branch %s' % lp)
    A('%s:' % ok)
    A('s_add_u32 s%d, s%d, 1' % (sG1, sG1))
    A('s_cmp_eq_u32 s%d, 36' % sG1)
    A('s_cselect_b32 s%d, 32, s%d' % (sG1, sG1))
    A('s_addc_u32 s%d, s%d, 0' % (sK1, sK1))
    A('s_min_u32 s%d, s%d, 15' % (sK1, sK1))

def dma_kv():
    return ['s_mov_b32 m0, s%d' % sM0K,
            'buffer_load_dwordx4 v%d, %s, s%d offen sc1 lds' % (aQ, S(WS), sKoff),
            'buffer_load_dwordx4 v%d, %s, s%d offen offset:1024 sc1 lds' % (aQ, S(WS), sKoff),
            's_mov_b32 m0, s%d' % sM0V,
            'buffer_load_dwordx4 v%d, %s, s%d offen sc1 lds' % (aQ, S(WS), sVoff),
            'buffer_load_dwordx4 v%d, %s, s%d offen offset:1024 sc1 lds' % (aQ, S(WS), sVoff)]

def sb_reads(i):
    b = SB + 16 * (i % 3)
    return ['ds_read_b128 v[%d:%d], v%d offset:%d' % (b + 8 * m + 4 * hb, b + 8 * m + 4 * hb + 3, aWS, (2 * i + hb) * 2048 + m * 1024) for m in range(2) for hb in range(2)]

def loop(A, opt, SC, tag):
    DB = int(opt.get('db', 0)); DA = int(opt.get('da', 0)); DB2 = int(opt.get('db2', 0))
    A('L_c_start%s:' % tag)
    A('s_mov_b32 s%d, 0' % sS)
    A('s_mov_b32 s%d, %d' % (sRing, MR))
    A('s_mov_b32 s%d, %d' % (sRst, MR + 2 * 8192))
    A('s_mov_b32 s%d, %d' % (sMRend, MR + 3 * 8192))
    A('s_mov_b32 s%d, 1' % sTag)
    A('s_mov_b32 s%d, 32' % sG1)
    A('s_mov_b32 s%d, 0' % sK1)
    A('s_mov_b32 s%d, 0x%x' % (sCA, f2u(CA)))
    A('s_lshl_b32 s%d, s%d, 13' % (sKoff, sIDX))
    A('s_add_u32 s%d, s%d, %d' % (sVoff, sKoff, VX))
    A('s_add_u32 s%d, s%d, %d' % (sKoff, sKoff, KX))
    A('s_mov_b32 s%d, %d' % (sMH, MH))
    A('s_mov_b32 s%d, 0x3f803f80' % sOne)
    A('s_mov_b32 s%d, 32768' % s32k)
    A('s_mov_b32 s%d, 2048' % sX1); A('s_mov_b32 s%d, 4096' % sX2); A('s_mov_b32 s%d, 6144' % sX3)
    A('s_mov_b32 s%d, 8192' % s8k)
    A('s_mov_b32 s%d, 262144' % s256k)
    A('buffer_store_dword v%d, v%d, %s, s%d offen %s' % (vMem, aMRst, S(WS), sRing, SC))
    A('v_mov_b32 v%d, 0' % vFlag)
    ensure_kv(A)
    for x in dma_kv():
        A(x)
    A('s_add_u32 s%d, s%d, s%d' % (sKoff, sKoff, s256k))
    A('s_add_u32 s%d, s%d, s%d' % (sVoff, sVoff, s256k))
    ensure_kv(A)
    for i in range(3):
        for x in sb_reads(i):
            A(x)
    for i in range(12):
        A(z64(QA + 2 * i))
    rt_stamp(A, opt, 2)
    ph_init(A, opt)
    def Q(i, tile): return sm(QA + 4 * tile, AF + 4 * i, (8 * i) if tile == 0 else SB + 16 * (i % 3), 'a' if tile == 0 else 'v')
    def K(i, tile): return sm(KA + 4 * tile, AF + 4 * i, (64 + 8 * i) if tile == 0 else SB + 16 * (i % 3) + 8, 'a' if tile == 0 else 'v')
    V = [sm(VA + 4 * tile, AF + 4 * i, 128 + tile * 64 + 8 * i, 'a') for i in range(8) for tile in range(2)]
    def afl(i):
        return 'buffer_load_dwordx4 v[%d:%d], v%d, %s, s%d offen offset:%d sc1' % (AF + 4 * i, AF + 4 * i + 3, aQ, S(WS), sRing, i * 1024)
    def afw(i):
        return 'ds_write_b128 v%d, v[%d:%d] offset:%d' % (aQ, AF + 4 * i, AF + 4 * i + 3, ST + i * 1024)
    A('L_c_loop%s:' % tag)
    ph(A, opt, 0)
    A.nop(DA)
    A(afl(0)); A(afl(1))
    ensure_kv(A)
    A('v_xor_b32 v1, s%d, v%d' % (sX1, aQ))
    A('v_xor_b32 v2, s%d, v%d' % (sX2, aQ))
    A('v_xor_b32 v3, s%d, v%d' % (sX3, aQ))
    A('L_c_r0%s:' % tag)
    A('s_waitcnt vmcnt(1) lgkmcnt(0)')
    ph(A, opt, 1)
    A('v_cmp_eq_u32 vcc, -1, v%d' % AF)
    A(Q(0, 0))
    A(afw(0))
    A(Q(0, 1))
    A('s_cbranch_vccnz L_c_x0%s' % tag)
    A(K(0, 0))
    A('L_c_r1%s:' % tag)
    A('s_waitcnt vmcnt(0)')
    A('v_cmp_eq_u32 vcc, -1, v%d' % (AF + 4))
    A(afw(1))
    A('s_nop 2')
    A('s_cbranch_vccnz L_c_x1%s' % tag)
    A(K(0, 1))
    A('buffer_store_dword v%d, v%d, %s, s%d offen sc1' % (vMem, aMRst, S(WS), sMH))
    A(Q(1, 0))
    A('buffer_load_dword v%d, v%d, %s, 0 offen sc1' % (vFlag, aPF, S(WS)))
    A(Q(1, 1))
    A(K(1, 0))
    A('s_waitcnt lgkmcnt(0)')
    A('s_barrier')
    rd = ['ds_read_b128 v[%d:%d], v%d offset:%d' % (AF + 4 * i, AF + 4 * i + 3, i // 2, ST + (i % 2) * 1024) for i in range(2, 8)]
    A(rd[0]); A(rd[1])
    weave(A, [K(1, 1)] + V[0:4], rd[2:] + sb_reads(3) + sb_reads(4)[:2], per=2)
    ph(A, opt, 2)
    SM, SX = AF, AF + 4
    KXF = [SB + 32, SB]
    QF = SB + 16
    def kx(tile):
        kb = KXF[tile]
        return ['ds_read_b128 v[%d:%d], v%d offset:%d' % (kb + 4 * ks, kb + 4 * ks + 3, aL, KB + tile * 4096 + ks * 1024) for ks in range(4)]
    A('s_waitcnt lgkmcnt(11)')
    weave(A, [Q(2, 0), Q(2, 1), K(2, 0), K(2, 1)], sb_reads(4)[2:] + [z64(SM), z64(SM + 2)], per=1)
    A('s_waitcnt lgkmcnt(4)')
    weave(A, [Q(3, 0), Q(3, 1), K(3, 0), K(3, 1)], sb_reads(5), per=1)
    A('s_waitcnt lgkmcnt(4)')
    weave(A, [Q(4, 0), Q(4, 1), K(4, 0), K(4, 1)], sb_reads(6), per=1)
    A('s_waitcnt lgkmcnt(4)')
    weave(A, [Q(5, 0), Q(5, 1), K(5, 0), K(5, 1)], sb_reads(7), per=1)
    A('s_waitcnt lgkmcnt(4)')
    weave(A, [Q(6, 0), Q(6, 1), Q(7, 0)], kx(0)[:3], per=1)
    A('s_waitcnt lgkmcnt(3)')
    A(Q(7, 1)); A(kx(0)[3])
    def padd(acc):
        r = []
        for tile in range(2):
            d = acc + 4 * tile
            r += ['v_add_f32 v%d, v%d, v%d' % (d, d, d + 2), 'v_add_f32 v%d, v%d, v%d' % (d + 1, d + 1, d + 3)]
        return r
    qp = padd(QA) + ['v_cvt_pk_bf16_f32 v%d, v%d, v%d' % (QA, QA, QA + 1), 'v_cvt_pk_bf16_f32 v%d, v%d, v%d' % (QA + 4, QA + 4, QA + 5),
                     'ds_write2_b32 v%d, v%d, v%d offset1:72' % (aQEw, QA, QA + 4)]
    kp = padd(KA) + ['v_cvt_pk_bf16_f32 v%d, v%d, v%d' % (KA + 2, KA, KA + 1), 'v_cvt_pk_bf16_f32 v%d, v%d, v%d' % (KA + 3, KA + 4, KA + 5),
                     'ds_write_b64 v%d, v[%d:%d]' % (aKEw, KA + 2, KA + 3)]
    k1 = kx(1)
    A(K(6, 1)); A(K(6, 0)); A(k1[0]); A(qp[0])
    A(K(7, 0)); A(k1[1]); A(qp[1])
    A(K(7, 1)); A(k1[2]); A(qp[2])
    ph(A, opt, 3)
    A(V[4]); A(k1[3])
    for x in qp[3:]:
        A(x)
    for x in kp:
        A(x)
    for x in V[5:8]:
        A(x)
    A('s_waitcnt lgkmcnt(0)')
    A('s_barrier')
    ph(A, opt, 4)
    KF = QA
    def qtr(ks): return ['ds_read_b64_tr_b16 v[%d:%d], v%d offset:%d' % (QF + 4 * ks + 2 * u, QF + 4 * ks + 2 * u + 1, aQEr, QE + ks * 576 + u * 32) for u in range(2)]
    def ktr(t): return ['ds_read_b64_tr_b16 v[%d:%d], v%d offset:%d' % (KF + 4 * t + 2 * u, KF + 4 * t + 2 * u + 1, aKEr, KE + t * 1152 + u * 32) for u in range(2)]
    trs = qtr(0) + qtr(1) + qtr(2) + qtr(3) + ktr(0) + ktr(1)
    for x in trs[:4]:
        A(x)
    weave(A, V[8:12], trs[4:], per=2)
    OCt = [AF + 12, AF + 16, AF + 20, AF + 24, AF + 28, KA, KA + 4, QA]
    VXF = SB + 32
    A('s_waitcnt lgkmcnt(10)')
    A(mm(SX, KXF[0], QF, True)); A(z64(OCt[5])); A(z64(OCt[5] + 2))
    A('s_waitcnt lgkmcnt(8)')
    A(mm(SX, KXF[0] + 4, QF + 4, False)); A(z64(OCt[6])); A(z64(OCt[6] + 2))
    A('s_waitcnt lgkmcnt(6)')
    A(mm(SX, KXF[0] + 8, QF + 8, False)); A(z64(OCt[0])); A(z64(OCt[0] + 2))
    A('s_waitcnt lgkmcnt(4)')
    A(mm(SX, KXF[0] + 12, QF + 12, False)); A(z64(OCt[1])); A(z64(OCt[1] + 2))
    A('s_waitcnt lgkmcnt(0)')
    A(sm(SM, KF, QF, 'v'))
    A('ds_read_b128 v[%d:%d], v%d offset:%d' % (VXF, VXF + 3, aQ, VB))
    A(sm(SM, KF + 4, QF + 8, 'v'))
    A('ds_read_b128 v[%d:%d], v%d offset:%d' % (VXF + 4, VXF + 7, aQ, VB + 1024))
    A(mm(SX + 4, KXF[1], QF, True)); A(z64(OCt[2])); A(z64(OCt[2] + 2))
    A(mm(SX + 4, KXF[1] + 4, QF + 4, False))
    A('v_max3_f32 v1, v%d, v%d, v%d' % (SX, SX + 1, SX + 2))
    A(mm(SX + 4, KXF[1] + 8, QF + 8, False))
    A('v_add_f32 v%d, v%d, v%d' % (SM, SM, SM + 2))
    A('v_add_f32 v%d, v%d, v%d' % (SM + 1, SM + 1, SM + 3))
    A(mm(SX + 4, KXF[1] + 12, QF + 12, False))
    ph(A, opt, 5)
    A('v_max_f32 v1, v1, v%d' % (SX + 3))
    A(V[12])
    A('v_max3_f32 v1, v1, v%d, v%d' % (SM, SM + 1))
    A(V[13])
    A('v_max3_f32 v1, v1, v%d, v%d' % (SX + 4, SX + 5))
    A('v_max3_f32 v3, v1, v%d, v%d' % (SX + 6, SX + 7))
    A('v_max3_f32 v1, v1, v%d, v%d' % (SX + 6, SX + 7))
    A(V[14])
    A('v_permlane16_swap_b32 v1, v3')
    A('v_max_f32 v2, v1, v3')
    A('v_max_f32 v1, v1, v3')
    A(V[15])
    A('v_permlane32_swap_b32 v1, v2')
    A('v_max_f32 v1, v1, v2')
    A('v_mul_f32 v1, s%d, v1' % sCA)
    PX, PM, ONE = SB, SB + 4, SB + 8
    OT, LS = SB + 16, SB + 24
    for i in range(2):
        A('v_fma_f32 v%d, v%d, s%d, -v1' % (SM + i, SM + i, sCA))
    for i in range(2):
        A('v_exp_f32 v%d, v%d' % (SM + i, SM + i))
    for i in range(8):
        A('v_fma_f32 v%d, v%d, s%d, -v1' % (SX + i, SX + i, sCA))
    A('v_cvt_pk_bf16_f32 v%d, v%d, v%d' % (PM, SM, SM + 1))
    A('v_mov_b32 v%d, 0' % (PM + 1))
    for x in padd(VA):
        A(x)
    for tile in range(2):
        d = VA + 4 * tile
        A('v_cvt_pk_bf16_f32 v%d, v%d, v%d' % (d, d, d + 1))
        A('v_mov_b32 v%d, 0' % (d + 1))
    A('v_mov_b32 v%d, s%d' % (ONE, sOne)); A('v_mov_b32 v%d, s%d' % (ONE + 1, sOne))
    def m16(d, a_):
        return 'v_mfma_f32_16x16x16_bf16 v[%d:%d], v[%d:%d], v[%d:%d], 0' % (d, d + 3, a_, a_ + 1, PM, PM + 1)
    E = ['v_exp_f32 v%d, v%d' % (SX + i, SX + i) for i in range(8)]
    C = ['v_cvt_pk_bf16_f32 v%d, v%d, v%d' % (PX + i, SX + 2 * i, SX + 2 * i + 1) for i in range(4)]
    A(E[0]); A(m16(OT, VA)); A(E[1]); A(E[2]); A(m16(OT + 4, VA + 4)); A(E[3]); A(E[4]); A(m16(LS, ONE)); A(E[5]); A(E[6]); A(E[7])
    A('v_mov_b32 v%d, s%d' % (ONE + 2, sOne)); A('v_mov_b32 v%d, s%d' % (ONE + 3, sOne))
    for x in C:
        A(x)
    A('s_waitcnt lgkmcnt(0)')
    A(mm(LS, ONE, PX, False)); A(z64(OCt[3])); A(z64(OCt[3] + 2))
    A(mm(OT, VXF, PX, False)); A(z64(OCt[4])); A(z64(OCt[4] + 2))
    A(mm(OT + 4, VXF + 4, PX, False)); A(z64(OCt[7])); A(z64(OCt[7] + 2))
    ph(A, opt, 6)
    A('v_rcp_f32 v2, v%d' % LS)
    G = SB + 40
    A('s_mov_b64 exec, s[%d:%d]' % (mOW, mOW + 1))
    for i in range(4):
        A('v_pk_mul_f32 v[%d:%d], v[%d:%d], v[2:3] op_sel_hi:[1,0]' % (OT + 2 * i, OT + 2 * i + 1, OT + 2 * i, OT + 2 * i + 1))
    for i in range(4):
        A('v_cvt_pk_bf16_f32 v%d, v%d, v%d' % (G + i, OT + 2 * i, OT + 2 * i + 1))
    A('ds_write_b128 v%d, v[%d:%d] offset:%d' % (aOEw, G, G + 3, OE))
    A('s_mov_b64 exec, -1')
    ph(A, opt, 7)
    d = dma_kv()
    for x in d[:3]:
        A(x)
    A('s_waitcnt lgkmcnt(0)')
    A('s_barrier')
    OA = SB
    A('ds_read_b128 v[%d:%d], v%d offset:%d' % (OA, OA + 3, aOEr, OE))
    A('ds_read_b128 v[%d:%d], v%d offset:%d' % (OA + 4, OA + 7, aOEr, OE + 1024))
    for x in d[3:]:
        A(x)
    A('s_waitcnt lgkmcnt(1)')
    ph(A, opt, 8)
    O = [[sm(OCt[j], OA + 4 * t, WOR(j, t), 'v') for t in range(2) for j in range(4 * hf, 4 * hf + 4)] for hf in range(2)]
    for x in O[0][:4]:
        A(x)
    A('s_waitcnt lgkmcnt(0)')
    for x in O[0][4:]:
        A(x)
    def opack(hf, pk):
        r = []; Gh = G + 4 * hf
        for j in range(4 * hf, 4 * hf + 4):
            d = OCt[j]
            if pk:
                r.append('v_pk_add_f32 v[%d:%d], v[%d:%d], v[%d:%d]' % (d, d + 1, d, d + 1, d + 2, d + 3))
            else:
                r += ['v_add_f32 v%d, v%d, v%d' % (d, d, d + 2), 'v_add_f32 v%d, v%d, v%d' % (d + 1, d + 1, d + 3)]
        for u in range(4):
            hi, b = u >> 1, u & 1
            j = 4 * hf + 2 * hi
            r.append('v_cvt_pk_bf16_f32 v%d, v%d, v%d' % (Gh + u, OCt[j] + b, OCt[j + 1] + b))
        r.append('v_bfi_b32 v%d, 1, s%d, v%d' % (Gh, sTag, Gh))
        r.append('buffer_store_dwordx4 v[%d:%d], v%d, %s, %s offen %s' % (Gh, Gh + 3, aPBst, S(WS), 's%d' % s32k if hf else '0', SC))
        return r
    weave(A, O[1], opack(0, False), per=[2, 2, 2, 2, 2, 2, 2, 0])
    p1 = opack(1, False)
    for x in p1[0:4] + [p1[8], p1[9], p1[12]] + p1[4:8] + [p1[10], p1[11], p1[13]]:
        A(x)
    ph(A, opt, 9)
    R = AF
    A.nop(DB)
    if DB2:
        lab = A.label('L_c_d')
        A('s_cmp_lt_u32 s%d, 2' % sWAVE)
        A('s_cbranch_scc1 %s' % lab)
        A.nop(DB2)
        A('%s:' % lab)
    def pb_loads():
        A('buffer_load_dwordx4 v[%d:%d], v%d, %s, s%d offen sc1' % (R, R + 3, aL, S(WS), sPBld))
        A('buffer_load_dwordx4 v[%d:%d], v%d, %s, s%d offen offset:1024 sc1' % (R + 4, R + 7, aL, S(WS), sPBld))
    pb_loads()
    for i in range(3):
        for x in sb_reads(i):
            A(x)
    for i in range(12):
        A(z64(QA + 2 * i))
    for r in (sRing, sRst):
        A('s_add_u32 s%d, s%d, s%d' % (r, r, s8k))
        A('s_cmp_eq_u32 s%d, s%d' % (r, sMRend))
        A('s_cselect_b32 s%d, %d, s%d' % (r, MR, r))
    A('s_add_u32 s%d, s%d, 1' % (sS, sS))
    A('s_add_u32 s%d, s%d, s%d' % (sKoff, sKoff, s256k))
    A('s_add_u32 s%d, s%d, s%d' % (sVoff, sVoff, s256k))
    A('s_add_u32 s%d, s%d, s%d' % (sMH, sMH, s8k))
    A('v_add_u32 v%d, v%d, v%d' % (aPF, vInc, aPF))
    A('v_mov_b32 v3, -1')
    D = R + 8
    A('L_c_pbc%s:' % tag)
    A('s_waitcnt vmcnt(1)')
    A(mm(D, vSel, R, True))
    A('v_xor_b32 v1, s%d, v%d' % (sTag, R))
    A('s_waitcnt vmcnt(0)')
    A(mm(D, vSel, R + 4, False))
    A('v_xor_b32 v2, s%d, v%d' % (sTag, R + 4))
    A('v_or_b32 v1, v1, v2')
    A('v_and_b32 v1, 1, v1')
    A('v_cmp_ne_u32 vcc, 0, v1')
    ph(A, opt, 10)
    for rot in (4, 8):
        A('v_add_f32_dpp v%d, v%d, v%d row_ror:%d row_mask:0xf bank_mask:0xf' % (D, D, D, rot))
        A('v_add_f32_dpp v%d, v%d, v%d row_ror:%d row_mask:0xf bank_mask:0xf' % (D + 1, D + 1, D + 1, rot))
        if rot == 4:
            A('s_cbranch_vccnz L_c_pbx%s' % tag)
    A('v_cvt_pk_bf16_f32 v%d, v%d, v%d' % (vMem, D, D + 1))
    A('v_min_u32 v%d, -2, v%d' % (vMem, vMem))
    A('buffer_store_dword v%d, v%d, %s, s%d offen %s' % (vMem, aMRst, S(WS), sRing, SC))
    A('buffer_store_dword v3, v%d, %s, s%d offen %s' % (aMRst, S(WS), sRst, SC))
    A('s_xor_b32 s%d, s%d, 1' % (sTag, sTag))
    ph(A, opt, 11)
    ph_acc(A, opt, 11, 57)
    A('s_cmp_lt_u32 s%d, 63' % sS)
    A('s_cbranch_scc1 L_c_loop%s' % tag)
    A('s_branch L_c_done')
    A('L_c_pbx%s:' % tag)
    spin_check(A)
    pb_loads()
    A('s_branch L_c_pbc%s' % tag)
    A('L_c_x0%s:' % tag)
    spin_check(A)
    A('s_waitcnt vmcnt(0) lgkmcnt(0)')
    A(afl(0)); A(afl(1))
    for i in range(4):
        A(z64(QA + 2 * i))
    A('s_branch L_c_r0%s' % tag)
    A('L_c_x1%s:' % tag)
    spin_check(A)
    A('s_waitcnt lgkmcnt(0)')
    A(afl(1))
    A('s_branch L_c_r1%s' % tag)

def chain(A, opt):
    n0 = len(A.lines)
    setup(A, opt)
    A('s_cmp_lg_u32 s57, 0')
    A('s_cbranch_scc1 L_c_start_s')
    loop(A, opt, '', '_f')
    loop(A, opt, 'sc1', '_s')
    A('L_c_done:')
    A('buffer_store_dword v%d, v%d, %s, s%d offen sc1' % (vMem, aMRst, S(WS), sMH))
    rt_stamp(A, opt, 3)
    ph_out(A, opt, 12)
    A('s_endpgm')
    ex = opt.get('exp', '')
    for i in range(n0, len(A.lines)):
        l = A.lines[i]
        if 'm' in ex and ('buffer_store_dword v%d, v%d, %s, s%d offen sc1' % (vMem, aMRst, S(WS), sMH)) in l:
            A.lines[i] = '  s_nop 0'
        if 'p' in ex and ('v_add_u32 v%d, v%d, v%d' % (aPF, vInc, aPF)) in l:
            A.lines[i] = '  s_nop 0'
        if 'p' in ex and ('s%d' % s256k) in l and 's_add_u32' in l:
            A.lines[i] = '  s_nop 0'
        if 'd' in ex and 'sc1 lds' in l:
            A.lines[i] = '  s_nop 0'
    if opt.get('free'):
        for i in range(n0, len(A.lines)):
            l = A.lines[i]
            if 's_cbranch_vccnz L_c_x' in l or 's_cbranch_vccnz L_c_pbx' in l:
                A.lines[i] = l.replace('s_cbranch_vccnz', 's_cbranch_cdbgsys')
```

```python
from common import *
from chain import wo_load, wo_fix, WOR, CA, ph, ph_init, ph_acc, ph_out
from chain3 import *
import chain3

def U(i): return SB + 8 * i
WQA, WQB, WOV = 128, 192, 208
def wo_res(j, t): return WOV + (j * 2 + t) * 8
aWS2 = 0
WO_L = [(j, t) for j in range(3, 8) for t in range(2)]
BLK_ORDER = [1, 3, 5, 0, 2, 4, 6, 7]
_order = [(4 * (blk & 1) + jj, blk >> 2, (blk >> 1) & 1) for blk in BLK_ORDER for jj in range(4) if 4 * (blk & 1) + jj >= 3]
def wo_cell(j, t, hb): return 12 + _order.index((j, t, hb))
def cell_ad(x):
    off = (x // 4) * 16384 + (x % 4) * 1024
    return (aWS, off) if off < 65536 else (aWS2, off - 65536)
def cell_rd(dst, x): return 'ds_read_b128 v[%d:%d], v%d offset:%d' % ((dst, dst + 3) + cell_ad(x))
def cell_wr(src, x):
    ad, off = cell_ad(x)
    return 'ds_write_b128 v%d, v[%d:%d] offset:%d' % (ad, src, src + 3, off)
def wo_rd(dst, j, t):
    return [cell_rd(dst + 4 * hb, wo_cell(j, t, hb)) for hb in range(2)]
def pre_reads():
    return [cell_rd(U(i) + 4 * hb, 2 * i + hb) for i in range(6) for hb in range(2)]

def load_weights(A, opt, ld, extra):
    mats = [WQ, WK, WV]
    RAW = {1: 208, 3: 224, 5: 240, 0: 20, 2: 36, 4: 108, 6: 52, 7: 68}
    TMP = 84
    def wl(blk):
        t, hb, half = blk >> 2, (blk >> 1) & 1, blk & 1
        for u in range(4):
            e0 = 64 * t + 32 * (u % 2) + 8 * hb + 2 * (u // 2)
            r = RAW[blk] + 4 * u
            A('s_mov_b32 s68, %d' % (e0 * 1024 + half * 128))
            A('buffer_load_dwordx2 v[%d:%d], v107, %s, s68 offen' % (r, r + 1, S(WO)))
            A('buffer_load_dwordx2 v[%d:%d], v107, %s, s68 offen offset:1024' % (r + 2, r + 3, S(WO)))
    def fix(blk):
        t, hb, half = blk >> 2, (blk >> 1) & 1, blk & 1
        for jj in range(4):
            j = 4 * half + jj
            d = wo_res(j, t) + 4 * hb if j < 3 else TMP + 4 * jj
            for u in range(4):
                r = RAW[blk] + 4 * u
                A('v_perm_b32 v%d, v%d, v%d, s%d' % (d + u, r + 2 + jj // 2, r + jj // 2, 62 if jj & 1 else 61))
            if j >= 3:
                A(cell_wr(d, wo_cell(j, t, hb)))
        A('s_waitcnt lgkmcnt(0)')
    DEP = int(opt.get('depth', 8))
    log = [('d', n) for n in range(DEP) for _ in range(4)] + [('x', 0)] * extra
    def wait_for(tag):
        last = max(i for i, t_ in enumerate(log) if t_ == tag)
        n = len(log) - 1 - last
        return min(n, 63)
    wl_at = {14: [1], 15: [3], 16: [5], 17: [0], 18: [2], 19: [4], 20: [6], 21: [7]}
    for n in range(24):
        m, c = n // 8, n % 8
        A('s_waitcnt vmcnt(%d) lgkmcnt(0)' % wait_for(('d', n)))
        if n == 8:
            arrive(A)
        else:
            A('s_barrier')
        nx_ = n + DEP - 1 if DEP == 8 else n + DEP
        if DEP <= nx_ <= 23:
            ld.dma(mats[nx_ // 8], nx_ % 8); log += [('d', nx_)] * 4
        end = A.label('L_c_tr')
        for w in range(4):
            nx = A.label('L_c_tr')
            if w < 3:
                A('s_cmp_lg_u32 s%d, %d' % (sWAVE, w))
                A('s_cbranch_scc1 %s' % nx)
            i = c ^ (2 * w)
            if m == 0:
                ld.tr(c, 0, 'v', WQA + 8 * i)
                ld.tr(c, 1, 'v', U(i) if i < 6 else WQB + 8 * (i - 6))
            else:
                for tile in range(2):
                    ld.tr(c, tile, 'a', (m - 1) * 128 + tile * 64 + 8 * i)
            if w < 3:
                A('s_branch %s' % end)
                A('%s:' % nx)
        A('%s:' % end)
        if n == int(opt.get('en', 10)) and opt.get('early', '1') == '0':
            A('v_mov_b32 v2, 0')
            A('v_mov_b32 v%d, 0' % vFlag)
        elif n == int(opt.get('en', 10)):
            A('v_mov_b32 v1, %d' % D_ARR)
            A('v_mov_b32 v%d, 0' % vFlag)
            A('s_mov_b64 exec, 1')
            A('buffer_load_dwordx2 v[2:3], v1, %s, 0 offen sc1' % S(DBG)); log += [('x', 1)]
            A('s_mov_b64 exec, -1')
        if n == 19:
            A('v_readfirstlane_b32 s57, v2')
            A('v_readfirstlane_b32 s58, v3')
            A('v_min_u32 v%d, -2, v%d' % (vMem, vMem))
            A('s_mov_b32 s66, 0')
            A('s_lshr_b32 s67, s57, 16')
            A('s_and_b32 s57, s57, 0xffff')
            A('s_cmp_lt_u32 s57, 32')
            A('s_cbranch_scc1 L_c_late')
            A('s_cmp_eq_u32 s58, 0')
            A('s_cbranch_scc1 L_c_late')
            A('s_cmp_lg_u32 s67, 0')
            A('s_cbranch_scc1 L_c_late')
            A('s_mov_b32 s66, 1')
            A('s_mov_b32 s57, %d' % MR)
            A('buffer_store_dword v%d, v%d, %s, s57 offen' % (vMem, aMRst, S(WS)))
            if opt.get('early', '1') == '1':
                A('s_mov_b32 exec_lo, 0')
                A('buffer_load_dword v%d, v%d, %s, 0 offen sc1' % (vFlag, aPF, S(WS)))
                A('s_mov_b32 exec_lo, -1')
            A('L_c_late:')
        if 17 <= n <= 19:
            for x in range(4 * (n - 17), 4 * (n - 17) + 4):
                A(cell_wr(SB + 4 * x, x))
        for blk in wl_at.get(n, []):
            wl(blk); log += [('w', blk)] * 8
        if n == 20:
            A('s_mov_b32 s61, 0x05040100')
            A('s_mov_b32 s62, 0x07060302')
        if n >= 20:
            todo = {20: [1], 21: [3], 22: [5], 23: [0, 2, 4, 6]}[n]
            for blk in todo:
                A('s_waitcnt vmcnt(%d)' % wait_for(('w', blk)))
                fix(blk)
    A('s_waitcnt vmcnt(0) lgkmcnt(0)')
    A('s_barrier')
    fix(7)
sLo, sRng, sOne2 = 96, 97, 98

def loop(A, opt, SC, tag):
    DB = int(opt.get('db', 0)); DA = int(opt.get('da', 0)); DB2 = int(opt.get('db2', 0)); DA1 = int(opt.get('da1', 0)); DA2 = int(opt.get('da2', 0))
    A('L_c_start%s:' % tag)
    A('s_mov_b32 s%d, 0' % sS)
    A('s_mov_b32 s%d, %d' % (sRing, MR))
    A('s_mov_b32 s%d, %d' % (sRst, MR + 2 * 8192))
    A('s_mov_b32 s%d, %d' % (sMRend, MR + 3 * 8192))
    A('s_mov_b32 s%d, 1' % sTag)
    A('s_mov_b32 s%d, 32' % sG1)
    A('s_mov_b32 s%d, 0' % sK1)
    A('s_mov_b32 s%d, 0x%x' % (sCA, f2u(CA)))
    A('s_lshl_b32 s%d, s%d, 13' % (sKoff, sIDX))
    A('s_add_u32 s%d, s%d, %d' % (sVoff, sKoff, VX))
    A('s_add_u32 s%d, s%d, %d' % (sKoff, sKoff, KX))
    A('s_mov_b32 s%d, %d' % (sMH, MH))
    A('s_mov_b32 s%d, 0x3f803f80' % sOne)
    A('s_mov_b32 s%d, 32768' % s32k)
    A('s_mov_b32 s%d, 2048' % sX1); A('s_mov_b32 s%d, 4096' % sX2); A('s_mov_b32 s%d, 6144' % sX3)
    A('s_mov_b32 s%d, 8192' % s8k)
    A('s_mov_b32 s%d, 262144' % s256k)
    lo, hi = f2u(2.0 ** -30), f2u(2.0 ** 30)
    if opt.get('forceslow'):
        lo, hi = f2u(2.0 ** 100), f2u(2.0 ** 101)
    A('s_mov_b32 s%d, 0x3f803f80' % sOne2); A('s_mov_b32 s%d, 0x3f803f80' % (sOne2 + 1))
    A('s_mov_b32 s%d, 0x%x' % (sLo, lo))
    A('s_mov_b32 s%d, 0x%x' % (sRng, hi - lo))
    ensure_kv(A)
    for x in dma_kv():
        A(x)
    A('s_add_u32 s%d, s%d, s%d' % (sKoff, sKoff, s256k))
    A('s_add_u32 s%d, s%d, s%d' % (sVoff, sVoff, s256k))
    ensure_kv(A)
    for x in pre_reads():
        A(x)
    for i in range(12):
        A(z64(QA + 2 * i))
    rt_stamp(A, opt, 2)
    ph_init(A, opt)
    def Qa(i): return sm(QA, AF + 4 * i, WQA + 8 * i, 'v')
    def Qb(i): return sm(QA + 4, AF + 4 * i, U(i) if i < 6 else WQB + 8 * (i - 6), 'v')
    def Ka(i): return sm(KA, AF + 4 * i, 8 * i, 'a')
    def Kb(i): return sm(KA + 4, AF + 4 * i, 64 + 8 * i, 'a')
    V = [sm(VA + 4 * tile, AF + 4 * i, 128 + tile * 64 + 8 * i, 'a') for i in range(8) for tile in range(2)]
    def afl(i):
        return 'buffer_load_dwordx4 v[%d:%d], v%d, %s, s%d offen offset:%d sc1' % (AF + 4 * i, AF + 4 * i + 3, aQ, S(WS), sRing, i * 1024)
    def afw(i):
        return 'ds_write_b128 v%d, v[%d:%d] offset:%d' % (aQ, AF + 4 * i, AF + 4 * i + 3, ST + i * 1024)
    def add(d, x, y): return 'v_add_f32 v%d, v%d, v%d' % (d, x, y)
    def cvt(d, x, y): return 'v_cvt_pk_bf16_f32 v%d, v%d, v%d' % (d, x, y)
    def ex(r): return 'v_exp_f32 v%d, v%d' % (r, r)
    A('L_c_loop%s:' % tag)
    ph(A, opt, 0)
    ensure_kv(A)
    A('v_xor_b32 v1, s%d, v%d' % (sX1, aQ))
    A('v_xor_b32 v2, s%d, v%d' % (sX2, aQ))
    A('v_xor_b32 v3, s%d, v%d' % (sX3, aQ))
    A.nop(DA)
    if DA2:
        lab = A.label('L_c_d')
        A('s_cmp_ge_u32 s%d, 2' % sWAVE)
        A('s_cbranch_scc1 %s' % lab)
        A.nop(DA2)
        A('%s:' % lab)
    A(afl(0))
    A.nop(DA1)
    A(afl(1))
    A('L_c_r0%s:' % tag)
    A('s_waitcnt vmcnt(1) lgkmcnt(0)')
    ph(A, opt, 1)
    A(afw(0))
    A('v_cmp_eq_u32 vcc, -1, v%d' % AF)
    A(Qb(0))
    A(Qa(0))
    A('s_cbranch_vccnz L_c_x0%s' % tag)
    A('s_waitcnt vmcnt(0)')
    A(afw(1))
    A('v_cmp_eq_u32 vcc, -1, v%d' % (AF + 4))
    A(Kb(0))
    A(Ka(0))
    A('s_cbranch_vccnz L_c_x1%s' % tag)
    A('L_c_r1%s:' % tag)
    A(Qb(1))
    A('s_waitcnt lgkmcnt(0)')
    A('s_barrier')
    rd = ['ds_read_b128 v[%d:%d], v%d offset:%d' % (AF + 4 * i, AF + 4 * i + 3, i // 2, ST + (i % 2) * 1024) for i in range(2, 8)]
    A(rd[0])
    A(Qa(1)); A(rd[1])
    A(Kb(1)); A(rd[2])
    A(Ka(1)); A(rd[3])
    A(V[0]); A(rd[4])
    A(V[1]); A(rd[5])
    ph(A, opt, 2)
    SM, SX = AF, AF + 4
    KXU = [0, 2]; QF = U(4); KF = QA
    def kx(tile):
        kb = U(KXU[tile])
        return ['ds_read_b128 v[%d:%d], v%d offset:%d' % (kb + 4 * ks, kb + 4 * ks + 3, aL, KB + tile * 4096 + ks * 1024) for ks in range(4)]
    for i in range(2, 8):
        A('s_waitcnt lgkmcnt(%d)' % (7 - i))
        A(Qb(i))
        if i == 2:
            A('buffer_store_dword v%d, v%d, %s, s%d offen sc1' % (vMem, aMRst, S(WS), sMH))
        if i == 4:
            A('buffer_load_dword v%d, v%d, %s, 0 offen sc1' % (vFlag, aPF, S(WS)))
    qb, qa = QA + 4, QA
    mul = lambda d: 'v_mul_f32 v%d, s%d, v%d' % (d, sCA, d)
    kk = kx(0) + kx(1)
    fq = [z64(SM), add(qb, qb, qb + 2), add(qb + 1, qb + 1, qb + 3), mul(qb), mul(qb + 1), cvt(qb, qb, qb + 1)]
    for i in range(2, 8):
        A(Qa(i)); A(kk.pop(0)); A(fq.pop(0))
    ph(A, opt, 3)
    kb_, ka_ = KA + 4, KA
    A(Kb(2)); A(kk.pop(0)); A(z64(SM + 2))
    A(Kb(3)); A(kk.pop(0)); A(add(qa, qa, qa + 2))
    A(Kb(4)); A(add(qa + 1, qa + 1, qa + 3))
    A(Kb(5)); A(mul(qa))
    A(Kb(6)); A(mul(qa + 1))
    A(Kb(7)); A(cvt(qa, qa, qa + 1))
    A(Ka(2)); A('ds_write2_b32 v%d, v%d, v%d offset1:72' % (aQEw, qa, qb))
    A(Ka(3)); A(add(kb_, kb_, kb_ + 2))
    A(Ka(4)); A(add(kb_ + 1, kb_ + 1, kb_ + 3))
    A(Ka(5)); A(cvt(kb_ + 3, kb_, kb_ + 1))
    A(Ka(6))
    A('s_waitcnt lgkmcnt(0)')
    A('s_barrier')
    def qtr(ks): return ['ds_read_b64_tr_b16 v[%d:%d], v%d offset:%d' % (QF + 4 * ks + 2 * u, QF + 4 * ks + 2 * u + 1, aQEr, QE + ks * 576 + u * 32) for u in range(2)]
    def ktr(t): return ['ds_read_b64_tr_b16 v[%d:%d], v%d offset:%d' % (KF + 4 * t + 2 * u, KF + 4 * t + 2 * u + 1, aKEr, KE + t * 1152 + u * 32) for u in range(2)]
    A(Ka(7)); A(qtr(0)[0]); A(qtr(0)[1])
    ph(A, opt, 4)
    X = [[mm(SX + 4 * tile, U(KXU[tile]) + 4 * ks, QF + 4 * ks, ks == 0) for ks in range(4)] for tile in range(2)]
    dk = dma_kv()
    A(V[2]); A(qtr(1)[0]); A(qtr(1)[1])
    A(V[3]); A(qtr(2)[0]); A(qtr(2)[1]); A(add(ka_, ka_, ka_ + 2))
    A(V[4]); A(qtr(3)[0]); A(qtr(3)[1]); A(add(ka_ + 1, ka_ + 1, ka_ + 3))
    A(V[5]); A(dk[0]); A(cvt(kb_ + 2, ka_, ka_ + 1))
    A('s_waitcnt lgkmcnt(6)')
    A(X[0][0]); A('ds_write_b64 v%d, v[%d:%d]' % (aKEw, kb_ + 2, kb_ + 3)); A(z64(KA))
    A('s_waitcnt lgkmcnt(5)')
    A(X[0][1]); A(dk[1]); A(z64(KA + 2))
    A('s_waitcnt lgkmcnt(3)')
    A(X[0][2]); A(z64(KA + 4))
    A('s_waitcnt lgkmcnt(1)')
    A(X[0][3]); A(dk[2])
    VXF, PX, PM = U(0), U(1), U(1) + 4
    OT, LS, ONE, G, OA = U(2), U(3), U(3) + 4, U(4), U(5)
    A(X[1][0])
    A('s_waitcnt lgkmcnt(0)')
    A('s_barrier')
    kt = ktr(0) + ktr(1)
    A(X[1][1]); A(kt[0]); A(kt[1]); A(ex(SX))
    A(X[1][2]); A(kt[2]); A(kt[3]); A(ex(SX + 1))
    A(X[1][3]); A('ds_read_b128 v[%d:%d], v%d offset:%d' % (VXF, VXF + 3, aQ, VB)); A(ex(SX + 2))
    ph(A, opt, 5)
    A(V[6]); A('ds_read_b128 v[%d:%d], v%d offset:%d' % (VXF + 4, VXF + 7, aQ, VB + 1024)); A(ex(SX + 3))
    A(V[7]); A('s_waitcnt lgkmcnt(2)'); A(ex(SX + 4))
    A(sm(SM, KF, QF, 'v')); A(ex(SX + 5))
    A(sm(SM, KF + 4, QF + 8, 'v')); A(ex(SX + 6))
    OCt = [KA, KA + 4, QA, QA + 4, AF, AF + 4, AF + 8, AF + 12]
    WU = [AF + 16, AF + 24, U(0), U(1), U(2), U(3), VA]
    one = lambda i: 'v_mov_b32 v%d, s%d' % (ONE + i, sOne)
    A(V[8]); A(ex(SX + 7))
    A(V[9]); A(add(SM, SM, SM + 2)); A(add(SM + 1, SM + 1, SM + 3))
    A(V[10]); A(ex(SM))
    A(V[11]); A(ex(SM + 1))
    w0 = wo_rd(WU[0], *WO_L[0])
    A(V[12]); A(w0[0]); A(cvt(PX, SX, SX + 1)); A(cvt(PX + 1, SX + 2, SX + 3))
    A(V[14]); A(w0[1]); A(cvt(PX + 2, SX + 4, SX + 5)); A(cvt(PX + 3, SX + 6, SX + 7))
    A(V[13]); A(cvt(PM, SM, SM + 1)); A('v_mov_b32 v%d, 0' % (PM + 1))
    A(V[15]); A('v_mov_b64 v[%d:%d], s[%d:%d]' % (ONE, ONE + 1, sOne2, sOne2 + 1)); A('v_mov_b64 v[%d:%d], s[%d:%d]' % (ONE + 2, ONE + 3, sOne2, sOne2 + 1))
    def m16(d, a_):
        return 'v_mfma_f32_16x16x16_bf16 v[%d:%d], v[%d:%d], v[%d:%d], v[%d:%d]' % (d, d + 3, a_, a_ + 1, PM, PM + 1, d, d + 3)
    va, vb = VA, VA + 4
    w1 = wo_rd(WU[1], *WO_L[1])
    A('s_waitcnt lgkmcnt(2)')
    A(mm(OT, VXF, PX, True)); A(add(va, va, va + 2)); A(add(va + 1, va + 1, va + 3))
    A(mm(LS, ONE, PX, True)); A(cvt(va, va, va + 1)); A('v_mov_b32 v%d, 0' % (va + 1))
    A(mm(OT + 4, VXF + 4, PX, True)); A(add(vb, vb, vb + 2)); A(add(vb + 1, vb + 1, vb + 3))
    A(m16(LS, ONE)); A(cvt(vb, vb, vb + 1)); A('v_mov_b32 v%d, 0' % (vb + 1))
    A(m16(OT, va)); A(w1[0]); A(z64(KA + 6)); A(z64(OCt[7]))
    A(m16(OT + 4, vb)); A(w1[1])
    ph(A, opt, 6)
    A('v_rcp_f32 v2, v%d' % LS)
    A('v_subrev_u32 v1, s%d, v%d' % (sLo, LS))
    A('v_cmp_lt_u32 vcc, s%d, v1' % sRng)
    A('L_c_norm%s:' % tag)
    for i in range(4):
        A('v_mul_f32 v%d, v%d, v2' % (OT + i, OT + i))
    GO = LS
    A(cvt(GO, OT, OT + 1)); A(cvt(GO + 1, OT + 2, OT + 3))
    A('ds_write_b64 v%d, v[%d:%d] offset:%d' % (aOEw, GO, GO + 1, OE))
    for i in (2, 3):
        A('v_pk_mul_f32 v[%d:%d], v[%d:%d], v[2:3] op_sel_hi:[1,0]' % (OT + 2 * i, OT + 2 * i + 1, OT + 2 * i, OT + 2 * i + 1))
    A(cvt(GO + 2, OT + 4, OT + 5)); A(cvt(GO + 3, OT + 6, OT + 7))
    A('ds_write_b64 v%d, v[%d:%d] offset:%d' % (aOEw, GO + 2, GO + 3, OE + 8))
    A('s_cbranch_vccnz L_c_slow%s' % tag)
    ph(A, opt, 7)
    for j in range(2, 7):
        A(z64(OCt[j])); A(z64(OCt[j] + 2))
    A(z64(OCt[7] + 2))
    A('s_waitcnt lgkmcnt(0)')
    A('s_barrier')
    A('ds_read_b128 v[%d:%d], v%d offset:%d' % (OA, OA + 3, aOEr, OE))
    A('ds_read_b128 v[%d:%d], v%d offset:%d' % (OA + 4, OA + 7, aOEr, OE + 1024))
    wr = []
    for k in range(2, 10):
        wr += wo_rd(WU[k % 7], *WO_L[k])
    A(wr[0]); A(dk[3]); A(wr[1])
    A('s_waitcnt lgkmcnt(3)')
    ph(A, opt, 8)
    def wreg(j, t):
        if j < 3:
            return wo_res(j, t)
        k = WO_L.index((j, t))
        return WU[k % 7]
    def O(j, t): return sm(OCt[j], OA + 4 * t, wreg(j, t), 'v')
    def hs(j): return [add(OCt[j], OCt[j], OCt[j] + 2), add(OCt[j] + 1, OCt[j] + 1, OCt[j] + 3)]
    def cv(hf, hi):
        j = 4 * hf + 2 * hi
        return [cvt(G + 4 * hf + 2 * hi + b, OCt[j] + b, OCt[j + 1] + b) for b in range(2)]
    bfi = lambda hf: 'v_bfi_b32 v%d, 1, s%d, v%d' % (G + 4 * hf, sTag, G + 4 * hf)
    st = lambda hf: 'buffer_store_dwordx4 v[%d:%d], v%d, %s, %s offen %s' % (G + 4 * hf, G + 4 * hf + 3, aPBst, S(WS), 's%d' % s32k if hf else '0', SC)
    A(O(3, 0)); A(wr[2])
    A('s_waitcnt lgkmcnt(3)')
    A(O(3, 1)); A(wr[3]); A(dk[4])
    A(O(2, 0)); A(wr[4]); A(dk[5])
    A(O(2, 1)); A(wr[5]); A(hs(3)[0])
    A(O(0, 0)); A(wr[6]); A(hs(3)[1])
    A(O(0, 1)); A(wr[7]); A(hs(2)[0])
    A(O(1, 0)); A(wr[8]); A(hs(2)[1])
    A(O(1, 1)); A(wr[9]); A(cv(0, 1)[0]); A(hs(0)[0])
    A('s_waitcnt lgkmcnt(6)')
    A(O(4, 0)); A(wr[10]); A(cv(0, 1)[1]); A(hs(0)[1])
    A(O(4, 1)); A(wr[11]); A(hs(1)[0]); A(hs(1)[1])
    A('s_waitcnt lgkmcnt(4)')
    A(O(5, 0)); A(wr[12]); A(cv(0, 0)[0]); A(cv(0, 0)[1]); A(bfi(0)); A(st(0))
    A(O(5, 1)); A(wr[13]); A(wr[14]); A(hs(4)[0])
    A('s_waitcnt lgkmcnt(3)')
    A(O(6, 0)); A(wr[15]); A(hs(4)[1])
    A(O(6, 1)); A(hs(5)[0])
    A('s_waitcnt lgkmcnt(2)')
    A(O(7, 0)); A(hs(5)[1])
    A('s_waitcnt lgkmcnt(0)')
    A(O(7, 1))
    for x in cv(1, 0) + [bfi(1)] + hs(6) + hs(7) + cv(1, 1) + [st(1)]:
        A(x)
    ph(A, opt, 9)
    R = AF
    hk = pre_reads() + [z64(QA + 2 * i) for i in range(12)]
    for r_ in (sRing, sRst):
        hk += ['s_add_u32 s%d, s%d, s%d' % (r_, r_, s8k), 's_cmp_eq_u32 s%d, s%d' % (r_, sMRend), 's_cselect_b32 s%d, %d, s%d' % (r_, MR, r_)]
    hk += ['s_add_u32 s%d, s%d, 1' % (sS, sS), 's_add_u32 s%d, s%d, s%d' % (sKoff, sKoff, s256k), 's_add_u32 s%d, s%d, s%d' % (sVoff, sVoff, s256k),
           's_add_u32 s%d, s%d, s%d' % (sMH, sMH, s8k), 'v_add_u32 v%d, v%d, v%d' % (aPF, vInc, aPF), 'v_mov_b32 v3, -1']
    def pb_loads():
        A('buffer_load_dwordx4 v[%d:%d], v%d, %s, s%d offen sc1' % (R, R + 3, aL, S(WS), sPBld))
        A('buffer_load_dwordx4 v[%d:%d], v%d, %s, s%d offen offset:1024 sc1' % (R + 4, R + 7, aL, S(WS), sPBld))
    H0 = int(opt.get('h0', 6)); H1 = int(opt.get('h1', len(hk)))
    la, lb = A.label('L_c_h'), A.label('L_c_h')
    for x in hk[:H0]:
        A(x)
    A('s_cmp_ge_u32 s%d, 2' % sWAVE)
    A('s_cbranch_scc1 %s' % la)
    pb_loads()
    A('%s:' % la)
    for x in hk[H0:H1]:
        A(x)
    A('s_cmp_lt_u32 s%d, 2' % sWAVE)
    A('s_cbranch_scc1 %s' % lb)
    A.nop(DB)
    pb_loads()
    A('%s:' % lb)
    for x in hk[H1:]:
        A(x)
    ph(A, opt, 10)
    D = R + 8
    A('L_c_pbc%s:' % tag)
    A('s_waitcnt vmcnt(1)')
    A(mm(D, vSel, R, True))
    A('v_xor_b32 v1, s%d, v%d' % (sTag, R))
    A('s_waitcnt vmcnt(0)')
    A(mm(D, vSel, R + 4, False))
    A('v_xor_b32 v2, s%d, v%d' % (sTag, R + 4))
    A('v_or_b32 v1, v1, v2')
    A('v_and_b32 v1, 1, v1')
    A('v_cmp_ne_u32 vcc, 0, v1')
    ph(A, opt, 11)
    for rot in (4, 8):
        A('v_add_f32_dpp v%d, v%d, v%d row_ror:%d row_mask:0xf bank_mask:0xf' % (D, D, D, rot))
        A('v_add_f32_dpp v%d, v%d, v%d row_ror:%d row_mask:0xf bank_mask:0xf' % (D + 1, D + 1, D + 1, rot))
        if rot == 4:
            A('s_cbranch_vccnz L_c_pbx%s' % tag)
    A('v_cvt_pk_bf16_f32 v%d, v%d, v%d' % (vMem, D, D + 1))
    A('v_min_u32 v%d, -2, v%d' % (vMem, vMem))
    A('buffer_store_dword v%d, v%d, %s, s%d offen %s' % (vMem, aMRst, S(WS), sRing, SC))
    A('buffer_store_dword v3, v%d, %s, s%d offen %s' % (aMRst, S(WS), sRst, SC))
    A('s_xor_b32 s%d, s%d, 1' % (sTag, sTag))
    ph(A, opt, 12)
    ph_acc(A, opt, 12, 57)
    A('s_cmp_lt_u32 s%d, 63' % sS)
    A('s_cbranch_scc1 L_c_loop%s' % tag)
    A('s_branch L_c_done')
    def cnt(i):
        if opt.get('stamp') == '2':
            A('s_add_u32 s%d, s%d, 62' % (chain3_ACC(i), chain3_ACC(i)))
    A('L_c_pbx%s:' % tag)
    spin_check(A); cnt(12)
    pb_loads()
    A('s_branch L_c_pbc%s' % tag)
    A('L_c_x0%s:' % tag)
    spin_check(A); cnt(13)
    A('s_waitcnt vmcnt(0) lgkmcnt(0)')
    A(afl(0)); A(afl(1))
    for i in range(4):
        A(z64(QA + 2 * i))
    A('s_branch L_c_r0%s' % tag)
    A('L_c_x1%s:' % tag)
    spin_check(A); cnt(14)
    A('s_waitcnt lgkmcnt(0)')
    A(afl(1))
    A('s_waitcnt vmcnt(0)')
    A(afw(1))
    A('v_cmp_eq_u32 vcc, -1, v%d' % (AF + 4))
    A('s_cbranch_vccnz L_c_x1%s' % tag)
    A('s_branch L_c_r1%s' % tag)
    A('L_c_slow%s:' % tag)
    T = OT
    A('s_sub_u32 s57, s%d, s%d' % (sKoff, s256k))
    A('s_waitcnt lgkmcnt(0)')
    for tile in range(2):
        for kp in range(2):
            for ks in range(2 * kp, 2 * kp + 2):
                A('buffer_load_dwordx4 v[%d:%d], v%d, %s, s57 offen offset:%d sc1' % (T + 4 * (ks % 2), T + 4 * (ks % 2) + 3, aL, S(WS), ks * 1024))
            A('s_waitcnt vmcnt(0)')
            for ks in range(2 * kp, 2 * kp + 2):
                A(mm(SX + 4 * tile, T + 4 * (ks % 2), QF + 4 * ks, ks == 0))
            A('s_nop 7')
        A('s_add_u32 s57, s57, 4096')
    A(z64(SM)); A(z64(SM + 2))
    A(sm(SM, KF, QF, 'v')); A(sm(SM, KF + 4, QF + 8, 'v'))
    A(add(SM, SM, SM + 2)); A(add(SM + 1, SM + 1, SM + 3))
    A('v_max3_f32 v1, v%d, v%d, v%d' % (SM, SM + 1, SX))
    for i in (1, 3, 5):
        A('v_max3_f32 v1, v1, v%d, v%d' % (SX + i, SX + i + 1))
    A('v_max_f32 v1, v1, v%d' % (SX + 7))
    for sw in ('16', '32'):
        A('v_mov_b32 v2, v1')
        A('v_permlane%s_swap_b32 v1, v2' % sw)
        A('v_max_f32 v1, v1, v2')
    for r_ in [SM, SM + 1] + [SX + i for i in range(8)]:
        A('v_sub_f32 v%d, v%d, v1' % (r_, r_))
        A(ex(r_))
    for i in range(4):
        A(cvt(PX + i, SX + 2 * i, SX + 2 * i + 1))
    A(cvt(PM, SM, SM + 1))
    A(mm(LS, ONE, PX, True)); A(m16(LS, ONE))
    A(mm(OT, VXF, PX, True)); A(m16(OT, va))
    A(mm(OT + 4, VXF + 4, PX, True)); A(m16(OT + 4, vb))
    A('v_rcp_f32 v2, v%d' % LS)
    A('s_mov_b64 vcc, 0')
    A('s_nop 7')
    A('s_branch L_c_norm%s' % tag)

def chain3_ACC(i):
    import chain
    return chain.ACCS[i]

def chain(A, opt):
    n0 = len(A.lines)
    setup(A, opt, load_weights)
    if opt.get('nt'):
        for i in range(n0, len(A.lines)):
            l = A.lines[i]
            if 'offen lds' in l:
                A.lines[i] = l.replace('offen lds', 'offen nt lds')
            elif 'buffer_load_dwordx2' in l:
                A.lines[i] = l + ' nt'
    if opt.get('nomem'):
        for i in range(n0, len(A.lines)):
            l = A.lines[i]
            if 'buffer_load_dwordx' in l:
                A.lines[i] = '  s_mov_b32 s99, 0x12345'
    A('s_cmp_lg_u32 s57, 0')
    A('s_cbranch_scc1 L_c_start_s')
    loop(A, opt, '', '_f')
    loop(A, opt, 'sc1', '_s')
    A('L_c_done:')
    A('buffer_store_dword v%d, v%d, %s, s%d offen sc1' % (vMem, aMRst, S(WS), sMH))
    rt_stamp(A, opt, 3)
    ph_out(A, opt, 15)
    A('s_endpgm')
    if 'probe' in opt:
        idx = [int(x) for x in opt['probe'].split(',')]
        k0 = A.lines.index('L_c_loop_f:')
        out = A.lines[:k0 + 1] + ['  s_memtime s[8:9]']; n = 0; j = 0
        k = k0 + 1
        lst = []
        while not A.lines[k].strip().startswith('s_cmp_lt_u32 s%d, 63' % sS):
            l = A.lines[k]; out.append(l); k += 1
            if l.endswith(':'):
                continue
            n += 1
            lst.append('%d %s' % (n, l.strip()))
            if n in idx:
                j += 1
                out.append('  s_memtime s[%d:%d]' % (8 + 2 * j, 9 + 2 * j))
        out.append('  s_waitcnt lgkmcnt(0)')
        for q in range(1, j + 1):
            out.append('  s_sub_u32 s57, s%d, s8' % (8 + 2 * q))
            out.append('  s_add_u32 s%d, s%d, s57' % (chain3_ACC(q - 1), chain3_ACC(q - 1)))
        A.lines[:] = out + A.lines[k:]
        open('probe_listing.txt', 'w').write('\n'.join(lst) + '\n')
    ex = opt.get('exp', '')
    for i in range(n0, len(A.lines)):
        l = A.lines[i]
        if 'm' in ex and ('buffer_store_dword v%d, v%d, %s, s%d offen sc1' % (vMem, aMRst, S(WS), sMH)) in l:
            A.lines[i] = '  s_nop 0'
        if 'p' in ex and ('v_add_u32 v%d, v%d, v%d' % (aPF, vInc, aPF)) in l:
            A.lines[i] = '  s_nop 0'
        if 'p' in ex and ('s%d' % s256k) in l and 's_add_u32' in l:
            A.lines[i] = '  s_nop 0'
        if 'd' in ex and 'sc1 lds' in l:
            A.lines[i] = '  s_nop 0'
        if opt.get('free') and ('s_cbranch_vccnz L_c_x' in l or 's_cbranch_vccnz L_c_pbx' in l or 's_cbranch_vccnz L_c_slow' in l):
            A.lines[i] = l.replace('s_cbranch_vccnz', 's_cbranch_cdbgsys')
```

```python
from asmlib import *
import hazard

FLG = 0x0000000
PB = 0x0100000
MR = 0x0180000
MH = 0x0200000
TS = 0x0300000
QX = 0x1000000
KX = 0x2000000
VX = 0x3000000
OP = 0x4000000
BK = 0x8000000
BV = 0x8200000
BO = 0x8400000
NA = 4
NB = 3
F_KV = FLG
F_OP = FLG + 128 * 128
F_BKV = FLG + 256 * 128
F_BO = FLG + 384 * 128
NFLAGS = 512
D_ARR = 56 * 4
D_CLR = 57 * 4
D_ERR = 58 * 4
D_OVF = 59 * 4
def d_cnt_off(x): return 0 if x == 0 else 64 + 4 * x

XA, MEM0, WQ, WK, WV, WO, XB, WQKV, BWO, OUT, DBG, WS = [8 + 4 * i for i in range(12)]
def S(r): return 's[%d:%d]' % (r, r + 3)
sXCC, sWAVE, sGRP, sIDX, sFOR = 3, 4, 5, 6, 7
sBUD = 56
LOG2E = 1.4426950408889634

import struct
def f2u(f): return struct.unpack('<I', struct.pack('<f', f))[0]

def spin_check(A):
    A('s_sub_u32 s%d, s%d, 1' % (sBUD, sBUD))
    A('s_cbranch_scc1 L_timeout')

def prologue(A, fake=None, warm='', wmode=3):
    A('s_cmp_ge_u32 s2, 256')
    A('s_cbranch_scc1 L_exit')
    A('s_load_dwordx16 s[64:79], s[0:1], 0')
    A('s_load_dwordx8 s[80:87], s[0:1], 64')
    A('s_load_dwordx2 s[88:89], s[0:1], 96')
    A('s_getreg_b32 s%d, hwreg(HW_REG_XCC_ID)' % sXCC)
    A('s_and_b32 s%d, s%d, 0xf' % (sXCC, sXCC))
    if fake == 'shift':
        pass
    if fake == 'ovf':
        A('s_mov_b32 s%d, 9' % sXCC)
    if fake == 'half':
        A('s_bitcmp1_b32 s2, 3')
        A('s_cselect_b32 s%d, 9, s%d' % (sXCC, sXCC))
    A('v_lshrrev_b32 v1, 6, v0')
    A('v_and_b32 v0, 63, v0')
    A('v_readfirstlane_b32 s%d, v1' % sWAVE)
    A('s_mov_b32 s%d, 0x400000' % sBUD)
    A('s_waitcnt lgkmcnt(0)')
    sizes = {XA: (64, 2048 * 512 * 2), MEM0: (66, 8192), WQ: (68, 1 << 22), WK: (70, 1 << 22), WV: (72, 1 << 22), WO: (74, 1 << 22),
             XB: (78, 2048 * 512 * 2), WQKV: (80, 512 * 1536 * 2), BWO: (82, 512 * 512 * 2), OUT: (84, 2048 * 1024 * 2), DBG: (86, 256), WS: (88, 1 << 28)}
    for r in (DBG, WS, XA, MEM0, WQ, WK, WV, WO, XB, WQKV, BWO, OUT):
        srd(A, r, sizes[r][0], sizes[r][1])
    A('s_cmp_lg_u32 s%d, 0' % sWAVE)
    A('s_cbranch_scc1 L_warm')
    A('s_and_b32 s57, s%d, 3' % sXCC)
    A('s_lshl_b32 s57, s57, 6')
    A('s_and_b32 s58, s%d, 12' % sXCC)
    A('s_add_u32 s57, s57, s58')
    A('v_mov_b32 v2, s57')
    A('v_mov_b32 v3, 1')
    A('s_mov_b64 exec, 1')
    A('buffer_atomic_add v3, v2, %s, 0 offen sc0' % S(DBG))
    A('s_waitcnt vmcnt(0)')
    A('s_mov_b64 exec, -1')
    A('v_readfirstlane_b32 s58, v3')
    A('s_lshl_b32 s59, s%d, 5' % sXCC)
    A('s_add_u32 s59, s59, s58')
    A('s_cmp_ge_u32 s58, 32')
    A('s_cbranch_scc1 L_ovf')
    A('s_cmp_ge_u32 s%d, 8' % sXCC)
    A('s_cbranch_scc0 L_role_done')
    A('L_ovf:')
    A('v_mov_b32 v2, %d' % D_OVF)
    A('v_mov_b32 v3, 1')
    A('s_mov_b64 exec, 1')
    A('buffer_atomic_add v3, v2, %s, 0 offen sc0' % S(DBG))
    A('s_waitcnt vmcnt(0)')
    A('s_mov_b64 exec, -1')
    A('v_readfirstlane_b32 s58, v3')
    A('v_and_b32 v2, 3, v0')
    A('v_lshlrev_b32 v2, 6, v2')
    A('v_and_b32 v3, 12, v0')
    A('v_add_u32 v2, v2, v3')
    A('L_ovf_wait:')
    spin_check(A)
    A('s_sleep 8')
    A('buffer_load_dword v3, v2, %s, 0 offen sc1' % S(DBG))
    A('s_waitcnt vmcnt(0)')
    A('s_mov_b32 s60, 0')
    for x in range(16):
        A('v_readlane_b32 s61, v3, %d' % x)
        A('s_add_u32 s60, s60, s61')
    A('s_cmp_lt_u32 s60, 256')
    A('s_cbranch_scc1 L_ovf_wait')
    A('s_mov_b32 s59, 0x1000')
    for x in range(8):
        lab = A.label('L_ovf_n')
        A('v_readlane_b32 s61, v3, %d' % x)
        A('s_min_u32 s61, s61, 32')
        A('s_sub_u32 s60, 32, s61')
        A('s_cmp_lt_u32 s58, s60')
        A('s_cbranch_scc0 %s' % lab)
        A('s_add_u32 s59, s61, s58')
        A('s_add_u32 s59, s59, %d' % (x * 32 + 0x10000))
        A('s_branch L_role_done')
        A('%s:' % lab)
        A('s_sub_u32 s58, s58, s60')
    A('L_role_done:')
    A('v_mov_b32 v2, 0')
    A('v_mov_b32 v3, s59')
    A('ds_write_b32 v2, v3')
    A('s_waitcnt lgkmcnt(0)')
    A('s_branch L_role_wait')
    A('L_warm:')
    if warm and wmode in (1, 2):
        A('s_cmp_eq_u32 s%d, 0' % sXCC)
        A('s_cbranch_scc1 L_role_wait')
        A('s_lshl_b32 s60, s2, 14')
        A('s_sub_u32 s61, s%d, 1' % sWAVE)
        A('s_mul_i32 s61, s61, 6144')
        A('s_add_u32 s60, s60, s61')
        A('v_lshlrev_b32 v1, 4, v0')
        A('v_add_u32 v1, s60, v1')
        A('v_xor_b32 v2, 0x4000, v1')
        for r in [dict(q=WQ, k=WK, v=WV, o=WO)[c] for c in warm]:
            for va in ((1, 2) if wmode == 2 else (1,)):
                for i in range(6):
                    if i == 4:
                        lab = A.label('L_w')
                        A('s_cmp_eq_u32 s%d, 3' % sWAVE)
                        A('s_cbranch_scc1 %s' % lab)
                        A('s_movk_i32 s61, 4096')
                    A('buffer_load_dwordx4 v[252:255], v%d, %s, %s offen offset:%d' % (va, S(r), '0' if i < 4 else 's61', (i % 4) * 1024))
                A('%s:' % lab)
    A('L_role_wait:')
    A('s_barrier')
    A('v_mov_b32 v2, 0')
    A('ds_read_b32 v3, v2')
    A('s_waitcnt lgkmcnt(0)')
    A('v_readfirstlane_b32 s59, v3')
    A('s_barrier')
    A('s_lshr_b32 s%d, s59, 16' % sFOR)
    A('s_bfe_u32 s%d, s59, 0x80005' % sGRP)
    A('s_and_b32 s%d, s59, 31' % sIDX)
    A('s_cmp_ge_u32 s%d, 8' % sGRP)
    A('s_cbranch_scc1 L_exit')
    if warm and wmode == 3:
        A('s_cmp_lt_u32 s%d, 5' % sGRP)
        A('s_cbranch_scc1 L_nowarm')
        A('s_sub_u32 s60, s%d, 5' % sGRP)
        A('s_lshl_b32 s60, s60, 5')
        A('s_add_u32 s60, s60, s%d' % sIDX)
        A('s_lshl_b32 s60, s60, 2')
        A('s_add_u32 s60, s60, s%d' % sWAVE)
        A('s_mul_i32 s60, s60, %d' % (11 * 1024))
        A('v_lshlrev_b32 v1, 4, v0')
        for r in [dict(q=WQ, k=WK, v=WV, o=WO)[c] for c in warm]:
            A('s_mov_b32 s61, s60')
            for i in range(11):
                A('buffer_load_dwordx4 v[252:255], v1, %s, s61 offen' % S(r))
                A('s_add_u32 s61, s61, 1024')
        A('L_nowarm:')

def epilogue(A):
    A('L_timeout:')
    A('s_mov_b64 exec, 1')
    A('v_mov_b32 v2, %d' % D_ERR)
    A('v_mov_b32 v3, s%d' % sGRP)
    A('v_add_u32 v3, 0x100, v3')
    A('buffer_store_dword v3, v2, %s, 0 offen sc1' % S(DBG))
    A('L_exit:')
    A('s_endpgm')

def wait_dbg_word(A, off, minval, vt, va, mask=None):
    lab = A.label('L_wd')
    A('v_mov_b32 v%d, %d' % (va, off))
    A('%s:' % lab)
    spin_check(A)
    A('buffer_load_dword v%d, v%d, %s, 0 offen sc1' % (vt, va, S(DBG)))
    A('s_waitcnt vmcnt(0)')
    A('v_readfirstlane_b32 s57, v%d' % vt)
    if mask is not None:
        A('s_and_b32 s58, s57, 0x%x' % mask)
        A('s_cmp_lt_u32 s58, %d' % minval)
    else:
        A('s_cmp_lt_u32 s57, %d' % minval)
    A('s_cbranch_scc1 %s' % lab)

class QKVLoader:
    def __init__(self, A, vg, va, vb, lds_base, stmp):
        self.A = A; self.vg = vg; self.va = va; self.vb = vb; self.base = lds_base; self.st = stmp
        A('v_lshrrev_b32 v1, 2, v0')
        A('v_lshlrev_b32 v1, 13, v1')
        A('v_and_b32 v2, 3, v0')
        A('v_lshrrev_b32 v3, 5, v0')
        A('v_lshlrev_b32 v3, 1, v3')
        A('v_xor_b32 v2, v2, v3')
        A('v_lshlrev_b32 v2, 4, v2')
        A('v_add_u32 v1, v1, v2')
        A('s_lshl_b32 s%d, s%d, 8' % (stmp, sIDX))
        A('s_lshl_b32 s%d, s%d, 6' % (stmp + 1, sWAVE))
        A('s_add_u32 s%d, s%d, s%d' % (stmp, stmp, stmp + 1))
        A('v_add_u32 v%d, s%d, v1' % (vg, stmp))
        A('s_lshl_b32 s%d, s%d, 15' % (stmp + 2, sWAVE))
        A('s_add_u32 s%d, s%d, %d' % (stmp + 2, stmp + 2, lds_base))
        A('v_lshrrev_b32 v1, 4, v0')
        A('v_lshlrev_b32 v2, 9, v1')
        A('v_bfe_u32 v3, v0, 2, 2')
        A('v_lshl_add_u32 v2, v3, 6, v2')
        A('v_and_b32 v3, 3, v0')
        A('v_lshl_add_u32 v2, v3, 3, v2')
        A('v_and_b32 v1, 1, v1')
        A('v_lshl_add_u32 v2, v1, 5, v2')
        A('v_add_u32 v%d, s%d, v2' % (va, stmp + 2))
        A('v_xor_b32 v%d, 32, v%d' % (vb, va))
    def dma(self, srd_, i):
        A = self.A; st = self.st
        A('s_add_u32 m0, s%d, %d' % (st + 2, i * 1024))
        A('s_mov_b32 s%d, %d' % (st + 3, i * 16 * 8192))
        A('buffer_load_dwordx4 v%d, %s, s%d offen lds' % (self.vg, S(srd_), st + 3))
    def tr(self, kind, dst, ks):
        for tile, ad in ((0, self.va), (1, self.vb)):
            for u in range(2):
                r = dst + tile * 64 + ks * 4 + 2 * u
                self.A('ds_read_b64_tr_b16 %s[%d:%d], v%d offset:%d' % (kind, r, r + 1, ad, ks * 2048 + u * 256))

def rt_stamp(A, opt, slot, vt=1):
    if not opt.get('stamp'):
        return
    A('s_memrealtime s[92:93]')
    A('s_lshl_b32 s90, s%d, 5' % sGRP)
    A('s_add_u32 s90, s90, s%d' % sIDX)
    A('s_lshl_b32 s90, s90, 2')
    A('s_add_u32 s90, s90, s%d' % sWAVE)
    A('s_lshl_b32 s90, s90, 8')
    if isinstance(slot, str):
        A('s_lshl_b32 s91, %s, 2' % slot)
        A('s_add_u32 s90, s90, s91')
        A('s_add_u32 s90, s90, %d' % TS)
    else:
        A('s_add_u32 s90, s90, %d' % (TS + slot * 4))
    A('s_waitcnt lgkmcnt(0)')
    A('v_mov_b32 v%d, s90' % vt)
    A('v_mov_b32 v%d, s92' % (vt + 1))
    A('s_mov_b64 exec, 1')
    A('buffer_store_dword v%d, v%d, %s, 0 offen' % (vt + 1, vt, S(WS)))
    A('s_mov_b64 exec, -1')

class RowLoader:
    def __init__(self, A, vg, va, base, st):
        self.A = A; self.vg = vg; self.va = va; self.base = base; self.st = st
        A('v_lshrrev_b32 v1, 4, v0')
        A('v_and_b32 v2, 15, v0')
        A('v_lshlrev_b32 v3, 1, v1')
        A('v_xor_b32 v2, v2, v3')
        A('v_lshlrev_b32 v2, 4, v2')
        A('v_lshl_add_u32 v2, v1, 13, v2')
        A('s_lshl_b32 s%d, s%d, 8' % (st, sIDX))
        A('s_lshl_b32 s%d, s%d, 17' % (st + 1, sWAVE))
        A('s_add_u32 s%d, s%d, s%d' % (st, st, st + 1))
        A('v_add_u32 v%d, s%d, v2' % (vg, st))
        A('v_xor_b32 v%d, 0x80, v%d' % (vg + 1, vg))
        A('s_lshl_b32 s%d, s%d, 12' % (st, sWAVE))
        A('s_add_u32 s%d, s%d, %d' % (st, st, base))
    def init_tr(self):
        A = self.A; va = self.va
        A('v_lshrrev_b32 v1, 4, v0')
        A('v_bfe_u32 v2, v0, 2, 2')
        A('v_lshl_add_u32 v3, v1, 3, v2')
        A('v_lshlrev_b32 v%d, 8, v3' % va)
        A('v_and_b32 v1, 1, v1')
        A('v_lshlrev_b32 v1, 3, v1')
        A('v_lshl_add_u32 v1, v2, 1, v1')
        A('v_bfe_u32 v2, v0, 1, 1')
        A('s_lshl_b32 s%d, s%d, 2' % (self.st + 1, sWAVE))
        A('v_add_u32 v2, s%d, v2' % (self.st + 1))
        A('v_xor_b32 v1, v1, v2')
        A('v_lshl_add_u32 v%d, v1, 4, v%d' % (va, va))
        A('v_and_b32 v1, 1, v0')
        A('v_lshl_add_u32 v%d, v1, 3, v%d' % (va, va))
        A('v_add_u32 v%d, %d, v%d' % (va, self.base, va))
        A('v_xor_b32 v%d, 32, v%d' % (va + 1, va))
        A('v_add_u32 v%d, 0x10000, v%d' % (va + 2, va))
        A('v_add_u32 v%d, 0x10000, v%d' % (va + 3, va + 1))
    def dma(self, srd_, c):
        A = self.A; st = self.st
        for j in range(4):
            A('s_add_u32 m0, s%d, %d' % (st, c * 16384 + j * 1024))
            A('s_mov_b32 s%d, %d' % (st + 1, (64 * c + 4 * j) * 8192))
            A('buffer_load_dwordx4 v%d, %s, s%d offen lds' % (self.vg + (j >> 1), S(srd_), st + 1))
    def tr(self, c, tile, kind, dst):
        for hb in range(2):
            for u in range(2):
                r = dst + 4 * hb + 2 * u
                self.A('ds_read_b64_tr_b16 %s[%d:%d], v%d offset:%d' % (kind, r, r + 1, self.va + tile + 2 * (c >> 2), (c & 3) * 16384 + hb * 8192 + u * 1024))
```

```python
import re

REG = re.compile(r'^(-|abs\()?([vas])(\d+)\)?$')
RNG = re.compile(r'^(-)?([vas])\[(\d+):(\d+)\]$')
TRANS = ('v_exp_', 'v_log_', 'v_rcp_', 'v_rsq_', 'v_sqrt_', 'v_sin_', 'v_cos_')

def regs(op):
    op = op.strip()
    m = REG.match(op)
    if m:
        return {(m.group(2), int(m.group(3)))}
    m = RNG.match(op)
    if m:
        return {(m.group(2), i) for i in range(int(m.group(3)), int(m.group(4)) + 1)}
    if op == 'vcc':
        return {('s', 106), ('s', 107)}
    if op in ('vcc_lo',):
        return {('s', 106)}
    if op in ('vcc_hi',):
        return {('s', 107)}
    if op == 'm0':
        return {('m', 0)}
    if op == 'exec':
        return {('x', 0)}
    return set()

class I:
    __slots__ = ('text', 'mn', 'ops', 'cls', 'wr', 'rd', 'passes', 'srcc', 'ab', 'dpp', 'ws', 'target', 'store_data', 'lds_dma', 'dst')
    def __init__(self, text):
        self.text = text
        t = text.split(';')[0].strip()
        p = t.split(None, 1)
        self.mn = mn = p[0]
        rest = p[1] if len(p) > 1 else ''
        ops = []; cur = ''; depth = 0
        for ch in rest:
            if ch in '[(':
                depth += 1
            if ch in '])':
                depth -= 1
            if ch == ',' and depth == 0:
                ops.append(cur.strip()); cur = ''
            else:
                cur += ch
        if cur.strip():
            ops.append(cur.strip())
        mods = ''
        if ops:
            last = ops[-1].split(None, 1)
            ops[-1] = last[0]
            mods = last[1] if len(last) > 1 else ''
        self.ops = ops
        self.wr = set(); self.rd = set(); self.passes = 0; self.srcc = set(); self.ab = set()
        self.dpp = False; self.ws = 1; self.target = None; self.store_data = set(); self.lds_dma = False
        self.dst = set()
        R = [regs(o) for o in ops]
        if mn.startswith('v_mfma') or mn.startswith('v_smfmac'):
            self.cls = 'mfma'
            self.passes = 8 if '32x32' in mn else 4
            self.wr = R[0]
            if mn.startswith('v_smfmac'):
                self.srcc = R[0]; self.ab = R[1] | R[2] | R[3]
            else:
                self.srcc = R[3]; self.ab = R[1] | R[2]
            self.rd = self.srcc | self.ab
        elif mn.startswith('v_'):
            self.cls = 'valu'
            self.dpp = ('dpp' in mn) or ('row_' in mods) or ('quad_perm' in mods)
            if mn.startswith('v_permlane') and 'swap' in mn:
                self.wr = R[0] | R[1]; self.rd = R[0] | R[1]
            elif mn in ('v_nop',):
                pass
            else:
                self.wr = R[0]
                k = 1
                if re.match(r'v_(add|sub|subrev|addc|subb)_co', mn):
                    self.wr |= R[1]; k = 2
                for r in R[k:]:
                    self.rd |= r
                if mn.startswith('v_fmac') or mn.startswith('v_pk_fmac') or self.dpp or mn.startswith('v_writelane') or mn.startswith('v_dot2c'):
                    self.rd |= R[0]
                if mn.startswith('v_cndmask') and len(ops) == 3:
                    self.rd |= regs('vcc')
        elif mn.startswith('buffer_') or mn.startswith('global_'):
            self.cls = 'vmem'
            allm = ' ' + mods + ' '
            if ' lds ' in allm:
                self.lds_dma = True
                for r in R:
                    self.rd |= r
            elif '_load' in mn:
                self.wr = R[0]; self.dst = R[0]
                for r in R[1:]:
                    self.rd |= r
            elif '_store' in mn or 'atomic' in mn:
                for r in R:
                    self.rd |= r
                if 'x4' in mn or 'x3' in mn:
                    self.store_data = R[0] if mn.startswith('buffer_') else R[1]
                if 'atomic' in mn and ' sc0 ' in allm:
                    self.wr = R[0]
            else:
                pass
        elif mn.startswith('ds_'):
            self.cls = 'ds'
            if 'read' in mn or 'permute' in mn or 'swizzle' in mn:
                self.wr = R[0]; self.dst = R[0]
                for r in R[1:]:
                    self.rd |= r
            else:
                for r in R:
                    self.rd |= r
        else:
            self.cls = 'salu'
            if mn == 's_nop':
                self.ws = int(ops[0], 0) + 1
            elif mn.startswith('s_cbranch') or mn == 's_branch':
                self.target = ops[0]
            elif mn.startswith('s_cmp') or mn.startswith('s_bitcmp') or mn in ('s_waitcnt', 's_barrier', 's_endpgm', 's_sleep', 's_setprio'):
                pass
            elif R:
                self.wr = R[0]

def vg(S):
    return {r for r in S if r[0] in 'va'}
def sg(S):
    return {r for r in S if r[0] == 's'}

def need(p, c):
    n = 0
    if p.cls == 'valu':
        w = vg(p.wr)
        if w:
            if c.cls == 'mfma' and (w & c.rd):
                n = max(n, 2)
            if c.cls == 'valu':
                if (c.mn.startswith('v_permlane') or c.dpp) and (w & c.rd):
                    n = max(n, 2)
                if (c.mn.startswith('v_readlane') or c.mn.startswith('v_readfirstlane')) and (w & c.rd):
                    n = max(n, 1)
                if (p.mn.startswith(TRANS) or p.mn.startswith('v_pk_')) and (w & c.rd):
                    n = max(n, 1)
            if p.mn.startswith(TRANS) and c.cls in ('vmem', 'ds') and (w & c.rd):
                n = max(n, 1)
        sw = sg(p.wr)
        if sw:
            if c.cls == 'valu' and (sw & c.rd):
                n = max(n, 4 if (c.mn.startswith('v_readlane') or c.mn.startswith('v_writelane')) else 2)
            if c.cls == 'vmem' and (sw & c.rd):
                n = max(n, 5)
            if c.cls == 'salu':
                rs = set()
                for o in c.ops:
                    rs |= regs(o)
                if sw & rs:
                    n = max(n, 1)
    elif p.cls == 'mfma':
        big = 12 if p.passes == 8 else 8
        if c.cls == 'mfma':
            if p.wr & c.ab:
                n = max(n, big)
            if p.wr & c.srcc:
                if not (p.wr == c.srcc and p.mn == c.mn):
                    n = max(n, 10 if p.passes == 8 else 6)
            elif p.wr & c.wr:
                n = max(n, 10 if p.passes == 8 else 6)
        elif c.cls == 'valu':
            if p.wr & (c.rd | c.wr):
                n = max(n, big)
            if p.srcc & c.wr:
                n = max(n, 7 if p.passes == 8 else 3)
        elif c.cls in ('vmem', 'ds'):
            if p.wr & (c.rd | c.wr):
                n = max(n, big)
    elif p.cls == 'vmem':
        if p.store_data and (p.store_data & c.wr):
            n = max(n, 2 if c.cls in ('valu', 'mfma') else 1)
    elif p.cls == 'salu':
        if ('m', 0) in p.wr and c.lds_dma:
            n = max(n, 1)
    return n

MAXD = 13
AGGR = True

def fix(lines):
    items = []
    for l in lines:
        t = l.strip()
        if not t or t.startswith(';') or t.startswith('.'):
            items.append(('x', l))
        elif t.endswith(':'):
            items.append(('l', t[:-1]))
        else:
            items.append(('i', I(t)))
    pad = [0] * len(items)
    incoming = {}
    ninserted = 0
    for iteration in range(4):
        changed = False
        state = []
        lastm = {}
        newinc = {}
        for k, (kind, it) in enumerate(items):
            if kind == 'x':
                continue
            if kind == 'l':
                lastm = {}
                merged = {}
                for st in [state] + incoming.get(it, []) + newinc.get(it, []):
                    for (p, d) in st:
                        if id(p) not in merged or merged[id(p)][1] > d:
                            merged[id(p)] = (p, d)
                state = list(merged.values())
                continue
            free = 0; dl = 1 << 30
            if it.cls == 'mfma' and AGGR:
                for (p, d) in state:
                    if p.cls == 'mfma' and id(p) == lastm.get('id'):
                        free = max(free, p.passes - 1 - d); dl = d
            req = 0
            for (p, d) in state:
                r = need(p, it) - d
                if r > req:
                    req = r
            if req > pad[k]:
                pad[k] = req; changed = True
            adv = pad[k] + it.ws
            adv2 = max(pad[k], free) + it.ws
            state = [(p, d + (adv2 if d >= dl else adv)) for (p, d) in state]
            state = [(p, d) for (p, d) in state if d < MAXD]
            if it.cls != 'salu' or ('m', 0) in it.wr:
                state.append((it, 0))
            if it.cls == 'mfma':
                lastm['id'] = id(it)
            if it.target is not None:
                newinc.setdefault(it.target, []).append(list(state))
            if it.mn in ('s_branch', 's_endpgm'):
                state = []
        incoming = newinc
        if not changed and iteration > 0:
            break
    out = []
    for k, (kind, it) in enumerate(items):
        if kind == 'x':
            out.append(it)
        elif kind == 'l':
            out.append(it + ':')
        else:
            n = pad[k]
            ninserted += n
            while n > 0:
                q = min(n, 16)
                out.append('  s_nop %d' % (q - 1))
                n -= q
            out.append('  ' + it.text)
    return out, ninserted
```

```python
import sys
from common import *
import aworker

def clear_flags(A):
    lab = A.label('L_noclr')
    A('s_cmp_lg_u32 s59, %d' % (5 * 32))
    A('s_cbranch_scc0 L_doclr')
    A('s_cmp_lg_u32 s59, %d' % (5 * 32 + 0x10000))
    A('s_cbranch_scc1 %s' % lab)
    A('L_doclr:')
    A('s_cmp_lg_u32 s%d, 3' % sWAVE)
    A('s_cbranch_scc1 %s' % lab)
    A('v_lshlrev_b32 v1, 7, v0')
    A('v_mov_b32 v2, 0')
    for i in range(NFLAGS // 64):
        A('s_mov_b32 s57, %d' % (FLG + i * 8192))
        A('buffer_store_dword v2, v1, %s, s57 offen sc1' % S(WS))
    A('s_waitcnt vmcnt(0)')
    A('v_mov_b32 v1, %d' % D_CLR)
    A('v_mov_b32 v2, 1')
    A('s_mov_b64 exec, 1')
    A('buffer_store_dword v2, v1, %s, 0 offen sc1' % S(DBG))
    A('s_mov_b64 exec, -1')
    A('%s:' % lab)

def build(opt):
    A = Asm()
    prologue(A, opt.get('fake'), opt.get('warm', 'qkvo').replace('-', ''), int(opt.get('wmode', 3)))
    rt_stamp(A, opt, 0)
    clear_flags(A)
    A('s_cmp_eq_u32 s%d, 0' % sGRP)
    A('s_cbranch_scc1 L_chain')
    A('s_cmp_ge_u32 s%d, 5' % sGRP)
    A('s_cbranch_scc1 L_bworker')
    aworker.p_phase(A, opt)
    if 'o' in opt['roles']:
        aworker.o_phase(A, opt)
    A('s_endpgm')
    if 'c' in opt['roles']:
        import chain9
        chain9.chain(A, opt)
    else:
        A('L_chain:')
        A('s_endpgm')
    if 'b' in opt['roles']:
        import bworker
        bworker.bworker(A, opt)
    else:
        A('L_bworker:')
        A('s_endpgm')
    epilogue(A)
    osc = opt.get('osc', 'sc1').replace('-', '').replace('_', ' ')
    A.lines = [l + ' ' + osc if ('buffer_store' in l and S(OUT) in l) else l for l in A.lines]
    lines, n = hazard.fix(A.lines)
    body = '\n'.join(lines) + '\n'
    return kernel_file([dict(name=NAME + '_kernel', body=body, grid=(256, 1, 1), block=(256, 1, 1), lds=163840, vgpr=512, accum=256)])

if __name__ == '__main__':
    out = sys.argv[1]
    opt = dict(roles=sys.argv[2])
    for kv in sys.argv[3:]:
        k, v_ = kv.split('=')
        opt[k] = v_
    open(out, 'w').write(build(opt))
```

```python
from common import *

def nseg_of_group(g):
    return len(range(g, 64, 3))

def p_phase(A, opt):
    A('L_aworker:')
    if 'p' not in opt['roles']:
        A('s_endpgm')
    A('s_and_b32 s60, s%d, 3' % sIDX)
    A('s_lshr_b32 s61, s%d, 2' % sIDX)
    A('s_sub_u32 s62, s%d, 1' % sGRP)
    A('s_lshl_b32 s62, s62, 3')
    A('s_add_u32 s%d, s61, s62' % sIDX)
    A('s_add_u32 s%d, s60, 1' % sGRP)
    ld = RowLoader(A, 104, 106, 32768, 64)
    mats = [(WK, 'a', 0), (WV, 'a', 128), (WQ, 'v', 128)]
    for c in range(8):
        ld.dma(mats[0][0], c)
    ld.init_tr()
    A('v_lshlrev_b32 v8, 4, v0')
    A('s_and_b32 s69, s%d, 1' % sWAVE)
    A('s_lshl_b32 s69, s69, 7')
    A('v_xor_b32 v110, s69, v8')
    for i in range(1, 8):
        A('v_xor_b32 v%d, %d, v110' % (110 + i, 16 * i))
    A('v_and_b32 v1, 15, v0')
    A('v_lshrrev_b32 v2, 4, v0')
    A('v_xor_b32 v2, v2, v1')
    A('v_lshlrev_b32 v2, 4, v2')
    A('v_lshl_add_u32 v4, v1, 10, v2')
    for q in range(1, 4):
        A('v_xor_b32 v%d, %d, v4' % (4 + q, 64 * q))
    A('s_lshl_b32 s68, s%d, 13' % sIDX)
    A('s_lshl_b32 s69, s%d, 10' % sWAVE)
    A('s_add_u32 s68, s68, s69')
    A('v_add_u32 v9, s68, v8')
    A('v_add_u32 v10, s69, v9')
    A('s_lshl_b32 s68, s60, 5')
    A('s_add_u32 s68, s68, s%d' % sIDX)
    A('s_lshl_b32 s68, s68, 7')
    A('v_mov_b32 v11, s68')
    A('s_lshl_b32 s70, s%d, 13' % sWAVE)
    def xdma1(sseg, sbuf, i):
        return ['s_add_u32 m0, s%d, %d' % (sbuf, i * 1024),
                's_add_u32 s69, s%d, %d' % (sseg, i * 1024),
                'buffer_load_dwordx4 v%d, %s, s69 offen lds' % (110 + i, S(XA))]
    A('s_lshl_b32 s71, s60, 15')
    A('s_add_u32 s71, s71, s70')
    for i in range(8):
        for x in xdma1(71, 70, i):
            A(x)
    for n in range(24):
        m, c = n // 8, n % 8
        young = 4 * (min(23, max(7, n + 6)) - n) + (8 if n < 8 else 0)
        A('s_waitcnt vmcnt(%d) lgkmcnt(0)' % young)
        A('s_barrier')
        if 1 <= n <= 16:
            ld.dma(mats[(n + 7) // 8][0], (n - 1) % 8)
        for tile in range(2):
            ld.tr(c, tile, mats[m][1], mats[m][2] + tile * 64 + 8 * c)
    A('s_waitcnt lgkmcnt(0)')
    wait_dbg_word(A, D_CLR, 1, 1, 2)
    rt_stamp(A, opt, 1)
    if opt.get('loadonly'):
        A('s_endpgm')
    A('s_mov_b32 s72, s60')
    A('s_mov_b32 s73, 0')
    A('s_mov_b32 s74, 32768')
    XF = 16
    ACC = 32
    PK = 80
    def acc(m, i, j): return ACC + m * 16 + (i * 2 + j) * 4
    A('s_mov_b32 s77, 0x40000000')
    def stores():
        r = []
        for m, base in ((0, KX), (2, VX), (1, QX)):
            for j in range(2):
                p = PK + (0 if m == 0 else (8 if m == 2 else 16)) + 4 * j
                r.append(['s_add_u32 s78, s77, %d' % (base + j * (1024 if m == 2 else 4096)),
                          'buffer_store_dwordx4 v[%d:%d], v%d, %s, s78 offen sc1' % (p, p + 3, 10 if m == 2 else 9, S(WS))])
        return r
    def cvts(m):
        r = []
        for j in range(2):
            p = PK + (0 if m == 0 else (8 if m == 2 else 16)) + 4 * j
            for i in range(2):
                d = acc(m, i, j)
                o0, o1 = (2 * i, 2 * i + 1) if m == 2 else (i, i + 2)
                r.append('v_cvt_pk_bf16_f32 v%d, v%d, v%d' % (p + o0, d, d + 1))
                r.append('v_cvt_pk_bf16_f32 v%d, v%d, v%d' % (p + o1, d + 2, d + 3))
        return r
    def pub():
        A('s_barrier')
        A('v_mov_b32 v12, s73')
        A('s_mov_b64 exec, 1')
        A('buffer_store_dword v12, v11, %s, 0 offen sc1' % S(WS))
        A('s_mov_b64 exec, -1')
    A('L_p_loop:')
    A('s_waitcnt vmcnt(1)')
    A('s_barrier')
    A('s_add_u32 s75, s72, 4')
    A('s_min_u32 s75, s75, 63')
    A('s_lshl_b32 s71, s75, 15')
    A('s_add_u32 s71, s71, s70')
    A('s_add_u32 s76, s74, s70')
    def rd(ks):
        b = XF + (ks & 1) * 8
        return ['ds_read_b128 v[%d:%d], v%d offset:%d' % (b + 4 * tt, b + 4 * tt + 3, 4 + ks % 4, tt * 16384 + (ks // 4) * 256) for tt in range(2)]
    for x in rd(0):
        A(x)
    st = stores()
    for ks in range(16):
        b = XF + (ks & 1) * 8
        M = []
        for m, (kind, base) in enumerate((('a', 0), ('v', 128))):
            for et in range(2):
                for tt in range(2):
                    d = acc(m, et, tt); wr = base + et * 64 + ks * 4
                    M.append('v_mfma_f32_16x16x32_bf16 v[%d:%d], %s[%d:%d], v[%d:%d], %s' % (d, d + 3, kind, wr, wr + 3, b + 4 * tt, b + 4 * tt + 3, '0' if ks == 0 else 'v[%d:%d]' % (d, d + 3)))
        for tt in range(2):
            for et in range(2):
                d = acc(2, tt, et); wr = 128 + et * 64 + ks * 4
                M.append('v_mfma_f32_16x16x32_bf16 v[%d:%d], v[%d:%d], a[%d:%d], %s' % (d, d + 3, b + 4 * tt, b + 4 * tt + 3, wr, wr + 3, '0' if ks == 0 else 'v[%d:%d]' % (d, d + 3)))
        F = [[] for _ in range(12)]
        if ks < 15:
            r = rd(ks + 1); F[0] = [r[0]]; F[1] = [r[1]]
        if ks < 3:
            F[3] = st[2 * ks]; F[7] = st[2 * ks + 1]
        elif ks < 11:
            F[4] = xdma1(71, 76, ks - 3)
        if ks == 15:
            c0, c1 = cvts(0), cvts(1)
            for q in range(4):
                F[5 + q] = c0[2 * q:2 * q + 2]
            for q in range(3):
                F[9 + q] = c1[2 * q:2 * q + 2]
            F[11] = F[11] + c1[6:] + cvts(2)
        A('s_waitcnt lgkmcnt(0)')
        for mi, f in zip(M, F):
            A(mi)
            for x in f:
                A(x)
        if ks == 13:
            A('s_waitcnt vmcnt(8)')
            pub()
    A('s_lshl_b32 s77, s72, 18')
    A('s_add_u32 s73, s73, 1')
    if opt.get('stamp'):
        A('s_add_u32 s89, s73, 8')
        rt_stamp(A, opt, 's89')
    for q in range(4):
        A('v_xor_b32 v%d, 0x8000, v%d' % (4 + q, 4 + q))
    A('s_xor_b32 s74, s74, 32768')
    A('s_add_u32 s72, s72, 4')
    A('s_cmp_lt_u32 s72, 64')
    A('s_cbranch_scc1 L_p_loop')
    for x in st:
        A(x[0]); A(x[1])
    A('s_waitcnt vmcnt(0)')
    pub()


def o_phase(A, opt):
    import chain
    WOR = chain.WOR
    ST, KE, OE, FB = 0, 8192, 12288, 32768
    CA = chain.CA
    vIdx, vSel = 4, 8
    aQ, aL, aF, aKEw, aKEr, aOEw, aG, aOPst, aOPld, aOut, aFl, aFlAll = 5, 6, 7, 12, 13, 14, 15, 16, 17, 18, 19, 20
    vNeg = 21
    R0, R1, R2, T = 24, 56, 88, 120
    mOdd, mC = 96, 80
    sK, sSeg, sFb, sM0 = 70, 71, 72, 73
    A('L_o_start:')
    rt_stamp(A, opt, 2)
    A('v_and_b32 v1, 15, v0')
    A('v_lshrrev_b32 v2, 4, v0')
    A('v_lshlrev_b32 v3, 12, v2')
    A('v_lshl_add_u32 v3, v1, 3, v3')
    A('s_lshl_b32 s61, s%d, 17' % sIDX)
    A('s_lshl_b32 s62, s%d, 8' % sWAVE)
    A('s_add_u32 s61, s61, s62')
    A('v_add_u32 v22, s61, v3')
    for blk in range(8):
        for u in range(4):
            chain.wo_load(A, 22, blk, u, dense=True)
    A('v_lshlrev_b32 v%d, 4, v0' % aL)
    A('s_lshl_b32 s61, s%d, 11' % sWAVE)
    A('v_add_u32 v%d, s61, v%d' % (aQ, aL))
    A('s_add_u32 s%d, s61, %d' % (sM0, FB))
    A('s_lshl_b32 s62, s%d, 13' % sIDX)
    A('v_add_u32 v%d, s62, v%d' % (aG, aQ))
    A('v_add_u32 v%d, %d, v%d' % (aF, FB, aL))
    A('v_bfe_u32 v3, v0, 1, 1')
    A('v_mov_b32 v%d, 0x4444' % vIdx)
    A('v_mov_b32 v26, 0xeeee')
    A('v_cmp_eq_u32 vcc, 1, v3')
    A('v_cndmask_b32 v%d, v%d, v26, vcc' % (vIdx, vIdx))
    A('v_and_b32 v29, 1, v0')
    A('v_mov_b32 v27, 0x3f80')
    A('v_mov_b32 v28, 0x3f800000')
    A('v_cmp_eq_u32 vcc, 1, v29')
    A('v_cndmask_b32 v27, v27, v28, vcc')
    A('v_lshrrev_b32 v26, 1, v1')
    for u in range(4):
        A('v_cmp_eq_u32 vcc, %d, v26' % u)
        A('v_cndmask_b32 v%d, 0, v27, vcc' % (vSel + u))
    A('v_lshlrev_b32 v27, 4, v1')
    A('v_lshl_add_u32 v27, v2, 2, v27')
    A('s_lshl_b32 s62, s%d, 9' % sWAVE)
    A('v_add_u32 v%d, s62, v27' % aKEw)
    A('v_bfe_u32 v27, v0, 3, 1')
    A('v_lshlrev_b32 v27, 8, v27')
    A('v_lshl_add_u32 v27, v2, 6, v27')
    A('v_bfe_u32 v28, v0, 2, 1')
    A('v_lshl_add_u32 v27, v28, 4, v27')
    A('v_lshl_add_u32 v%d, v3, 3, v27' % aKEr)
    A('v_lshlrev_b32 v27, 17, v2')
    A('v_lshl_add_u32 v27, v1, 4, v27')
    A('s_lshl_b32 s62, s%d, 10' % sIDX)
    A('s_lshl_b32 s63, s%d, 8' % sWAVE)
    A('s_add_u32 s62, s62, s63')
    A('v_add_u32 v%d, s62, v27' % aOPst)
    A('v_lshlrev_b32 v27, 10, v2')
    A('v_lshl_add_u32 v27, v1, 4, v27')
    A('s_lshl_b32 s62, s%d, 15' % sIDX)
    A('s_add_u32 s62, s62, s63')
    A('v_add_u32 v%d, s62, v27' % aOPld)
    A('v_lshlrev_b32 v27, 7, v2')
    A('v_lshl_add_u32 v27, v1, 3, v27')
    A('s_lshl_b32 s62, s%d, 11' % sIDX)
    A('s_add_u32 s62, s62, s63')
    A('v_add_u32 v%d, s62, v27' % aOut)
    A('s_lshl_b32 s62, s60, 12')
    A('s_add_u32 s62, s62, %d' % F_OP)
    A('v_and_b32 v27, 31, v0')
    A('v_lshlrev_b32 v27, 7, v27')
    A('v_add_u32 v%d, s62, v27' % aFlAll)
    A('s_lshl_b32 s63, s%d, 7' % sIDX)
    A('s_add_u32 s62, s62, s63')
    A('v_mov_b32 v%d, s62' % aFl)
    A('v_mov_b32 v%d, 0x%x' % (vNeg, f2u(-1e30)))
    A('s_mov_b32 s%d, 0xffff0000' % mOdd); A('s_mov_b32 s%d, 0xffff0000' % (mOdd + 1))
    A('v_lshlrev_b32 v27, 2, v2')
    for rho in range(4):
        A('v_add_u32 v28, %d, v27' % rho)
        A('v_cmp_le_u32 s[%d:%d], v28, v1' % (mC + 2 * rho, mC + 2 * rho + 1))
    A('s_mov_b32 s79, 0x%x' % f2u(CA))
    A('s_mov_b32 s61, 0x05040100')
    A('s_mov_b32 s62, 0x07060302')
    for blk in range(8):
        A('s_waitcnt vmcnt(%d)' % (56 - 8 * blk))
        chain.wo_fix(A, blk, 48, 61, 62)
    wait_dbg_word(A, D_ARR, 32, 1, 2, mask=0xffff)
    def prefetch(sseg):
        A('s_lshl_b32 s61, s%d, 18' % sseg)
        for i, base in enumerate((QX, KX, VX)):
            A('s_add_u32 s62, s61, %d' % base)
            A('s_add_u32 m0, s%d, %d' % (sM0, i * 8192))
            A('buffer_load_dwordx4 v%d, %s, s62 offen sc1 lds' % (aG, S(WS)))
            A('buffer_load_dwordx4 v%d, %s, s62 offen offset:1024 sc1 lds' % (aG, S(WS)))
        A('s_xor_b32 s%d, s%d, %d' % (sM0, sM0, 32768 ^ 65536))
    def pub_flag():
        A('v_mov_b32 v1, s%d' % sK)
        A('s_mov_b64 exec, 1')
        A('buffer_store_dword v1, v%d, %s, 0 offen sc1' % (aFl, S(WS)))
        A('s_mov_b64 exec, -1')
    def red_issue():
        lp = A.label('L_o_fw')
        A('%s:' % lp)
        spin_check(A)
        A('buffer_load_dword v1, v%d, %s, 0 offen sc1' % (aFlAll, S(WS)))
        A('s_waitcnt vmcnt(0)')
        A('v_cmp_gt_u32 vcc, s%d, v1' % sK)
        A('s_cbranch_vccnz %s' % lp)
        A('s_sub_u32 s61, s%d, 4' % sSeg)
        A('s_lshl_b32 s61, s61, 20')
        A('s_add_u32 s61, s61, %d' % OP)
        for i in range(8):
            A('buffer_load_dwordx4 v[%d:%d], v%d, %s, s61 offen sc1' % (R2 + 4 * i, R2 + 4 * i + 3, aOPld, S(WS)))
            if i < 7:
                A('s_add_u32 s61, s61, 4096')
    def red_finish(D):
        for i in range(8):
            A('v_mfma_f32_16x16x32_bf16 v[%d:%d], v[%d:%d], v[%d:%d], %s' % (D, D + 3, vSel, vSel + 3, R2 + 4 * i, R2 + 4 * i + 3, '0' if i == 0 else 'v[%d:%d]' % (D, D + 3)))
        A('s_sub_u32 s61, s%d, 4' % sSeg)
        A('s_lshl_b32 s61, s61, 16')
        A('v_cvt_pk_bf16_f32 v%d, v%d, v%d' % (D, D, D + 1))
        A('v_cvt_pk_bf16_f32 v%d, v%d, v%d' % (D + 1, D + 2, D + 3))
        A('s_mov_b32 exec_hi, 0')
        A('buffer_store_dwordx2 v[%d:%d], v%d, %s, s61 offen' % (D, D + 1, aOut, S(OUT)))
        A('s_mov_b64 exec, -1')
    A('s_barrier')
    A('s_mov_b32 s%d, 0' % sK)
    A('s_mov_b32 s%d, s60' % sSeg)
    prefetch(sSeg)
    rt_stamp(A, opt, 3)
    sDone = 74
    KA, VA = R2, R2 + 8
    SM = [R2, R2 + 4]; SX0 = [R2 + 24, R2 + 28]; SX1 = R2 + 16
    AF = R0; QF = R1
    def smma(d, ab, qt):
        for ks in range(4):
            A('v_mfma_f32_16x16x32_bf16 v[%d:%d], v[%d:%d], v[%d:%d], %s' % (d, d + 3, ab + 4 * ks, ab + 4 * ks + 3, QF + 16 * qt + 4 * ks, QF + 16 * qt + 4 * ks + 3, '0' if ks == 0 else 'v[%d:%d]' % (d, d + 3)))
    def mem_ld():
        A('buffer_load_dwordx4 v[%d:%d], v%d, %s, s63 offen sc1' % (T, T + 3, aQ, S(WS)))
        A('buffer_load_dwordx4 v[%d:%d], v%d, %s, s63 offen offset:1024 sc1' % (T + 4, T + 7, aQ, S(WS)))
    def mem_chk():
        A('s_waitcnt vmcnt(0)')
        A('v_max3_u32 v1, v%d, v%d, v%d' % (T, T + 1, T + 2))
        A('v_max3_u32 v2, v%d, v%d, v%d' % (T + 3, T + 4, T + 5))
        A('v_max3_u32 v1, v1, v%d, v%d' % (T + 6, T + 7))
        A('v_max_u32 v1, v1, v2')
        A('v_cmp_eq_u32 vcc, -1, v1')
    A('L_o_loop:')
    A('s_lshl_b32 s63, s%d, 13' % sSeg)
    A('s_add_u32 s63, s63, %d' % MH)
    mem_ld()
    A('s_waitcnt vmcnt(2)')
    A('s_barrier')
    pub_flag()
    for i in range(8):
        A('ds_read_b128 v[%d:%d], v%d offset:%d' % (QF + 4 * i, QF + 4 * i + 3, aF, 1024 * i))
    for i in range(8):
        if i == 6:
            A('s_waitcnt lgkmcnt(6)')
        A('ds_read_b128 v[%d:%d], v%d offset:%d' % (R0 + 4 * i, R0 + 4 * i + 3, aF, 8192 + 1024 * i))
    A('s_cmp_eq_u32 s%d, 0' % sK)
    A('s_cselect_b32 s%d, 1, 0' % sDone)
    A('s_waitcnt vmcnt(1)')
    A('v_max3_u32 v1, v%d, v%d, v%d' % (T, T + 1, T + 2))
    A('v_max3_u32 v2, v%d, v%d, v%d' % (T + 3, T + 4, T + 5))
    A('v_max3_u32 v1, v1, v%d, v%d' % (T + 6, T + 7))
    A('v_max_u32 v1, v1, v2')
    A('v_cmp_eq_u32 s[76:77], -1, v1')
    A('s_cmp_eq_u64 s[76:77], 0')
    A('s_cbranch_scc1 L_o_pre')
    A('s_cmp_eq_u32 s%d, 1' % sDone)
    A('s_cbranch_scc1 L_o_pre')
    red_issue()
    A('s_waitcnt vmcnt(0)')
    red_finish(T)
    A('s_mov_b32 s%d, 1' % sDone)
    A('L_o_pre:')
    A('s_waitcnt lgkmcnt(0)')
    smma(SX1, R0 + 16, 1)
    smma(SX0[0], R0, 0)
    smma(SX0[1], R0, 1)
    for i in range(8):
        A('v_mov_b64 v[%d:%d], 0' % (KA + 2 * i, KA + 2 * i + 1))
    for d in (SX1, SX0[0]):
        for rho in range(4):
            A('v_cndmask_b32 v%d, v%d, v%d, s[%d:%d]' % (d + rho, vNeg, d + rho, mC + 2 * rho, mC + 2 * rho + 1))
    A('s_cmp_eq_u64 s[76:77], 0')
    A('s_cbranch_scc1 L_o_got')
    A('L_o_pa:')
    spin_check(A)
    mem_ld()
    mem_chk()
    A('s_cbranch_vccz L_o_got')
    A('s_sleep %d' % int(opt.get('osl', 2)))
    A('s_branch L_o_pa')
    A('L_o_got:')
    A('ds_write_b128 v%d, v[%d:%d] offset:%d' % (aQ, T, T + 3, ST))
    A('ds_write_b128 v%d, v[%d:%d] offset:%d' % (aQ, T + 4, T + 7, ST + 1024))
    A('s_waitcnt lgkmcnt(0)')
    A('s_barrier')
    for t in range(8):
        A('ds_read_b128 v[%d:%d], v%d offset:%d' % (AF + 4 * t, AF + 4 * t + 3, aL, ST + 1024 * t))
    def kv(m, acc, t):
        for tile in range(2):
            b = m * 128 + tile * 64 + t * 8
            A('v_smfmac_f32_16x16x64_bf16 v[%d:%d], v[%d:%d], a[%d:%d], v%d' % (acc + 4 * tile, acc + 4 * tile + 3, AF + 4 * t, AF + 4 * t + 3, b, b + 7, vIdx))
    for t in range(8):
        A('s_waitcnt lgkmcnt(%d)' % (7 - t))
        kv(0, KA, t)
    kv(1, VA, 0)
    for tile in range(2):
        d = KA + 4 * tile
        A('v_add_f32 v%d, v%d, v%d' % (d, d, d + 2))
        A('v_add_f32 v%d, v%d, v%d' % (d + 1, d + 1, d + 3))
        A('v_cvt_pk_bf16_f32 v%d, v%d, v%d' % (d, d, d + 1))
    A('ds_write_b32 v%d, v%d offset:%d' % (aKEw, KA, KE))
    A('ds_write_b32 v%d, v%d offset:%d' % (aKEw, KA + 4, KE + 256))
    for t in range(1, 4):
        kv(1, VA, t)
    A('s_waitcnt lgkmcnt(0)')
    A('s_barrier')
    KF = R0
    for t in range(4, 8):
        kv(1, VA, t)
        ks = t - 4
        for u in range(2):
            A('ds_read_b64_tr_b16 v[%d:%d], v%d offset:%d' % (KF + 4 * ks + 2 * u, KF + 4 * ks + 2 * u + 1, aKEr, KE + ks * 512 + u * 32))
    A('s_waitcnt lgkmcnt(0)')
    smma(SM[0], KF, 0)
    smma(SM[1], KF, 1)
    for tile in range(2):
        d = VA + 4 * tile
        A('v_add_f32 v%d, v%d, v%d' % (d, d, d + 2))
        A('v_add_f32 v%d, v%d, v%d' % (d + 1, d + 1, d + 3))
        A('v_cvt_pk_bf16_f32 v%d, v%d, v%d' % (d + 2, d, d + 1))
        A('v_cndmask_b32 v%d, v%d, 0, s[%d:%d]' % (d, d + 2, mOdd, mOdd + 1))
        A('v_cndmask_b32 v%d, 0, v%d, s[%d:%d]' % (d + 1, d + 2, mOdd, mOdd + 1))
    VXF = R0 + 24
    A('s_lshl_b32 s61, s%d, 11' % sWAVE)
    A('v_add_u32 v3, s61, v%d' % aF)
    A('ds_read_b128 v[%d:%d], v3 offset:%d' % (VXF, VXF + 3, 16384))
    A('ds_read_b128 v[%d:%d], v3 offset:%d' % (VXF + 4, VXF + 7, 16384 + 1024))
    A('v_xor_b32 v%d, %d, v%d' % (aF, 32768 ^ 65536, aF))
    PX = [R1, R1 + 4]; PM = [R1 + 8, R1 + 10]; RL = [R1 + 12, R1 + 13]
    OT = R0 + 8
    for qt in range(2):
        xs = [SX0[qt] + i for i in range(4)] + ([SX1 + i for i in range(4)] if qt else [])
        ms = [SM[qt] + i for i in range(4)]
        al = ms + xs
        A('v_max3_f32 v1, v%d, v%d, v%d' % tuple(al[:3]))
        k = 3
        while k + 1 < len(al):
            A('v_max3_f32 v1, v1, v%d, v%d' % (al[k], al[k + 1])); k += 2
        if k < len(al):
            A('v_max_f32 v1, v1, v%d' % al[k])
        chain.xred(A, 'v_max_f32', 1, 2)
        A('v_mul_f32 v1, s79, v1')
        for r in al:
            A('v_fma_f32 v%d, v%d, s79, -v1' % (r, r))
        for r in al:
            A('v_exp_f32 v%d, v%d' % (r, r))
        for i in range(4):
            if 2 * i < len(xs):
                A('v_cvt_pk_bf16_f32 v%d, v%d, v%d' % (PX[qt] + i, xs[2 * i], xs[2 * i + 1]))
            else:
                A('v_mov_b32 v%d, 0' % (PX[qt] + i))
        for i in range(2):
            A('v_cvt_pk_bf16_f32 v%d, v%d, v%d' % (PM[qt] + i, ms[2 * i], ms[2 * i + 1]))
        if qt == 0:
            A('s_waitcnt lgkmcnt(0)')
        for et in range(2):
            d = OT + (et * 2 + qt) * 4
            A('v_mfma_f32_16x16x32_bf16 v[%d:%d], v[%d:%d], v[%d:%d], 0' % (d, d + 3, VXF + 4 * et, VXF + 4 * et + 3, PX[qt], PX[qt] + 3))
        for et in range(2):
            d = OT + (et * 2 + qt) * 4
            A('v_mfma_f32_16x16x16_bf16 v[%d:%d], v[%d:%d], v[%d:%d], v[%d:%d]' % (d, d + 3, VA + 4 * et, VA + 4 * et + 1, PM[qt], PM[qt] + 1, d, d + 3))
        A('v_add_f32 v1, v%d, v%d' % (ms[0], ms[1]))
        A('v_add_f32 v2, v%d, v%d' % (ms[2], ms[3]))
        A('v_add_f32 v1, v1, v2')
        A('v_mul_f32 v1, 0.5, v1')
        for r in xs:
            A('v_add_f32 v1, v1, v%d' % r)
        chain.xred(A, 'v_add_f32', 1, 2)
        A('v_rcp_f32 v%d, v1' % RL[qt])
    for qt in range(2):
        for et in range(2):
            d = OT + (et * 2 + qt) * 4
            for i in range(4):
                A('v_mul_f32 v%d, v%d, v%d' % (d + i, d + i, RL[qt]))
            A('v_cvt_pk_bf16_f32 v%d, v%d, v%d' % (T + 4 * qt + 2 * et, d, d + 1))
            A('v_cvt_pk_bf16_f32 v%d, v%d, v%d' % (T + 4 * qt + 2 * et + 1, d + 2, d + 3))
        A('ds_write_b128 v%d, v[%d:%d] offset:%d' % (aQ, T + 4 * qt, T + 4 * qt + 3, OE + 1024 * qt))
    A('s_waitcnt lgkmcnt(0)')
    A('s_barrier')
    OA = R1
    for tt in range(2):
        for ks in range(4):
            b = OA + 16 * tt + 4 * ks
            A('ds_read_b128 v[%d:%d], v%d offset:%d' % (b, b + 3, aL, OE + 2048 * ks + 1024 * tt))
    A('s_cmp_eq_u32 s%d, 1' % sDone)
    A('s_cbranch_scc1 L_o_nored')
    red_issue()
    A('L_o_nored:')
    A('s_add_u32 s63, s%d, 4' % sSeg)
    A('s_min_u32 s63, s63, 63')
    prefetch(63)
    A('s_waitcnt lgkmcnt(0)')
    A('s_lshl_b32 s63, s%d, 20' % sSeg)
    A('s_add_u32 s63, s63, %d' % OP)
    OC = R0
    for tt in range(2):
        for ks in range(4):
            for j in range(8):
                d = OC + 4 * j; wr = WOR(j, ks // 2) + 4 * (ks % 2); b = OA + 16 * tt + 4 * ks
                A('v_mfma_f32_16x16x32_bf16 v[%d:%d], v[%d:%d], v[%d:%d], %s' % (d, d + 3, b, b + 3, wr, wr + 3, '0' if ks == 0 else 'v[%d:%d]' % (d, d + 3)))
        for rho in range(4):
            G = T + 4 * (rho & 1)
            for u in range(4):
                A('v_cvt_pk_bf16_f32 v%d, v%d, v%d' % (G + u, OC + 8 * u + rho, OC + 8 * u + 4 + rho))
            A('s_add_u32 s61, s63, %d' % ((16 * tt + rho) * 32768))
            A('buffer_store_dwordx4 v[%d:%d], v%d, %s, s61 offen sc1' % (G, G + 3, aOPst, S(WS)))
    A('s_cmp_eq_u32 s%d, 1' % sDone)
    A('s_cbranch_scc1 L_o_nored2')
    A('s_waitcnt vmcnt(14)')
    red_finish(R1)
    A('L_o_nored2:')
    if opt.get('stamp'):
        A('s_add_u32 s89, s70, 32')
        rt_stamp(A, opt, 's89')
    A('s_add_u32 s%d, s%d, 1' % (sK, sK))
    A('s_add_u32 s%d, s%d, 4' % (sSeg, sSeg))
    A('s_cmp_lt_u32 s%d, 64' % sSeg)
    A('s_cbranch_scc1 L_o_loop')
    A('s_waitcnt vmcnt(0)')
    A('s_barrier')
    pub_flag()
    red_issue()
    A('s_waitcnt vmcnt(0)')
    red_finish(R1)
    rt_stamp(A, opt, 4)
```

```python
from common import *
from chain import wo_load, wo_fix, WOR, CA, ph, ph_init, ph_acc, ph_out

ST, QE, KE, OE, KB, VB, WSB = 0, 8192, 10496, 12800, 16384, 24576, 32768
vIdx, aPBst, aMRst, aQ, aL, aWS, aQEw, aQEr, aKEw, aKEr, aOEw, aOEr, vMem, vFlag, aPF, vInc = range(4, 20)
AF = 20
SB = 52
QA, KA, VA = 100, 108, 116
vSel = 124
sS, sRing, sRst, sTag, sG1, sK1, sC, sPBld, sCA, sM0K, sM0V = 70, 71, 72, 73, 74, 75, 77, 76, 79, 69, 59
sKoff, sVoff, sMH, sOne, s32k, sX1, sX2, sX3, s8k, s256k, sMRend = 60, 61, 62, 63, 64, 65, 66, 67, 68, 78, 58
mOW = 100
def sm(d, a_, b, kind):
    return 'v_smfmac_f32_16x16x64_bf16 v[%d:%d], v[%d:%d], %s[%d:%d], v%d' % (d, d + 3, a_, a_ + 3, kind, b, b + 7, vIdx)
def mm(d, a_, b, first):
    return 'v_mfma_f32_16x16x32_bf16 v[%d:%d], v[%d:%d], v[%d:%d], %s' % (d, d + 3, a_, a_ + 3, b, b + 3, '0' if first else 'v[%d:%d]' % (d, d + 3))
def z64(r):
    return 'v_mov_b64 v[%d:%d], 0' % (r, r + 1)

def weave(A, main, fill, per=1):
    fill = list(fill)
    for i, m in enumerate(main):
        A(m)
        k = per[i] if isinstance(per, (list, tuple)) else per
        for _ in range(k):
            if fill:
                A(fill.pop(0))
    for f in fill:
        A(f)

def arrive(A):
    A('s_barrier')
    A('s_cmp_lg_u32 s%d, 0' % sWAVE)
    A('s_cbranch_scc1 L_c_noarr')
    A('s_lshl_b32 s61, s%d, 16' % sFOR)
    A('s_add_u32 s61, s61, 1')
    A('v_mov_b32 v108, s61')
    A('v_mov_b32 v109, %d' % D_ARR)
    A('s_mov_b64 exec, 1')
    A('buffer_atomic_add v108, v109, %s, 0 offen' % S(DBG))
    A('s_mov_b64 exec, -1')
    A('L_c_noarr:')

def setup(A, opt, loader):
    A('L_chain:')
    A('s_setprio 3')
    if opt.get('cw', '0') == '1':
        A('s_getpc_b64 s[60:61]')
        A('v_lshlrev_b32 v1, 7, v0')
        A('s_lshl_b32 s62, s%d, 13' % sWAVE)
        A('v_add_u32 v1, s62, v1')
        A('global_load_dword v251, v1, s[60:61]')
    if opt.get('tlb', '0') == '1':
        A('v_lshlrev_b32 v1, 17, v0')
        A('s_lshl_b32 s62, s%d, 23' % sWAVE)
        A('s_add_u32 s62, s62, %d' % KX)
        A('buffer_load_dword v250, v1, %s, s62 offen sc1' % S(WS))
    ld = RowLoader(A, 100, 102, WSB, 64)
    for c in range(int(opt.get('depth', 8))):
        ld.dma(WQ, c)
    ld.init_tr()
    A('v_and_b32 v1, 15, v0')
    A('v_lshrrev_b32 v2, 4, v0')
    A('v_bfe_u32 v3, v0, 1, 1')
    A('v_and_b32 v28, 3, v0')
    A('v_and_b32 v29, 1, v0')
    A('v_and_b32 v30, 1, v2')
    A('v_lshrrev_b32 v31, 1, v2')
    A('v_lshrrev_b32 v26, 2, v1')
    A('v_lshlrev_b32 v%d, 4, v0' % aL)
    A('s_lshl_b32 s60, s%d, 11' % sWAVE)
    A('v_add_u32 v%d, s60, v%d' % (aQ, aL))
    A('s_add_u32 s%d, s60, %d' % (sM0K, KB))
    A('s_add_u32 s%d, s60, %d' % (sM0V, VB))
    A('v_add_u32 v%d, s64, v%d' % (aWS, aL))
    A('v_mov_b32 v%d, 0x4444' % vIdx)
    A('v_mov_b32 v27, 0xeeee')
    A('v_cmp_eq_u32 vcc, 1, v3')
    A('v_cndmask_b32 v%d, v%d, v27, vcc' % (vIdx, vIdx))
    A('v_mov_b32 v27, 0')
    A('v_mov_b32 v32, 0x3f80')
    A('v_cmp_eq_u32 vcc, 0, v28')
    A('v_cndmask_b32 v27, v27, v32, vcc')
    A('v_mov_b32 v32, 0x3f800000')
    A('v_cmp_eq_u32 vcc, 1, v28')
    A('v_cndmask_b32 v27, v27, v32, vcc')
    for u in range(4):
        A('v_cmp_eq_u32 vcc, %d, v26' % u)
        A('v_cndmask_b32 v%d, 0, v27, vcc' % (vSel + u))
    A('v_lshl_add_u32 v27, v26, 2, v2')
    A('v_lshlrev_b32 v27, 11, v27')
    A('v_lshl_add_u32 v27, v28, 4, v27')
    A('s_lshl_b32 s61, s%d, 16' % sWAVE)
    A('s_lshl_b32 s62, s%d, 6' % sIDX)
    A('s_add_u32 s61, s61, s62')
    A('s_add_u32 s61, s61, %d' % PB)
    A('v_add_u32 v%d, s61, v27' % aPBst)
    A('s_and_b32 s61, s%d, 1' % sWAVE)
    A('s_lshl_b32 s61, s61, 5')
    A('s_add_u32 s61, s61, s%d' % sIDX)
    A('s_lshr_b32 s62, s61, 4')
    A('s_lshl_b32 s62, s62, 5')
    A('s_and_b32 s61, s61, 15')
    A('s_add_u32 s61, s61, s62')
    A('s_lshr_b32 s62, s%d, 1' % sWAVE)
    A('s_lshl_b32 s62, s62, 4')
    A('s_add_u32 s%d, s61, s62' % sC)
    A('s_lshl_b32 s61, s%d, 11' % sC)
    A('s_add_u32 s%d, s61, %d' % (sPBld, PB))
    A('v_lshlrev_b32 v27, 4, v2')
    A('v_lshl_add_u32 v27, v28, 2, v27')
    A('s_lshl_b32 s61, s%d, 6' % sC)
    A('v_add_u32 v%d, s61, v27' % aMRst)
    A('v_mov_b32 v33, 0x80000000')
    A('v_cmp_lt_u32 vcc, 3, v1')
    A('v_cndmask_b32 v%d, v%d, v33, vcc' % (aMRst, aMRst))
    A('v_lshlrev_b32 v27, 4, v1')
    A('v_lshl_add_u32 v27, v2, 2, v27')
    A('s_mul_i32 s61, s%d, 576' % sWAVE)
    A('s_add_u32 s62, s61, %d' % QE)
    A('v_add_u32 v%d, s62, v27' % aQEw)
    A('v_lshrrev_b32 v27, 1, v26')
    A('v_mul_u32_u24 v27, 288, v27')
    A('v_lshl_add_u32 v27, v2, 6, v27')
    A('v_and_b32 v32, 1, v26')
    A('v_lshl_add_u32 v27, v32, 4, v27')
    A('v_lshl_add_u32 v%d, v3, 3, v27' % aQEr)
    A('v_mul_u32_u24 v27, 288, v30')
    A('v_lshl_add_u32 v27, v31, 7, v27')
    A('v_lshl_add_u32 v27, v1, 3, v27')
    A('s_add_u32 s62, s61, %d' % KE)
    A('v_add_u32 v%d, s62, v27' % aKEw)
    A('v_mul_u32_u24 v27, 576, v31')
    A('v_mul_u32_u24 v32, 288, v29')
    A('v_add_u32 v27, v27, v32')
    A('v_lshl_add_u32 v27, v3, 7, v27')
    A('v_lshl_add_u32 v27, v30, 6, v27')
    A('v_lshl_add_u32 v%d, v26, 3, v27' % aKEr)
    A('v_lshrrev_b32 v27, 3, v1')
    A('v_lshl_add_u32 v27, v27, 2, v28')
    A('v_lshlrev_b32 v27, 4, v27')
    A('v_lshl_add_u32 v27, v2, 7, v27')
    A('s_lshl_b32 s61, s%d, 9' % sWAVE)
    A('v_add_u32 v%d, s61, v27' % aOEw)
    A('v_lshl_add_u32 v27, v26, 1, v29')
    A('v_lshlrev_b32 v27, 4, v27')
    A('v_lshl_add_u32 v27, v2, 7, v27')
    A('v_lshl_add_u32 v%d, v3, 9, v27' % aOEr)
    A('v_and_b32 v27, 31, v0')
    A('v_lshlrev_b32 v27, 6, v27')
    A('v_add_u32 v27, s60, v27')
    A('v_add_u32 v%d, 262144, v27' % aPF)
    A('v_add_u32 v27, %d, v27' % (VX - KX + 262144))
    A('v_cmp_lt_u32 vcc, 31, v0')
    A('v_cndmask_b32 v%d, v%d, v27, vcc' % (aPF, aPF))
    A('s_mov_b32 s%d, 0x0f0f0f0f' % mOW); A('s_mov_b32 s%d, 0x0f0f0f0f' % (mOW + 1))
    A('s_and_b32 s61, s%d, 3' % sC)
    A('s_lshl_b32 s61, s61, 11')
    A('s_lshr_b32 s62, s%d, 2' % sC)
    A('s_lshl_b32 s62, s62, 5')
    A('s_add_u32 s61, s61, s62')
    A('v_lshlrev_b32 v27, 10, v30')
    A('v_lshl_add_u32 v27, v28, 3, v27')
    A('v_lshl_add_u32 v27, v31, 2, v27')
    A('v_add_u32 v27, s61, v27')
    A('buffer_load_dword v%d, v27, %s, 0 offen' % (vMem, S(MEM0)))
    A('v_lshlrev_b32 v27, 14, v30')
    A('v_lshl_add_u32 v27, v31, 12, v27')
    A('v_lshl_add_u32 v27, v1, 3, v27')
    A('s_lshl_b32 s61, s%d, 17' % sIDX)
    A('s_lshl_b32 s62, s%d, 8' % sWAVE)
    A('s_add_u32 s61, s61, s62')
    A('v_add_u32 v107, s61, v27')
    A('v_lshrrev_b32 v27, 2, v0')
    A('v_lshlrev_b32 v27, 13, v27')
    A('v_lshl_add_u32 v27, v28, 4, v27')
    A('s_lshl_b32 s61, s%d, 6' % sC)
    A('v_add_u32 v106, s61, v27')
    A('v_add_u32 v0, 0x10000, v%d' % aWS)
    for i in range(4):
        A('v_mov_b32 v%d, 0' % (108 + i))
        A('v_mov_b32 v%d, -1' % (112 + i))
    A('buffer_store_dwordx4 v[108:111], v%d, %s, 0 offen sc1' % (aPBst, S(WS)))
    A('s_mov_b32 s61, 32768')
    A('buffer_store_dwordx4 v[108:111], v%d, %s, s61 offen sc1' % (aPBst, S(WS)))
    for i in range(4):
        A('s_mov_b32 s61, %d' % (MH + i * 16 * 8192))
        A('buffer_store_dwordx4 v[112:115], v106, %s, s61 offen sc1' % S(WS))
    A('s_mov_b64 exec, 0xfff')
    A('s_mov_b32 s61, %d' % MR)
    A('buffer_store_dwordx4 v[112:115], v106, %s, s61 offen sc1' % S(WS))
    A('s_mov_b64 exec, -1')
    loader(A, opt, ld, 8)
    rt_stamp(A, opt, 1)
    if opt.get('loadonly'):
        A('s_endpgm')
    A('s_mov_b32 s57, s67')
    A('s_cmp_eq_u32 s66, 1')
    A('s_cbranch_scc1 L_c_ready')
    wait_dbg_word(A, D_CLR, 1, 1, 2)
    wait_dbg_word(A, D_ARR, 32, 1, 2, mask=0xffff)
    A('s_mov_b32 s58, %d' % MR)
    A('buffer_store_dword v%d, v%d, %s, s58 offen sc1' % (vMem, aMRst, S(WS)))
    A('s_lshr_b32 s57, s57, 16')
    A('L_c_ready:')

def flag_load():
    return 'buffer_load_dword v%d, off, %s, s%d sc1' % (vFlag, S(WS), sG1)

def ensure_kv(A):
    ok = A.label('L_kv_ok'); lp = A.label('L_kv_lp')
    A('%s:' % lp)
    A('v_readfirstlane_b32 s57, v%d' % vFlag)
    A('s_cmp_gt_u32 s57, s%d' % sK1)
    A('s_cbranch_scc1 %s' % ok)
    spin_check(A)
    A(flag_load())
    A('s_waitcnt vmcnt(0)')
    A('s_branch %s' % lp)
    A('%s:' % ok)
    A('v_mov_b32 v%d, 0' % vFlag)
    A('s_add_u32 s%d, s%d, s%d' % (sG1, sG1, sX2))
    A('s_bitcmp1_b32 s%d, 14' % sG1)
    A('s_addc_u32 s%d, s%d, 0' % (sK1, sK1))
    A('s_bitset0_b32 s%d, 14' % sG1)
    A('s_min_u32 s%d, s%d, 15' % (sK1, sK1))

def dma_kv():
    return ['s_mov_b32 m0, s%d' % sM0K,
            'buffer_load_dwordx4 v%d, %s, s%d offen sc1 lds' % (aQ, S(WS), sKoff),
            'buffer_load_dwordx4 v%d, %s, s%d offen offset:1024 sc1 lds' % (aQ, S(WS), sKoff),
            's_mov_b32 m0, s%d' % sM0V,
            'buffer_load_dwordx4 v%d, %s, s%d offen sc1 lds' % (aQ, S(WS), sVoff),
            'buffer_load_dwordx4 v%d, %s, s%d offen offset:1024 sc1 lds' % (aQ, S(WS), sVoff)]

def sb_reads(i):
    b = SB + 16 * (i % 3)
    return ['ds_read_b128 v[%d:%d], v%d offset:%d' % (b + 8 * m + 4 * hb, b + 8 * m + 4 * hb + 3, aWS, (2 * i + hb) * 2048 + m * 1024) for m in range(2) for hb in range(2)]

def loop(A, opt, SC, tag):
    DB = int(opt.get('db', 0)); DA = int(opt.get('da', 0)); DB2 = int(opt.get('db2', 0))
    A('L_c_start%s:' % tag)
    A('s_mov_b32 s%d, 0' % sS)
    A('s_mov_b32 s%d, %d' % (sRing, MR))
    A('s_mov_b32 s%d, %d' % (sRst, MR + 2 * 8192))
    A('s_mov_b32 s%d, %d' % (sMRend, MR + 3 * 8192))
    A('s_mov_b32 s%d, 1' % sTag)
    A('s_mov_b32 s%d, 32' % sG1)
    A('s_mov_b32 s%d, 0' % sK1)
    A('s_mov_b32 s%d, 0x%x' % (sCA, f2u(CA)))
    A('s_lshl_b32 s%d, s%d, 13' % (sKoff, sIDX))
    A('s_add_u32 s%d, s%d, %d' % (sVoff, sKoff, VX))
    A('s_add_u32 s%d, s%d, %d' % (sKoff, sKoff, KX))
    A('s_mov_b32 s%d, %d' % (sMH, MH))
    A('s_mov_b32 s%d, 0x3f803f80' % sOne)
    A('s_mov_b32 s%d, 32768' % s32k)
    A('s_mov_b32 s%d, 2048' % sX1); A('s_mov_b32 s%d, 4096' % sX2); A('s_mov_b32 s%d, 6144' % sX3)
    A('s_mov_b32 s%d, 8192' % s8k)
    A('s_mov_b32 s%d, 262144' % s256k)
    A('buffer_store_dword v%d, v%d, %s, s%d offen %s' % (vMem, aMRst, S(WS), sRing, SC))
    A('v_mov_b32 v%d, 0' % vFlag)
    ensure_kv(A)
    for x in dma_kv():
        A(x)
    A('s_add_u32 s%d, s%d, s%d' % (sKoff, sKoff, s256k))
    A('s_add_u32 s%d, s%d, s%d' % (sVoff, sVoff, s256k))
    ensure_kv(A)
    for i in range(3):
        for x in sb_reads(i):
            A(x)
    for i in range(12):
        A(z64(QA + 2 * i))
    rt_stamp(A, opt, 2)
    ph_init(A, opt)
    def Q(i, tile): return sm(QA + 4 * tile, AF + 4 * i, (8 * i) if tile == 0 else SB + 16 * (i % 3), 'a' if tile == 0 else 'v')
    def K(i, tile): return sm(KA + 4 * tile, AF + 4 * i, (64 + 8 * i) if tile == 0 else SB + 16 * (i % 3) + 8, 'a' if tile == 0 else 'v')
    V = [sm(VA + 4 * tile, AF + 4 * i, 128 + tile * 64 + 8 * i, 'a') for i in range(8) for tile in range(2)]
    def afl(i):
        return 'buffer_load_dwordx4 v[%d:%d], v%d, %s, s%d offen offset:%d sc1' % (AF + 4 * i, AF + 4 * i + 3, aQ, S(WS), sRing, i * 1024)
    def afw(i):
        return 'ds_write_b128 v%d, v[%d:%d] offset:%d' % (aQ, AF + 4 * i, AF + 4 * i + 3, ST + i * 1024)
    A('L_c_loop%s:' % tag)
    ph(A, opt, 0)
    A.nop(DA)
    A(afl(0)); A(afl(1))
    ensure_kv(A)
    A('v_xor_b32 v1, s%d, v%d' % (sX1, aQ))
    A('v_xor_b32 v2, s%d, v%d' % (sX2, aQ))
    A('v_xor_b32 v3, s%d, v%d' % (sX3, aQ))
    A('L_c_r0%s:' % tag)
    A('s_waitcnt vmcnt(1) lgkmcnt(0)')
    ph(A, opt, 1)
    A('v_cmp_eq_u32 vcc, -1, v%d' % AF)
    A(Q(0, 0))
    A(afw(0))
    A(Q(0, 1))
    A('s_cbranch_vccnz L_c_x0%s' % tag)
    A(K(0, 0))
    A('L_c_r1%s:' % tag)
    A('s_waitcnt vmcnt(0)')
    A('v_cmp_eq_u32 vcc, -1, v%d' % (AF + 4))
    A(afw(1))
    A('s_nop 2')
    A('s_cbranch_vccnz L_c_x1%s' % tag)
    A(K(0, 1))
    A('buffer_store_dword v%d, v%d, %s, s%d offen sc1' % (vMem, aMRst, S(WS), sMH))
    A(Q(1, 0))
    A('buffer_load_dword v%d, v%d, %s, 0 offen sc1' % (vFlag, aPF, S(WS)))
    A(Q(1, 1))
    A(K(1, 0))
    A('s_waitcnt lgkmcnt(0)')
    A('s_barrier')
    rd = ['ds_read_b128 v[%d:%d], v%d offset:%d' % (AF + 4 * i, AF + 4 * i + 3, i // 2, ST + (i % 2) * 1024) for i in range(2, 8)]
    A(rd[0]); A(rd[1])
    weave(A, [K(1, 1)] + V[0:4], rd[2:] + sb_reads(3) + sb_reads(4)[:2], per=2)
    ph(A, opt, 2)
    SM, SX = AF, AF + 4
    KXF = [SB + 32, SB]
    QF = SB + 16
    def kx(tile):
        kb = KXF[tile]
        return ['ds_read_b128 v[%d:%d], v%d offset:%d' % (kb + 4 * ks, kb + 4 * ks + 3, aL, KB + tile * 4096 + ks * 1024) for ks in range(4)]
    A('s_waitcnt lgkmcnt(11)')
    weave(A, [Q(2, 0), Q(2, 1), K(2, 0), K(2, 1)], sb_reads(4)[2:] + [z64(SM), z64(SM + 2)], per=1)
    A('s_waitcnt lgkmcnt(4)')
    weave(A, [Q(3, 0), Q(3, 1), K(3, 0), K(3, 1)], sb_reads(5), per=1)
    A('s_waitcnt lgkmcnt(4)')
    weave(A, [Q(4, 0), Q(4, 1), K(4, 0), K(4, 1)], sb_reads(6), per=1)
    A('s_waitcnt lgkmcnt(4)')
    weave(A, [Q(5, 0), Q(5, 1), K(5, 0), K(5, 1)], sb_reads(7), per=1)
    A('s_waitcnt lgkmcnt(4)')
    weave(A, [Q(6, 0), Q(6, 1), Q(7, 0)], kx(0)[:3], per=1)
    A('s_waitcnt lgkmcnt(3)')
    A(Q(7, 1)); A(kx(0)[3])
    def padd(acc):
        r = []
        for tile in range(2):
            d = acc + 4 * tile
            r += ['v_add_f32 v%d, v%d, v%d' % (d, d, d + 2), 'v_add_f32 v%d, v%d, v%d' % (d + 1, d + 1, d + 3)]
        return r
    qp = padd(QA) + ['v_cvt_pk_bf16_f32 v%d, v%d, v%d' % (QA, QA, QA + 1), 'v_cvt_pk_bf16_f32 v%d, v%d, v%d' % (QA + 4, QA + 4, QA + 5),
                     'ds_write2_b32 v%d, v%d, v%d offset1:72' % (aQEw, QA, QA + 4)]
    kp = padd(KA) + ['v_cvt_pk_bf16_f32 v%d, v%d, v%d' % (KA + 2, KA, KA + 1), 'v_cvt_pk_bf16_f32 v%d, v%d, v%d' % (KA + 3, KA + 4, KA + 5),
                     'ds_write_b64 v%d, v[%d:%d]' % (aKEw, KA + 2, KA + 3)]
    k1 = kx(1)
    A(K(6, 1)); A(K(6, 0)); A(k1[0]); A(qp[0])
    A(K(7, 0)); A(k1[1]); A(qp[1])
    A(K(7, 1)); A(k1[2]); A(qp[2])
    ph(A, opt, 3)
    A(V[4]); A(k1[3])
    for x in qp[3:]:
        A(x)
    for x in kp:
        A(x)
    for x in V[5:8]:
        A(x)
    A('s_waitcnt lgkmcnt(0)')
    A('s_barrier')
    ph(A, opt, 4)
    KF = QA
    def qtr(ks): return ['ds_read_b64_tr_b16 v[%d:%d], v%d offset:%d' % (QF + 4 * ks + 2 * u, QF + 4 * ks + 2 * u + 1, aQEr, QE + ks * 576 + u * 32) for u in range(2)]
    def ktr(t): return ['ds_read_b64_tr_b16 v[%d:%d], v%d offset:%d' % (KF + 4 * t + 2 * u, KF + 4 * t + 2 * u + 1, aKEr, KE + t * 1152 + u * 32) for u in range(2)]
    trs = qtr(0) + qtr(1) + qtr(2) + qtr(3) + ktr(0) + ktr(1)
    for x in trs[:4]:
        A(x)
    weave(A, V[8:12], trs[4:], per=2)
    OCt = [AF + 12, AF + 16, AF + 20, AF + 24, AF + 28, KA, KA + 4, QA]
    VXF = SB + 32
    A('s_waitcnt lgkmcnt(10)')
    A(mm(SX, KXF[0], QF, True)); A(z64(OCt[5])); A(z64(OCt[5] + 2))
    A('s_waitcnt lgkmcnt(8)')
    A(mm(SX, KXF[0] + 4, QF + 4, False)); A(z64(OCt[6])); A(z64(OCt[6] + 2))
    A('s_waitcnt lgkmcnt(6)')
    A(mm(SX, KXF[0] + 8, QF + 8, False)); A(z64(OCt[0])); A(z64(OCt[0] + 2))
    A('s_waitcnt lgkmcnt(4)')
    A(mm(SX, KXF[0] + 12, QF + 12, False)); A(z64(OCt[1])); A(z64(OCt[1] + 2))
    A('s_waitcnt lgkmcnt(0)')
    A(sm(SM, KF, QF, 'v'))
    A('ds_read_b128 v[%d:%d], v%d offset:%d' % (VXF, VXF + 3, aQ, VB))
    A(sm(SM, KF + 4, QF + 8, 'v'))
    A('ds_read_b128 v[%d:%d], v%d offset:%d' % (VXF + 4, VXF + 7, aQ, VB + 1024))
    A(mm(SX + 4, KXF[1], QF, True)); A(z64(OCt[2])); A(z64(OCt[2] + 2))
    A(mm(SX + 4, KXF[1] + 4, QF + 4, False))
    A('v_max3_f32 v1, v%d, v%d, v%d' % (SX, SX + 1, SX + 2))
    A(mm(SX + 4, KXF[1] + 8, QF + 8, False))
    A('v_add_f32 v%d, v%d, v%d' % (SM, SM, SM + 2))
    A('v_add_f32 v%d, v%d, v%d' % (SM + 1, SM + 1, SM + 3))
    A(mm(SX + 4, KXF[1] + 12, QF + 12, False))
    ph(A, opt, 5)
    A('v_max_f32 v1, v1, v%d' % (SX + 3))
    A(V[12])
    A('v_max3_f32 v1, v1, v%d, v%d' % (SM, SM + 1))
    A(V[13])
    A('v_max3_f32 v1, v1, v%d, v%d' % (SX + 4, SX + 5))
    A('v_max3_f32 v3, v1, v%d, v%d' % (SX + 6, SX + 7))
    A('v_max3_f32 v1, v1, v%d, v%d' % (SX + 6, SX + 7))
    A(V[14])
    A('v_permlane16_swap_b32 v1, v3')
    A('v_max_f32 v2, v1, v3')
    A('v_max_f32 v1, v1, v3')
    A(V[15])
    A('v_permlane32_swap_b32 v1, v2')
    A('v_max_f32 v1, v1, v2')
    A('v_mul_f32 v1, s%d, v1' % sCA)
    PX, PM, ONE = SB, SB + 4, SB + 8
    OT, LS = SB + 16, SB + 24
    for i in range(2):
        A('v_fma_f32 v%d, v%d, s%d, -v1' % (SM + i, SM + i, sCA))
    for i in range(2):
        A('v_exp_f32 v%d, v%d' % (SM + i, SM + i))
    for i in range(8):
        A('v_fma_f32 v%d, v%d, s%d, -v1' % (SX + i, SX + i, sCA))
    A('v_cvt_pk_bf16_f32 v%d, v%d, v%d' % (PM, SM, SM + 1))
    A('v_mov_b32 v%d, 0' % (PM + 1))
    for x in padd(VA):
        A(x)
    for tile in range(2):
        d = VA + 4 * tile
        A('v_cvt_pk_bf16_f32 v%d, v%d, v%d' % (d, d, d + 1))
        A('v_mov_b32 v%d, 0' % (d + 1))
    A('v_mov_b32 v%d, s%d' % (ONE, sOne)); A('v_mov_b32 v%d, s%d' % (ONE + 1, sOne))
    def m16(d, a_):
        return 'v_mfma_f32_16x16x16_bf16 v[%d:%d], v[%d:%d], v[%d:%d], 0' % (d, d + 3, a_, a_ + 1, PM, PM + 1)
    E = ['v_exp_f32 v%d, v%d' % (SX + i, SX + i) for i in range(8)]
    C = ['v_cvt_pk_bf16_f32 v%d, v%d, v%d' % (PX + i, SX + 2 * i, SX + 2 * i + 1) for i in range(4)]
    A(E[0]); A(m16(OT, VA)); A(E[1]); A(E[2]); A(m16(OT + 4, VA + 4)); A(E[3]); A(E[4]); A(m16(LS, ONE)); A(E[5]); A(E[6]); A(E[7])
    A('v_mov_b32 v%d, s%d' % (ONE + 2, sOne)); A('v_mov_b32 v%d, s%d' % (ONE + 3, sOne))
    for x in C:
        A(x)
    A('s_waitcnt lgkmcnt(0)')
    A(mm(LS, ONE, PX, False)); A(z64(OCt[3])); A(z64(OCt[3] + 2))
    A(mm(OT, VXF, PX, False)); A(z64(OCt[4])); A(z64(OCt[4] + 2))
    A(mm(OT + 4, VXF + 4, PX, False)); A(z64(OCt[7])); A(z64(OCt[7] + 2))
    ph(A, opt, 6)
    A('v_rcp_f32 v2, v%d' % LS)
    G = SB + 40
    A('s_mov_b64 exec, s[%d:%d]' % (mOW, mOW + 1))
    for i in range(4):
        A('v_pk_mul_f32 v[%d:%d], v[%d:%d], v[2:3] op_sel_hi:[1,0]' % (OT + 2 * i, OT + 2 * i + 1, OT + 2 * i, OT + 2 * i + 1))
    for i in range(4):
        A('v_cvt_pk_bf16_f32 v%d, v%d, v%d' % (G + i, OT + 2 * i, OT + 2 * i + 1))
    A('ds_write_b128 v%d, v[%d:%d] offset:%d' % (aOEw, G, G + 3, OE))
    A('s_mov_b64 exec, -1')
    ph(A, opt, 7)
    d = dma_kv()
    for x in d[:3]:
        A(x)
    A('s_waitcnt lgkmcnt(0)')
    A('s_barrier')
    OA = SB
    A('ds_read_b128 v[%d:%d], v%d offset:%d' % (OA, OA + 3, aOEr, OE))
    A('ds_read_b128 v[%d:%d], v%d offset:%d' % (OA + 4, OA + 7, aOEr, OE + 1024))
    for x in d[3:]:
        A(x)
    A('s_waitcnt lgkmcnt(1)')
    ph(A, opt, 8)
    O = [[sm(OCt[j], OA + 4 * t, WOR(j, t), 'v') for t in range(2) for j in range(4 * hf, 4 * hf + 4)] for hf in range(2)]
    for x in O[0][:4]:
        A(x)
    A('s_waitcnt lgkmcnt(0)')
    for x in O[0][4:]:
        A(x)
    def opack(hf, pk):
        r = []; Gh = G + 4 * hf
        for j in range(4 * hf, 4 * hf + 4):
            d = OCt[j]
            if pk:
                r.append('v_pk_add_f32 v[%d:%d], v[%d:%d], v[%d:%d]' % (d, d + 1, d, d + 1, d + 2, d + 3))
            else:
                r += ['v_add_f32 v%d, v%d, v%d' % (d, d, d + 2), 'v_add_f32 v%d, v%d, v%d' % (d + 1, d + 1, d + 3)]
        for u in range(4):
            hi, b = u >> 1, u & 1
            j = 4 * hf + 2 * hi
            r.append('v_cvt_pk_bf16_f32 v%d, v%d, v%d' % (Gh + u, OCt[j] + b, OCt[j + 1] + b))
        r.append('v_bfi_b32 v%d, 1, s%d, v%d' % (Gh, sTag, Gh))
        r.append('buffer_store_dwordx4 v[%d:%d], v%d, %s, %s offen %s' % (Gh, Gh + 3, aPBst, S(WS), 's%d' % s32k if hf else '0', SC))
        return r
    weave(A, O[1], opack(0, False), per=[2, 2, 2, 2, 2, 2, 2, 0])
    p1 = opack(1, False)
    for x in p1[0:4] + [p1[8], p1[9], p1[12]] + p1[4:8] + [p1[10], p1[11], p1[13]]:
        A(x)
    ph(A, opt, 9)
    R = AF
    A.nop(DB)
    if DB2:
        lab = A.label('L_c_d')
        A('s_cmp_lt_u32 s%d, 2' % sWAVE)
        A('s_cbranch_scc1 %s' % lab)
        A.nop(DB2)
        A('%s:' % lab)
    def pb_loads():
        A('buffer_load_dwordx4 v[%d:%d], v%d, %s, s%d offen sc1' % (R, R + 3, aL, S(WS), sPBld))
        A('buffer_load_dwordx4 v[%d:%d], v%d, %s, s%d offen offset:1024 sc1' % (R + 4, R + 7, aL, S(WS), sPBld))
    pb_loads()
    for i in range(3):
        for x in sb_reads(i):
            A(x)
    for i in range(12):
        A(z64(QA + 2 * i))
    for r in (sRing, sRst):
        A('s_add_u32 s%d, s%d, s%d' % (r, r, s8k))
        A('s_cmp_eq_u32 s%d, s%d' % (r, sMRend))
        A('s_cselect_b32 s%d, %d, s%d' % (r, MR, r))
    A('s_add_u32 s%d, s%d, 1' % (sS, sS))
    A('s_add_u32 s%d, s%d, s%d' % (sKoff, sKoff, s256k))
    A('s_add_u32 s%d, s%d, s%d' % (sVoff, sVoff, s256k))
    A('s_add_u32 s%d, s%d, s%d' % (sMH, sMH, s8k))
    A('v_add_u32 v%d, v%d, v%d' % (aPF, vInc, aPF))
    A('v_mov_b32 v3, -1')
    D = R + 8
    A('L_c_pbc%s:' % tag)
    A('s_waitcnt vmcnt(1)')
    A(mm(D, vSel, R, True))
    A('v_xor_b32 v1, s%d, v%d' % (sTag, R))
    A('s_waitcnt vmcnt(0)')
    A(mm(D, vSel, R + 4, False))
    A('v_xor_b32 v2, s%d, v%d' % (sTag, R + 4))
    A('v_or_b32 v1, v1, v2')
    A('v_and_b32 v1, 1, v1')
    A('v_cmp_ne_u32 vcc, 0, v1')
    ph(A, opt, 10)
    for rot in (4, 8):
        A('v_add_f32_dpp v%d, v%d, v%d row_ror:%d row_mask:0xf bank_mask:0xf' % (D, D, D, rot))
        A('v_add_f32_dpp v%d, v%d, v%d row_ror:%d row_mask:0xf bank_mask:0xf' % (D + 1, D + 1, D + 1, rot))
        if rot == 4:
            A('s_cbranch_vccnz L_c_pbx%s' % tag)
    A('v_cvt_pk_bf16_f32 v%d, v%d, v%d' % (vMem, D, D + 1))
    A('v_min_u32 v%d, -2, v%d' % (vMem, vMem))
    A('buffer_store_dword v%d, v%d, %s, s%d offen %s' % (vMem, aMRst, S(WS), sRing, SC))
    A('buffer_store_dword v3, v%d, %s, s%d offen %s' % (aMRst, S(WS), sRst, SC))
    A('s_xor_b32 s%d, s%d, 1' % (sTag, sTag))
    ph(A, opt, 11)
    ph_acc(A, opt, 11, 57)
    A('s_cmp_lt_u32 s%d, 63' % sS)
    A('s_cbranch_scc1 L_c_loop%s' % tag)
    A('s_branch L_c_done')
    A('L_c_pbx%s:' % tag)
    spin_check(A)
    pb_loads()
    A('s_branch L_c_pbc%s' % tag)
    A('L_c_x0%s:' % tag)
    spin_check(A)
    A('s_waitcnt vmcnt(0) lgkmcnt(0)')
    A(afl(0)); A(afl(1))
    for i in range(4):
        A(z64(QA + 2 * i))
    A('s_branch L_c_r0%s' % tag)
    A('L_c_x1%s:' % tag)
    spin_check(A)
    A('s_waitcnt lgkmcnt(0)')
    A(afl(1))
    A('s_branch L_c_r1%s' % tag)

def chain(A, opt):
    n0 = len(A.lines)
    setup(A, opt)
    A('s_cmp_lg_u32 s57, 0')
    A('s_cbranch_scc1 L_c_start_s')
    loop(A, opt, '', '_f')
    loop(A, opt, 'sc1', '_s')
    A('L_c_done:')
    A('buffer_store_dword v%d, v%d, %s, s%d offen sc1' % (vMem, aMRst, S(WS), sMH))
    rt_stamp(A, opt, 3)
    ph_out(A, opt, 12)
    A('s_endpgm')
    ex = opt.get('exp', '')
    for i in range(n0, len(A.lines)):
        l = A.lines[i]
        if 'm' in ex and ('buffer_store_dword v%d, v%d, %s, s%d offen sc1' % (vMem, aMRst, S(WS), sMH)) in l:
            A.lines[i] = '  s_nop 0'
        if 'p' in ex and ('v_add_u32 v%d, v%d, v%d' % (aPF, vInc, aPF)) in l:
            A.lines[i] = '  s_nop 0'
        if 'p' in ex and ('s%d' % s256k) in l and 's_add_u32' in l:
            A.lines[i] = '  s_nop 0'
        if 'd' in ex and 'sc1 lds' in l:
            A.lines[i] = '  s_nop 0'
    if opt.get('free'):
        for i in range(n0, len(A.lines)):
            l = A.lines[i]
            if 's_cbranch_vccnz L_c_x' in l or 's_cbranch_vccnz L_c_pbx' in l:
                A.lines[i] = l.replace('s_cbranch_vccnz', 's_cbranch_cdbgsys')
```

```python
from common import *
from chain import wo_load, wo_fix, WOR, CA, ph, ph_init, ph_acc, ph_out
from chain3 import *
import chain3

def U(i): return SB + 8 * i
WQA, WQB, WOV = 128, 192, 208
QU = {i: i for i in range(6)}
def qb_reg(i): return U(QU[i]) if i in QU else WQB + 8 * (i - 6)
def wo_res(j, t): return WOV + (j * 2 + t) * 8
aWS2 = 0
WO_L = [(j, t) for j in range(3, 8) for t in range(2)]
BLK_ORDER = [1, 3, 5, 0, 2, 4, 6, 7]
_order = [(4 * (blk & 1) + jj, blk >> 2, (blk >> 1) & 1) for blk in BLK_ORDER for jj in range(4) if 4 * (blk & 1) + jj >= 3]
def wo_cell(j, t, hb): return 12 + _order.index((j, t, hb))
def cell_ad(x):
    off = (x // 4) * 16384 + (x % 4) * 1024
    return (aWS, off) if off < 65536 else (aWS2, off - 65536)
def cell_rd(dst, x): return 'ds_read_b128 v[%d:%d], v%d offset:%d' % ((dst, dst + 3) + cell_ad(x))
def cell_wr(src, x):
    ad, off = cell_ad(x)
    return 'ds_write_b128 v%d, v[%d:%d] offset:%d' % (ad, src, src + 3, off)
def wo_rd(dst, j, t):
    return [cell_rd(dst + 4 * hb, wo_cell(j, t, hb)) for hb in range(2)]
def pre_reads():
    return [cell_rd(U(i) + 4 * hb, 2 * i + hb) for i in range(6) for hb in range(2)]

def load_weights(A, opt, ld, extra):
    mats = [WQ, WK, WV]
    RAW = {1: 208, 3: 224, 5: 240, 0: 20, 2: 36, 4: 108, 6: 52, 7: 68}
    TMP = 84
    def wl(blk):
        t, hb, half = blk >> 2, (blk >> 1) & 1, blk & 1
        for u in range(4):
            e0 = 64 * t + 32 * (u % 2) + 8 * hb + 2 * (u // 2)
            r = RAW[blk] + 4 * u
            A('s_mov_b32 s68, %d' % (e0 * 1024 + half * 128))
            A('buffer_load_dwordx2 v[%d:%d], v107, %s, s68 offen' % (r, r + 1, S(WO)))
            A('buffer_load_dwordx2 v[%d:%d], v107, %s, s68 offen offset:1024' % (r + 2, r + 3, S(WO)))
    def fix(blk):
        t, hb, half = blk >> 2, (blk >> 1) & 1, blk & 1
        for jj in range(4):
            j = 4 * half + jj
            d = wo_res(j, t) + 4 * hb if j < 3 else TMP + 4 * jj
            for u in range(4):
                r = RAW[blk] + 4 * u
                A('v_perm_b32 v%d, v%d, v%d, s%d' % (d + u, r + 2 + jj // 2, r + jj // 2, 62 if jj & 1 else 61))
            if j >= 3:
                A(cell_wr(d, wo_cell(j, t, hb)))
        A('s_waitcnt lgkmcnt(0)')
    DEP = int(opt.get('depth', 8))
    log = [('d', n) for n in range(DEP) for _ in range(4)] + [('x', 0)] * extra
    def wait_for(tag):
        last = max(i for i, t_ in enumerate(log) if t_ == tag)
        n = len(log) - 1 - last
        return min(n, 63)
    wl_at = {14: [1], 15: [3], 16: [5], 17: [0], 18: [2], 19: [4], 20: [6], 21: [7]}
    for n in range(24):
        m, c = n // 8, n % 8
        A('s_waitcnt vmcnt(%d) lgkmcnt(0)' % wait_for(('d', n)))
        if n == 8:
            arrive(A)
        else:
            A('s_barrier')
        nx_ = n + DEP - 1 if DEP == 8 else n + DEP
        if DEP <= nx_ <= 23:
            ld.dma(mats[nx_ // 8], nx_ % 8); log += [('d', nx_)] * 4
        end = A.label('L_c_tr')
        for w in range(4):
            nx = A.label('L_c_tr')
            if w < 3:
                A('s_cmp_lg_u32 s%d, %d' % (sWAVE, w))
                A('s_cbranch_scc1 %s' % nx)
            i = c ^ (2 * w)
            if m == 0:
                ld.tr(c, 0, 'v', WQA + 8 * i)
                ld.tr(c, 1, 'v', qb_reg(i))
            else:
                for tile in range(2):
                    ld.tr(c, tile, 'a', (m - 1) * 128 + tile * 64 + 8 * i)
            if w < 3:
                A('s_branch %s' % end)
                A('%s:' % nx)
        A('%s:' % end)
        if n == int(opt.get('en', 10)) and opt.get('early', '1') == '0':
            A('v_mov_b32 v2, 0')
            A('v_mov_b32 v%d, 0' % vFlag)
        elif n == int(opt.get('en', 10)):
            A('v_mov_b32 v1, %d' % D_ARR)
            A('v_mov_b32 v%d, 0' % vFlag)
            A('s_mov_b64 exec, 1')
            A('buffer_load_dwordx2 v[2:3], v1, %s, 0 offen sc1' % S(DBG)); log += [('x', 1)]
            A('s_mov_b64 exec, -1')
        if n == 19:
            A('v_readfirstlane_b32 s57, v2')
            A('v_readfirstlane_b32 s58, v3')
            A('v_min_u32 v%d, -2, v%d' % (vMem, vMem))
            A('s_mov_b32 s66, 0')
            A('s_lshr_b32 s67, s57, 16')
            A('s_and_b32 s57, s57, 0xffff')
            A('s_cmp_lt_u32 s57, 32')
            A('s_cbranch_scc1 L_c_late')
            A('s_cmp_eq_u32 s58, 0')
            A('s_cbranch_scc1 L_c_late')
            A('s_cmp_lg_u32 s67, 0')
            A('s_cbranch_scc1 L_c_late')
            A('s_mov_b32 s66, 1')
            A('s_mov_b32 s57, %d' % MR)
            A('buffer_store_dword v%d, v%d, %s, s57 offen' % (vMem, aMRst, S(WS)))

            A('L_c_late:')
        if 17 <= n <= 19:
            for x in range(4 * (n - 17), 4 * (n - 17) + 4):
                A(cell_wr(SB + 4 * x, x))
        for blk in wl_at.get(n, []):
            wl(blk); log += [('w', blk)] * 8
        if n == 20:
            A('s_mov_b32 s61, 0x05040100')
            A('s_mov_b32 s62, 0x07060302')
        if n >= 20:
            todo = {20: [1], 21: [3], 22: [5], 23: [0, 2, 4, 6]}[n]
            for blk in todo:
                A('s_waitcnt vmcnt(%d)' % wait_for(('w', blk)))
                fix(blk)
    A('s_waitcnt vmcnt(0) lgkmcnt(0)')
    A('s_barrier')
    fix(7)
sLo, sRng, sOne2 = 96, 97, 98
aX = [aQ, 1, 2, 3]
sH = 100
TR = SB + 8 + 6


class Trk:
    def __init__(self, A, name):
        self.A = A; self.name = name; self.log = []
    def op(self, x, tag=None):
        self.A(x); self.log.append(tag)
    def wait(self, tag):
        last = max(i for i, t in enumerate(self.log) if t == tag)
        n = len(self.log) - 1 - last
        assert n <= 15
        self.A('s_waitcnt %s(%d)' % (self.name, n))
        self.log = self.log[last + 1:]
    def all(self):
        self.A('s_waitcnt %s(0)' % self.name); self.log = []

def mark(A, opt, tag, name):
    if tag == '_f' and opt.get('probe') == name:
        A('s_memtime s[10:11]')
    if tag == '_f' and name in opt.get('rt', '').split(','):
        k = opt['rt'].split(',').index(name)
        A('s_memrealtime s[%d:%d]' % (12 + 2 * k, 13 + 2 * k))

def loop(A, opt, SC, tag):
    o = lambda k, d: int(opt.get(k, d))
    A('L_c_start%s:' % tag)
    A('s_mov_b32 s%d, 0' % sS)
    A('s_mov_b32 s%d, %d' % (sRing, MR))
    A('s_mov_b32 s%d, %d' % (sRst, MR + 2 * 8192))
    A('s_mov_b32 s%d, %d' % (sMRend, MR + 3 * 8192))
    A('s_mov_b32 s%d, 1' % sTag)
    A('s_lshl_b32 s%d, s%d, 7' % (sG1, sIDX))
    A('s_mov_b32 s%d, 0' % sK1)
    A('s_mov_b32 s%d, 0x%x' % (sCA, f2u(CA)))
    A('s_lshl_b32 s%d, s%d, 13' % (sKoff, sIDX))
    A('s_add_u32 s%d, s%d, %d' % (sVoff, sKoff, VX))
    A('s_add_u32 s%d, s%d, %d' % (sKoff, sKoff, KX))
    A('s_mov_b32 s%d, %d' % (sMH, MH))
    A('s_mov_b32 s%d, 0x3f803f80' % sOne)
    A('s_mov_b32 s%d, 32768' % s32k)
    A('s_mov_b32 s%d, 2048' % sX1); A('s_mov_b32 s%d, 4096' % sX2); A('s_mov_b32 s%d, 6144' % sX3)
    A('s_mov_b32 s%d, 8192' % s8k)
    A('s_mov_b32 s%d, 262144' % s256k)
    lo, hi = f2u(2.0 ** -30), f2u(2.0 ** 30)
    if opt.get('forceslow'):
        lo, hi = f2u(2.0 ** 100), f2u(2.0 ** 101)
    A('s_mov_b32 s%d, 0x3f803f80' % sOne2); A('s_mov_b32 s%d, 0x3f803f80' % (sOne2 + 1))
    A('s_mov_b32 s%d, 0x%x' % (sLo, lo))
    A('s_mov_b32 s%d, 0x%x' % (sRng, hi - lo))
    A('s_mov_b32 s%d, 0' % sH)
    A('v_mbcnt_lo_u32_b32 v1, -1, 0')
    A('v_and_b32 v1, 3, v1')
    A('v_lshlrev_b32 v1, 12, v1')
    A('L_c_f0%s:' % tag)
    spin_check(A)
    A('buffer_load_dword v2, v1, %s, s%d offen sc1' % (S(WS), sG1))
    A('s_waitcnt vmcnt(0)')
    A('v_cmp_eq_u32 vcc, 0, v2')
    A('s_cbranch_vccnz L_c_f0%s' % tag)
    A('s_mov_b32 s%d, 1' % sK1)
    A('v_mov_b32 v%d, 0' % vFlag)
    pf = 'buffer_load_dword v%d, v%d, %s, s%d offen sc1' % (vInc, aPF, S(WS), sKoff)
    for x in dma_kv():
        A(x)
    A('s_add_u32 s%d, s%d, s%d' % (sKoff, sKoff, s256k))
    A('s_add_u32 s%d, s%d, s%d' % (sVoff, sVoff, s256k))
    for x in pre_reads():
        A(x)
    for i in range(12):
        A(z64(QA + 2 * i))
    rt_stamp(A, opt, 2)
    ph_init(A, opt)
    if opt.get('clk'):
        A('s_memtime s[8:9]')
    def Qa(i): return sm(QA, AF + 4 * i, WQA + 8 * i, 'v')
    def Qb(i): return sm(QA + 4, AF + 4 * i, qb_reg(i), 'v')
    def Ka(i): return sm(KA, AF + 4 * i, 8 * i, 'a')
    def Kb(i): return sm(KA + 4, AF + 4 * i, 64 + 8 * i, 'a')
    def Va(i): return sm(VA, AF + 4 * i, 128 + 8 * i, 'a')
    def Vb(i): return sm(VA + 4, AF + 4 * i, 192 + 8 * i, 'a')
    def afl(i):
        return 'buffer_load_dwordx4 v[%d:%d], v%d, %s, s%d offen offset:%d sc1' % (AF + 4 * i, AF + 4 * i + 3, aQ, S(WS), sRing, i * 1024)
    def afw(i):
        return 'ds_write_b128 v%d, v[%d:%d] offset:%d' % (aQ, AF + 4 * i, AF + 4 * i + 3, ST + i * 1024)
    def add(d, x, y): return 'v_add_f32 v%d, v%d, v%d' % (d, x, y)
    def cvt(d, x, y): return 'v_cvt_pk_bf16_f32 v%d, v%d, v%d' % (d, x, y)
    def ex(r): return 'v_exp_f32 v%d, v%d' % (r, r)
    def hsum(d): return [add(d, d, d + 2), add(d + 1, d + 1, d + 3)]
    mul = lambda d: 'v_mul_f32 v%d, s%d, v%d' % (d, sCA, d)
    zero = lambda r: 'v_mov_b32 v%d, 0' % r
    cmp_ = lambda i: 'v_cmp_eq_u32 vcc, -1, v%d' % (AF + 4 * i)
    M = lambda name: mark(A, opt, tag, name)
    for i in range(3):
        A('v_xor_b32 v%d, s%d, v%d' % (1 + i, sX1 + i, aQ))
    HA = o('ha', 1)
    L = Trk(A, 'lgkmcnt')
    A('L_c_ld%s:' % tag)
    A(afl(0)); A.nop(o('da1', 0)); A(afl(1))
    if HA:
        A.nop(o('ia', 30)); A('buffer_load_dwordx4 v[%d:%d], v%d, %s, s%d offen offset:1024 sc1' % (AF + 28, AF + 31, aQ, S(WS), sRing))
    A('s_waitcnt vmcnt(%d) lgkmcnt(0)' % (1 + HA))
    M('t')
    if tag == '_f' and 'probe' in opt:
        A('s_sub_u32 s57, s10, s8')
        A('s_cmp_eq_u32 s%d, 0' % sS)
        A('s_cselect_b32 s57, 0, s57')
        A('s_add_u32 s36, s36, s57')
        A('s_memtime s[8:9]')
    L.op(afw(0)); A(cmp_(0))
    A(Qb(0)); A(Qa(0))
    A('s_cbranch_vccnz L_c_x0%s' % tag)
    A('s_waitcnt vmcnt(%d)' % HA)
    L.op(afw(1)); A(cmp_(1))
    A(Kb(0)); A(Ka(0))
    A('s_cbranch_vccnz L_c_x1%s' % tag)
    A('L_c_r1%s:' % tag)
    A(Qb(1))
    L.all()
    A('s_barrier')
    M('sbar')
    rd = {i: 'ds_read_b128 v[%d:%d], v%d offset:%d' % (AF + 4 * i, AF + 4 * i + 3, i // 2, ST + (i % 2) * 1024) for i in range(2, 8)}
    L.op(rd[2], 2)
    for m_, i in ((Qa(1), 3), (Kb(1), 4), (Ka(1), 5), (Va(0), 6), (Vb(0), 7)):
        A(m_)
        if i == 6 and HA:
            A('s_waitcnt vmcnt(0)')
        L.op(rd[i], i)
    SM, SX0, SX1 = AF, AF + 4, AF + 8
    KXU = [0, 2]; QF = U(4); KF = QA
    kk = ['ds_read_b128 v[%d:%d], v%d offset:%d' % (U(0) + 4 * q, U(0) + 4 * q + 3, aL, KB + q * 1024) for q in range(8)]
    vm = {2: 'buffer_store_dword v%d, v%d, %s, s%d offen sc1' % (vMem, aMRst, S(WS), sMH), 4: pf if o('pf', 0) == 1 else 's_nop 0', 6: flag_load()}
    DP = o('dpos', 3)
    dk = dma_kv()
    if DP in (1, 2):
        vm[3] = dk[3] + '\n s_nop 0\n' + dk[4]; vm[5] = dk[5]; dk[3] = dk[4] = dk[5] = 's_nop 0'
    if DP == 2:
        vm[4] = 's_nop 0'; vm[6] = dk[0] + '\n s_nop 0\n' + dk[1]; vm[7] = dk[2] + '\n' + flag_load(); dk[0] = dk[1] = dk[2] = 's_nop 0'
    kq = ['', '', '']
    if DP in (1, 3):
        kq = dk[:3]; dk[0] = dk[1] = dk[2] = 's_nop 0'
    for i in range(2, 8):
        L.wait(i); A(Qb(i))
        if i in vm:
            A(vm[i])
    qb, qa, kb_, ka_ = QA + 4, QA, KA + 4, KA
    fq = [z64(SM)] + hsum(qb) + [mul(qb), mul(qb + 1), cvt(qb, qb, qb + 1)]
    for i in range(2, 8):
        A(Qa(i)); L.op(kk.pop(0)); A(fq.pop(0))
    M('qdone')
    A(Kb(2)); L.op(kk.pop(0)); A(z64(SM + 2))
    A(Kb(3)); L.op(kk.pop(0)); A(hsum(qa)[0])
    A(Kb(4)); A(hsum(qa)[1])
    A(Kb(5)); A(mul(qa))
    A(Kb(6)); A(mul(qa + 1))
    A(Kb(7)); A(cvt(qa, qa, qa + 1))
    A(Ka(2)); L.op('ds_write2_b32 v%d, v%d, v%d offset1:72' % (aQEw, qa, qb))
    A(Ka(3)); A(hsum(kb_)[0])
    A(Ka(4)); A(hsum(kb_)[1])
    A(Ka(5)); A(cvt(kb_ + 3, kb_, kb_ + 1))
    A(Ka(6))
    L.all()
    A('s_barrier')
    M('qbar')
    def qt(ks):
        for u in range(2):
            L.op('ds_read_b64_tr_b16 v[%d:%d], v%d offset:%d' % (QF + 4 * ks + 2 * u, QF + 4 * ks + 2 * u + 1, aQEr, QE + ks * 576 + u * 32), 'q%d' % ks)
    def kt(t):
        for u in range(2):
            L.op('ds_read_b64_tr_b16 v[%d:%d], v%d offset:%d' % (KF + 4 * t + 2 * u, KF + 4 * t + 2 * u + 1, aKEr, KE + t * 1152 + u * 32), 'k')
    X = [[mm((SX0, SX1)[tile], U(KXU[tile]) + 4 * ks, QF + 4 * ks, ks == 0) for ks in range(4)] for tile in range(2)]
    A(Ka(7)); A(kq[0]); qt(0)
    A(Va(1)); A(kq[1]); qt(1)
    A(Vb(1)); A(kq[2]); qt(2); A(hsum(ka_)[0])
    A(Va(2)); qt(3); A(hsum(ka_)[1])
    A(Vb(2)); A(cvt(kb_ + 2, ka_, ka_ + 1))
    L.wait('q1')
    A(X[0][0]); L.op('ds_write_b64 v%d, v[%d:%d]' % (aKEw, kb_ + 2, kb_ + 3), 'kw'); A(z64(KA))
    A(X[0][1]); A(z64(KA + 2))
    L.wait('q3')
    A(X[0][2]); A(z64(KA + 4))
    A(X[0][3])
    VXF, PX, PM = U(0), U(1), U(1) + 4
    OT, LS, ONE, G, OA = U(2), U(3), U(3) + 4, U(4), U(5)
    va, vb = VA, VA + 4
    A(X[1][0])
    L.all()
    A('s_barrier')
    M('kbar')
    if tag == '_f' and 'rt' in opt:
        A('s_mov_b32 m0, s%d' % sS)
        A('s_nop 3')
        A('v_writelane_b32 v%d, s12, m0' % vInc)
        A('v_writelane_b32 v%d, s14, m0' % aPF)
    A(X[1][1]); kt(0); A(ex(SX0))
    A(X[1][2]); kt(1); A(ex(SX0 + 1))
    A(X[1][3]); A(dk[0]); A(ex(SX0 + 2))
    A(Va(3)); A(dk[1]); A(ex(SX0 + 3))
    A(Vb(3)); L.wait('k'); A(ex(SX1))
    vx = ['ds_read_b128 v[%d:%d], v%d offset:%d' % (VXF + 4 * q, VXF + 4 * q + 3, aQ, VB + 1024 * q) for q in range(2)]
    A(sm(SM, KF, QF, 'v')); L.op(vx[0], 'vx'); A(ex(SX1 + 1))
    A(sm(SM, KF + 4, QF + 8, 'v')); L.op(vx[1], 'vx'); A(ex(SX1 + 2))
    M('xdone')
    OCt = [KA, KA + 4, QA, QA + 4, AF, AF + 4, AF + 8, AF + 12]
    WU = [AF + 16, AF + 24, U(0), U(1), U(2), U(3), VA]
    w0, w1 = wo_rd(WU[0], *WO_L[0]), wo_rd(WU[1], *WO_L[1])
    one = lambda q: 'v_mov_b64 v[%d:%d], s[%d:%d]' % (ONE + 2 * q, ONE + 2 * q + 1, sOne2, sOne2 + 1)
    A(Va(4)); A(dk[2]); A(ex(SX1 + 3))
    A(Vb(4)); A(hsum(SM)[0]); A(hsum(SM)[1])
    A(Va(5)); A(dk[3]); L.wait('vx'); A(ex(SM))
    A(Vb(5)); A(dk[4]); A(ex(SM + 1))
    A(Va(6)); L.op(w0[0]); A(cvt(PX, SX0, SX0 + 1)); A(cvt(PX + 1, SX0 + 2, SX0 + 3))
    A(Va(7)); L.op(w0[1]); A(cvt(PX + 2, SX1, SX1 + 1)); A(cvt(PX + 3, SX1 + 2, SX1 + 3))
    A(Vb(6)); A(dk[5]); A(cvt(PM, SM, SM + 1)); A(one(0))
    A(Vb(7))
    if o('pf', 0) == 2:
        A(pf)
    A(one(1))
    def m16(d, a_):
        return 'v_mfma_f32_16x16x16_bf16 v[%d:%d], v[%d:%d], v[%d:%d], v[%d:%d]' % (d, d + 3, a_, a_ + 1, PM, PM + 1, d, d + 3)
    A(mm(OT, VXF, PX, True)); A(hsum(va)[0]); A(hsum(va)[1])
    A(mm(LS, ONE, PX, True)); A(zero(PM + 1)); A(cvt(va, va, va + 1))
    A(mm(OT + 4, VXF + 4, PX, True)); A(zero(va + 1)); A(hsum(vb)[0])
    A(m16(LS, ONE)); A(hsum(vb)[1]); A(cvt(vb, vb, vb + 1))
    A(m16(OT, va)); A(zero(vb + 1)); L.op(w1[0]); L.op(w1[1])
    A(m16(OT + 4, vb))
    M('pv')
    A('v_rcp_f32 v%d, v%d' % (TR, LS))
    A('v_subrev_u32 v%d, s%d, v%d' % (TR + 1, sLo, LS))
    A('v_cmp_lt_u32 vcc, s%d, v%d' % (sRng, TR + 1))
    A('L_c_norm%s:' % tag)
    for i in range(4):
        A('v_mul_f32 v%d, v%d, v%d' % (OT + i, OT + i, TR))
    GO = LS
    A(cvt(GO, OT, OT + 1)); A(cvt(GO + 1, OT + 2, OT + 3))
    A('ds_write_b64 v%d, v[%d:%d] offset:%d' % (aOEw, GO, GO + 1, OE))
    for i in (2, 3):
        A('v_pk_mul_f32 v[%d:%d], v[%d:%d], v[%d:%d] op_sel_hi:[1,0]' % (OT + 2 * i, OT + 2 * i + 1, OT + 2 * i, OT + 2 * i + 1, TR, TR + 1))
    A(cvt(GO + 2, OT + 4, OT + 5)); A(cvt(GO + 3, OT + 6, OT + 7))
    A('ds_write_b64 v%d, v[%d:%d] offset:%d' % (aOEw, GO + 2, GO + 3, OE + 8))
    A('s_cbranch_vccnz L_c_slow%s' % tag)
    M('ow')
    zz = [z64(KA + 6)] + [z64(OCt[j] + q) for j in range(2, 8) for q in (0, 2)]
    for x in zz[:9]:
        A(x)
    L.all()
    A('s_barrier')
    M('obar')
    L.op('ds_read_b128 v[%d:%d], v%d offset:%d' % (OA, OA + 3, aOEr, OE), 'o0')
    L.op('ds_read_b128 v[%d:%d], v%d offset:%d' % (OA + 4, OA + 7, aOEr, OE + 1024), 'o1')
    wr = []
    for k in range(2, 10):
        wr += [(x, 'w%d' % k) for x in wo_rd(WU[k % 7], *WO_L[k])]
    def nw(n=1):
        for _ in range(n):
            L.op(*wr.pop(0))
    def wreg(j, t):
        return wo_res(j, t) if j < 3 else WU[WO_L.index((j, t)) % 7]
    def O(j, t, w=True):
        if j > 3 and w:
            L.wait('w%d' % WO_L.index((j, t)))
        A(sm(OCt[j], OA + 4 * t, wreg(j, t), 'v'))
    def hs(j): return hsum(OCt[j])
    def cv(hf, hi):
        j = 4 * hf + 2 * hi
        return [cvt(G + 4 * hf + 2 * hi + b, OCt[j] + b, OCt[j + 1] + b) for b in range(2)]
    bfi = lambda hf: 'v_bfi_b32 v%d, 1, s%d, v%d' % (G + 4 * hf, sTag, G + 4 * hf)
    st = lambda hf: 'buffer_store_dwordx4 v[%d:%d], v%d, %s, %s offen %s' % (G + 4 * hf, G + 4 * hf + 3, aPBst, S(WS), 's%d' % s32k if hf else '0', SC)
    nw(2)
    for x in zz[9:]:
        A(x)
    L.wait('o0')
    M('oa')
    O(3, 0); nw()
    L.wait('o1')
    O(3, 1); nw()
    O(2, 0); nw()
    O(2, 1); nw(); A(hs(3)[0])
    O(0, 0); nw(); A(hs(3)[1])
    O(0, 1); nw(); A(hs(2)[0])
    O(1, 0); nw(); A(hs(2)[1])
    O(1, 1); nw(); A(cv(0, 1)[0])
    L.wait('w3')
    O(4, 0, False); nw(); A(cv(0, 1)[1]); A(hs(0)[0])
    O(4, 1, False); nw(); A(hs(0)[1]); A(hs(1)[0])
    L.wait('w5')
    O(5, 0, False); nw(); A(hs(1)[1]); A(cv(0, 0)[0])
    O(5, 1, False); nw(2); A(cv(0, 0)[1]); A(bfi(0))
    O(6, 0); A(st(0)); nw(); A(hs(4)[0]); A(hs(4)[1])
    M('s1')
    O(6, 1); A(hs(5)[0]); A(hs(5)[1])
    O(7, 0); A(cv(1, 0)[0]); A(cv(1, 0)[1])
    O(7, 1)
    M('odone')
    for x in [bfi(1)] + hs(6) + hs(7) + cv(1, 1) + [st(1)]:
        A(x)
    M('s2')
    R, D = AF + 16, AF + 24
    R2 = AF + 8
    def pb_loads(R=R):
        A('buffer_load_dwordx4 v[%d:%d], v%d, %s, s%d offen sc1' % (R, R + 3, aL, S(WS), sPBld))
        A('buffer_load_dwordx4 v[%d:%d], v%d, %s, s%d offen offset:1024 sc1' % (R + 4, R + 7, aL, S(WS), sPBld))
    hk = [z64(QA + 2 * i) for i in range(12)]
    for r_ in (sRing, sRst):
        hk += ['s_add_u32 s%d, s%d, s%d' % (r_, r_, s8k), 's_cmp_eq_u32 s%d, s%d' % (r_, sMRend), 's_cselect_b32 s%d, %d, s%d' % (r_, MR, r_)]
    hk += ['s_add_u32 s%d, s%d, 1' % (sS, sS), 's_add_u32 s%d, s%d, s%d' % (sKoff, sKoff, s256k), 's_add_u32 s%d, s%d, s%d' % (sVoff, sVoff, s256k),
           's_add_u32 s%d, s%d, s%d' % (sMH, sMH, s8k), 'v_mov_b32 v%d, -1' % (D + 4)]
    pr = pre_reads()
    P1 = o('p1', 4); P2 = o('p2', 12); P3 = o('p3', 12); HB = o('hb', 1)
    P0 = o('p0', -1)
    for x in hk + pr[:max(P0, 0)]:
        A(x)
    la, lb = A.label('L_c_h'), A.label('L_c_h')
    if P0 >= 0:
        A('s_cmp_ge_u32 s%d, 2' % sWAVE)
        A('s_cbranch_scc1 %s' % la)
        pb_loads()
        A('%s:' % la)
    for x in pr[max(P0, 0):P1]:
        A(x)
    if P0 >= 0:
        A('s_cbranch_scc0 %s' % lb)
    A.nop(o('db', 0))
    pb_loads()
    A('%s:' % lb)
    M('poll')
    for x in pr[P1:max(P1, P2)]:
        A(x)
    if HB:
        pb_loads(R2)
    for x in pr[max(P1, P2):P3]:
        A(x)
    A('s_waitcnt vmcnt(%d)' % (2 * HB + 1))
    A(mm(D, vSel, R, True))
    A('v_xor_b32 v%d, s%d, v%d' % (D + 5, sTag, R))
    A('s_waitcnt vmcnt(%d)' % (2 * HB))
    A(mm(D, vSel, R + 4, False))
    M('pbd')
    A('v_xor_b32 v%d, s%d, v%d' % (D + 6, sTag, R + 4))
    A('L_c_pc%s:' % tag)
    A('v_or_b32 v%d, v%d, v%d' % (D + 5, D + 5, D + 6))
    A('v_and_b32 v%d, 1, v%d' % (D + 5, D + 5))
    A('v_cmp_ne_u32 vcc, 0, v%d' % (D + 5))
    for rot in (4, 8):
        A('v_add_f32_dpp v%d, v%d, v%d row_ror:%d row_mask:0xf bank_mask:0xf' % (D, D, D, rot))
        A('v_add_f32_dpp v%d, v%d, v%d row_ror:%d row_mask:0xf bank_mask:0xf' % (D + 1, D + 1, D + 1, rot))
        if rot == 4:
            A('s_cbranch_vccnz L_c_px%s' % tag)
    A(cvt(vMem, D, D + 1))
    A('v_min_u32 v%d, -2, v%d' % (vMem, vMem))
    A('buffer_store_dword v%d, v%d, %s, s%d offen %s' % (vMem, aMRst, S(WS), sRing, SC))
    M('e')
    A('buffer_store_dword v%d, v%d, %s, s%d offen %s' % (D + 4, aMRst, S(WS), sRst, SC))
    A('s_xor_b32 s%d, s%d, 1' % (sTag, sTag))
    A('s_mov_b32 s%d, 0' % sH)
    A('s_cmp_eq_u32 s%d, 63' % sS)
    A('s_cbranch_scc1 L_c_done')
    ensure_kv(A)
    for x in pr[P3:]:
        A(x)
    A.nop(o('da', 8))
    if o('da2', 0):
        A('s_cmp_ge_u32 s%d, 2' % sWAVE)
        A('s_cbranch_scc1 L_c_ld%s' % tag)
        A.nop(o('da2', 0))
    A('s_branch L_c_ld%s' % tag)
    def cnt(i):
        if opt.get('stamp') == '2':
            A('s_add_u32 s%d, s%d, 62' % (chain3_ACC(i), chain3_ACC(i)))
    A('L_c_px%s:' % tag)
    spin_check(A); cnt(12)
    def look(Rx, y):
        A('s_waitcnt vmcnt(%d)' % y)
        A(mm(D, vSel, Rx, True))
        A('v_xor_b32 v%d, s%d, v%d' % (D + 5, sTag, Rx))
        A(mm(D, vSel, Rx + 4, False))
        A('v_xor_b32 v%d, s%d, v%d' % (D + 6, sTag, Rx + 4))
        A('s_branch L_c_pc%s' % tag)
    if HB:
        A('s_xor_b32 s%d, s%d, 1' % (sH, sH))
        A('s_bitcmp1_b32 s%d, 0' % sH)
        A('s_cbranch_scc0 L_c_py%s' % tag)
        pb_loads(R); look(R2, 2)
        A('L_c_py%s:' % tag)
        pb_loads(R2); look(R, 2)
    else:
        pb_loads(R2); look(R2, 0)
    A('L_c_x0%s:' % tag)
    spin_check(A); cnt(13)
    A('s_waitcnt vmcnt(0) lgkmcnt(0)')
    for i in range(4):
        A(z64(QA + 2 * i))
    A('s_branch L_c_ld%s' % tag)
    A('L_c_x1%s:' % tag)
    spin_check(A); cnt(14)
    def ldh(r): A('buffer_load_dwordx4 v[%d:%d], v%d, %s, s%d offen offset:1024 sc1' % (r, r + 3, aQ, S(WS), sRing))
    def look1(r, y):
        A('s_waitcnt vmcnt(%d) lgkmcnt(0)' % y)
        A('v_cmp_eq_u32 vcc, -1, v%d' % r)
        A('v_mov_b64 v[%d:%d], v[%d:%d]' % (AF + 4, AF + 5, r, r + 1))
        A('v_mov_b64 v[%d:%d], v[%d:%d]' % (AF + 6, AF + 7, r + 2, r + 3))
        A(afw(1))
        A('s_cbranch_vccnz L_c_x1%s' % tag)
        A('s_branch L_c_r1%s' % tag)
    if HA:
        A('s_xor_b32 s%d, s%d, 2' % (sH, sH))
        A('s_bitcmp1_b32 s%d, 1' % sH)
        A('s_cbranch_scc0 L_c_y1%s' % tag)
        ldh(AF + 24); look1(AF + 28, 1)
        A('L_c_y1%s:' % tag)
        ldh(AF + 28); look1(AF + 24, 1)
    else:
        ldh(AF + 28); look1(AF + 28, 0)
    A('L_c_slow%s:' % tag)
    T = OT
    A('s_sub_u32 s57, s%d, s%d' % (sKoff, s256k))
    A('s_waitcnt lgkmcnt(0)')
    for tile in range(2):
        for kp in range(2):
            for ks in range(2 * kp, 2 * kp + 2):
                A('buffer_load_dwordx4 v[%d:%d], v%d, %s, s57 offen offset:%d sc1' % (T + 4 * (ks % 2), T + 4 * (ks % 2) + 3, aL, S(WS), ks * 1024))
            A('s_waitcnt vmcnt(0)')
            for ks in range(2 * kp, 2 * kp + 2):
                A(mm((SX0, SX1)[tile], T + 4 * (ks % 2), QF + 4 * ks, ks == 0))
            A('s_nop 7')
        A('s_add_u32 s57, s57, 4096')
    A(z64(SM)); A(z64(SM + 2))
    A(sm(SM, KF, QF, 'v')); A(sm(SM, KF + 4, QF + 8, 'v'))
    for x in hsum(SM):
        A(x)
    al = [SM, SM + 1] + [SX0 + i for i in range(8)]
    A('v_max_f32 v%d, v%d, v%d' % (TR, al[0], al[1]))
    for i in range(2, 10, 2):
        A('v_max3_f32 v%d, v%d, v%d, v%d' % (TR, TR, al[i], al[i + 1]))
    for sw in ('16', '32'):
        A('v_mov_b32 v%d, v%d' % (TR + 1, TR))
        A('v_permlane%s_swap_b32 v%d, v%d' % (sw, TR, TR + 1))
        A('v_max_f32 v%d, v%d, v%d' % (TR, TR, TR + 1))
    for r_ in al:
        A('v_sub_f32 v%d, v%d, v%d' % (r_, r_, TR))
        A(ex(r_))
    for i in range(4):
        A(cvt(PX + i, al[2 + 2 * i], al[3 + 2 * i]))
    A(cvt(PM, SM, SM + 1))
    A(mm(LS, ONE, PX, True)); A(mm(OT, VXF, PX, True)); A(mm(OT + 4, VXF + 4, PX, True))
    A(m16(LS, ONE)); A(m16(OT, va)); A(m16(OT + 4, vb))
    A('v_rcp_f32 v%d, v%d' % (TR, LS))
    A('s_mov_b64 vcc, 0')
    A('s_nop 7')
    A('s_branch L_c_norm%s' % tag)

def chain3_ACC(i):
    import chain
    return chain.ACCS[i]

def chain(A, opt):
    n0 = len(A.lines)
    setup(A, opt, load_weights)
    A('s_cmp_lg_u32 s57, 0')
    A('s_cbranch_scc1 L_c_start_s')
    loop(A, opt, '', '_f')
    loop(A, opt, 'sc1', '_s')
    A('L_c_done:')
    A('buffer_store_dword v%d, v%d, %s, s%d offen sc1' % (vMem, aMRst, S(WS), sMH))
    if opt.get('clk'):
        A('s_memtime s[10:11]')
        A('s_waitcnt lgkmcnt(0)')
        A('s_sub_u32 s36, s10, s8')
    if 'rt' in opt:
        A('s_lshl_b32 s60, s%d, 2' % sIDX)
        A('s_add_u32 s60, s60, s%d' % sWAVE)
        A('s_lshl_b32 s60, s60, 9')
        A('s_add_u32 s60, s60, %d' % (TS + 0x40000))
        A('v_lshrrev_b32 v1, 2, v%d' % aL)
        A('buffer_store_dword v%d, v1, %s, s60 offen' % (vInc, S(WS)))
        A('buffer_store_dword v%d, v1, %s, s60 offen offset:256' % (aPF, S(WS)))
    rt_stamp(A, opt, 3)
    ph_out(A, opt, 15)
    A('s_endpgm')
    if opt.get('probe', '').startswith('i'):
        N = int(opt['probe'][1:])
        k = A.lines.index('  s_memtime s[8:9]') + 1
        n = 0; lst = []
        while not A.lines[k].startswith('L_c_px_f'):
            l = A.lines[k]; k += 1
            if l.endswith(':'):
                continue
            n += 1; lst.append('%d %s' % (n, l.strip()))
            if n == N:
                A.lines.insert(k, '  s_memtime s[10:11]'); k += 1
        open('probe_listing.txt', 'w').write('\n'.join(lst) + '\n')
    ex = opt.get('exp', '')
    for i in range(n0, len(A.lines)):
        l = A.lines[i]
        if 'm' in ex and ('buffer_store_dword v%d, v%d, %s, s%d offen sc1' % (vMem, aMRst, S(WS), sMH)) in l:
            A.lines[i] = '  s_nop 0'
        if 'p' in ex and ('v_add_u32 v%d, v%d, v%d' % (aPF, vInc, aPF)) in l:
            A.lines[i] = '  s_nop 0'
        if 'p' in ex and ('s%d' % s256k) in l and 's_add_u32' in l:
            A.lines[i] = '  s_nop 0'
        if 'd' in ex and 'sc1 lds' in l:
            A.lines[i] = '  s_nop 0'
        if 'f' in ex and flag_load() in l and 'smfmac' in A.lines[i - 1]:
            A.lines[i] = '  v_mov_b32 v%d, 99' % vFlag
        if opt.get('free') and ('s_cbranch_vccnz L_c_x' in l or 's_cbranch_vccnz L_c_px' in l or 's_cbranch_vccnz L_c_slow' in l):
            A.lines[i] = l.replace('s_cbranch_vccnz', 's_cbranch_cdbgsys')
```

```python
from asmlib import *
import hazard

FLG = 0x0000000
PB = 0x0100000
MR = 0x0180000
MH = 0x0200000
TS = 0x0300000
QX = 0x1000000
KX = 0x2000000
VX = 0x3000000
OP = 0x4000000
BK = 0x8000000
BV = 0x8200000
BO = 0x8400000
NA = 4
NB = 3
F_KV = FLG
F_OP = FLG + 128 * 128
F_BKV = FLG + 256 * 128
F_BO = FLG + 384 * 128
NFLAGS = 512
D_ARR = 56 * 4
D_CLR = 57 * 4
D_ERR = 58 * 4
D_OVF = 59 * 4
def d_cnt_off(x): return 0 if x == 0 else 64 + 4 * x

XA, MEM0, WQ, WK, WV, WO, XB, WQKV, BWO, OUT, DBG, WS = [8 + 4 * i for i in range(12)]
def S(r): return 's[%d:%d]' % (r, r + 3)
sXCC, sWAVE, sGRP, sIDX, sFOR = 3, 4, 5, 6, 7
sBUD = 56
LOG2E = 1.4426950408889634

import struct
def f2u(f): return struct.unpack('<I', struct.pack('<f', f))[0]

def spin_check(A):
    A('s_sub_u32 s%d, s%d, 1' % (sBUD, sBUD))
    A('s_cbranch_scc1 L_timeout')

def prologue(A, fake=None, warm='', wmode=3):
    A('s_cmp_ge_u32 s2, 256')
    A('s_cbranch_scc1 L_exit')
    A('s_load_dwordx16 s[64:79], s[0:1], 0')
    A('s_load_dwordx8 s[80:87], s[0:1], 64')
    A('s_load_dwordx2 s[88:89], s[0:1], 96')
    A('s_getreg_b32 s%d, hwreg(HW_REG_XCC_ID)' % sXCC)
    A('s_and_b32 s%d, s%d, 0xf' % (sXCC, sXCC))
    if fake == 'shift':
        pass
    if fake == 'ovf':
        A('s_mov_b32 s%d, 9' % sXCC)
    if fake == 'half':
        A('s_bitcmp1_b32 s2, 3')
        A('s_cselect_b32 s%d, 9, s%d' % (sXCC, sXCC))
    A('v_lshrrev_b32 v1, 6, v0')
    A('v_and_b32 v0, 63, v0')
    A('v_readfirstlane_b32 s%d, v1' % sWAVE)
    A('s_mov_b32 s%d, 0x400000' % sBUD)
    A('s_waitcnt lgkmcnt(0)')
    sizes = {XA: (64, 2048 * 512 * 2), MEM0: (66, 8192), WQ: (68, 1 << 22), WK: (70, 1 << 22), WV: (72, 1 << 22), WO: (74, 1 << 22),
             XB: (78, 2048 * 512 * 2), WQKV: (80, 512 * 1536 * 2), BWO: (82, 512 * 512 * 2), OUT: (84, 2048 * 1024 * 2), DBG: (86, 256), WS: (88, 1 << 28)}
    for r in (DBG, WS, XA, MEM0, WQ, WK, WV, WO, XB, WQKV, BWO, OUT):
        srd(A, r, sizes[r][0], sizes[r][1])
    A('s_cmp_lg_u32 s%d, 0' % sWAVE)
    A('s_cbranch_scc1 L_warm')
    A('s_and_b32 s57, s%d, 3' % sXCC)
    A('s_lshl_b32 s57, s57, 6')
    A('s_and_b32 s58, s%d, 12' % sXCC)
    A('s_add_u32 s57, s57, s58')
    A('v_mov_b32 v2, s57')
    A('v_mov_b32 v3, 1')
    A('s_mov_b64 exec, 1')
    A('buffer_atomic_add v3, v2, %s, 0 offen sc0' % S(DBG))
    A('s_waitcnt vmcnt(0)')
    A('s_mov_b64 exec, -1')
    A('v_readfirstlane_b32 s58, v3')
    A('s_lshl_b32 s59, s%d, 5' % sXCC)
    A('s_add_u32 s59, s59, s58')
    A('s_cmp_ge_u32 s58, 32')
    A('s_cbranch_scc1 L_ovf')
    A('s_cmp_ge_u32 s%d, 8' % sXCC)
    A('s_cbranch_scc0 L_role_done')
    A('L_ovf:')
    A('v_mov_b32 v2, %d' % D_OVF)
    A('v_mov_b32 v3, 1')
    A('s_mov_b64 exec, 1')
    A('buffer_atomic_add v3, v2, %s, 0 offen sc0' % S(DBG))
    A('s_waitcnt vmcnt(0)')
    A('s_mov_b64 exec, -1')
    A('v_readfirstlane_b32 s58, v3')
    A('v_and_b32 v2, 3, v0')
    A('v_lshlrev_b32 v2, 6, v2')
    A('v_and_b32 v3, 12, v0')
    A('v_add_u32 v2, v2, v3')
    A('L_ovf_wait:')
    spin_check(A)
    A('s_sleep 8')
    A('buffer_load_dword v3, v2, %s, 0 offen sc1' % S(DBG))
    A('s_waitcnt vmcnt(0)')
    A('s_mov_b32 s60, 0')
    for x in range(16):
        A('v_readlane_b32 s61, v3, %d' % x)
        A('s_add_u32 s60, s60, s61')
    A('s_cmp_lt_u32 s60, 256')
    A('s_cbranch_scc1 L_ovf_wait')
    A('s_mov_b32 s59, 0x1000')
    for x in range(8):
        lab = A.label('L_ovf_n')
        A('v_readlane_b32 s61, v3, %d' % x)
        A('s_min_u32 s61, s61, 32')
        A('s_sub_u32 s60, 32, s61')
        A('s_cmp_lt_u32 s58, s60')
        A('s_cbranch_scc0 %s' % lab)
        A('s_add_u32 s59, s61, s58')
        A('s_add_u32 s59, s59, %d' % (x * 32 + 0x10000))
        A('s_branch L_role_done')
        A('%s:' % lab)
        A('s_sub_u32 s58, s58, s60')
    A('L_role_done:')
    A('v_mov_b32 v2, 0')
    A('v_mov_b32 v3, s59')
    A('ds_write_b32 v2, v3')
    A('s_waitcnt lgkmcnt(0)')
    A('s_branch L_role_wait')
    A('L_warm:')
    if warm and wmode in (1, 2):
        A('s_cmp_eq_u32 s%d, 0' % sXCC)
        A('s_cbranch_scc1 L_role_wait')
        A('s_lshl_b32 s60, s2, 14')
        A('s_sub_u32 s61, s%d, 1' % sWAVE)
        A('s_mul_i32 s61, s61, 6144')
        A('s_add_u32 s60, s60, s61')
        A('v_lshlrev_b32 v1, 4, v0')
        A('v_add_u32 v1, s60, v1')
        A('v_xor_b32 v2, 0x4000, v1')
        for r in [dict(q=WQ, k=WK, v=WV, o=WO)[c] for c in warm]:
            for va in ((1, 2) if wmode == 2 else (1,)):
                for i in range(6):
                    if i == 4:
                        lab = A.label('L_w')
                        A('s_cmp_eq_u32 s%d, 3' % sWAVE)
                        A('s_cbranch_scc1 %s' % lab)
                        A('s_movk_i32 s61, 4096')
                    A('buffer_load_dwordx4 v[252:255], v%d, %s, %s offen offset:%d' % (va, S(r), '0' if i < 4 else 's61', (i % 4) * 1024))
                A('%s:' % lab)
    A('L_role_wait:')
    A('s_barrier')
    A('v_mov_b32 v2, 0')
    A('ds_read_b32 v3, v2')
    A('s_waitcnt lgkmcnt(0)')
    A('v_readfirstlane_b32 s59, v3')
    A('s_barrier')
    A('s_lshr_b32 s%d, s59, 16' % sFOR)
    A('s_bfe_u32 s%d, s59, 0x80005' % sGRP)
    A('s_and_b32 s%d, s59, 31' % sIDX)
    A('s_cmp_ge_u32 s%d, 8' % sGRP)
    A('s_cbranch_scc1 L_exit')
    if warm and wmode == 3:
        A('s_cmp_lt_u32 s%d, 5' % sGRP)
        A('s_cbranch_scc1 L_nowarm')
        A('s_sub_u32 s60, s%d, 5' % sGRP)
        A('s_lshl_b32 s60, s60, 5')
        A('s_add_u32 s60, s60, s%d' % sIDX)
        A('s_lshl_b32 s60, s60, 2')
        A('s_add_u32 s60, s60, s%d' % sWAVE)
        A('s_mul_i32 s60, s60, %d' % (11 * 1024))
        A('v_lshlrev_b32 v1, 4, v0')
        for r in [dict(q=WQ, k=WK, v=WV, o=WO)[c] for c in warm]:
            A('s_mov_b32 s61, s60')
            for i in range(11):
                A('buffer_load_dwordx4 v[252:255], v1, %s, s61 offen' % S(r))
                A('s_add_u32 s61, s61, 1024')
        A('L_nowarm:')

def epilogue(A):
    A('L_timeout:')
    A('s_mov_b64 exec, 1')
    A('v_mov_b32 v2, %d' % D_ERR)
    A('v_mov_b32 v3, s%d' % sGRP)
    A('v_add_u32 v3, 0x100, v3')
    A('buffer_store_dword v3, v2, %s, 0 offen sc1' % S(DBG))
    A('L_exit:')
    A('s_endpgm')

def wait_dbg_word(A, off, minval, vt, va, mask=None):
    lab = A.label('L_wd')
    A('v_mov_b32 v%d, %d' % (va, off))
    A('%s:' % lab)
    spin_check(A)
    A('buffer_load_dword v%d, v%d, %s, 0 offen sc1' % (vt, va, S(DBG)))
    A('s_waitcnt vmcnt(0)')
    A('v_readfirstlane_b32 s57, v%d' % vt)
    if mask is not None:
        A('s_and_b32 s58, s57, 0x%x' % mask)
        A('s_cmp_lt_u32 s58, %d' % minval)
    else:
        A('s_cmp_lt_u32 s57, %d' % minval)
    A('s_cbranch_scc1 %s' % lab)

class QKVLoader:
    def __init__(self, A, vg, va, vb, lds_base, stmp):
        self.A = A; self.vg = vg; self.va = va; self.vb = vb; self.base = lds_base; self.st = stmp
        A('v_lshrrev_b32 v1, 2, v0')
        A('v_lshlrev_b32 v1, 13, v1')
        A('v_and_b32 v2, 3, v0')
        A('v_lshrrev_b32 v3, 5, v0')
        A('v_lshlrev_b32 v3, 1, v3')
        A('v_xor_b32 v2, v2, v3')
        A('v_lshlrev_b32 v2, 4, v2')
        A('v_add_u32 v1, v1, v2')
        A('s_lshl_b32 s%d, s%d, 8' % (stmp, sIDX))
        A('s_lshl_b32 s%d, s%d, 6' % (stmp + 1, sWAVE))
        A('s_add_u32 s%d, s%d, s%d' % (stmp, stmp, stmp + 1))
        A('v_add_u32 v%d, s%d, v1' % (vg, stmp))
        A('s_lshl_b32 s%d, s%d, 15' % (stmp + 2, sWAVE))
        A('s_add_u32 s%d, s%d, %d' % (stmp + 2, stmp + 2, lds_base))
        A('v_lshrrev_b32 v1, 4, v0')
        A('v_lshlrev_b32 v2, 9, v1')
        A('v_bfe_u32 v3, v0, 2, 2')
        A('v_lshl_add_u32 v2, v3, 6, v2')
        A('v_and_b32 v3, 3, v0')
        A('v_lshl_add_u32 v2, v3, 3, v2')
        A('v_and_b32 v1, 1, v1')
        A('v_lshl_add_u32 v2, v1, 5, v2')
        A('v_add_u32 v%d, s%d, v2' % (va, stmp + 2))
        A('v_xor_b32 v%d, 32, v%d' % (vb, va))
    def dma(self, srd_, i):
        A = self.A; st = self.st
        A('s_add_u32 m0, s%d, %d' % (st + 2, i * 1024))
        A('s_mov_b32 s%d, %d' % (st + 3, i * 16 * 8192))
        A('buffer_load_dwordx4 v%d, %s, s%d offen lds' % (self.vg, S(srd_), st + 3))
    def tr(self, kind, dst, ks):
        for tile, ad in ((0, self.va), (1, self.vb)):
            for u in range(2):
                r = dst + tile * 64 + ks * 4 + 2 * u
                self.A('ds_read_b64_tr_b16 %s[%d:%d], v%d offset:%d' % (kind, r, r + 1, ad, ks * 2048 + u * 256))

def rt_stamp(A, opt, slot, vt=1):
    if opt.get('dbgt') and not isinstance(slot, str):
        lab = A.label('L_dt')
        A('s_memrealtime s[92:93]')
        A('s_min_u32 s90, s%d, 1' % sGRP)
        A('s_cmp_ge_u32 s%d, 5' % sGRP)
        A('s_addc_u32 s90, s90, 0')
        A('s_mul_i32 s90, s90, 20')
        A('s_add_u32 s90, s90, %d' % (8 + 4 * min(slot, 4) if slot != 7 else 8 + 12))
        A('s_waitcnt lgkmcnt(0)')
        A('s_and_b32 s92, s92, 0xffffff')
        A('v_mov_b32 v%d, s90' % vt)
        A('v_mov_b32 v%d, s92' % (vt + 1))
        A('s_mov_b64 exec, 1')
        if not (slot in (3, 4, 5, 6) and opt.get('_b')):
            A('buffer_atomic_umax v%d, v%d, %s, 0 offen' % (vt + 1, vt, S(DBG)))
        A('s_mov_b64 exec, -1')
        return
    if not opt.get('stamp'):
        return
    A('s_memrealtime s[92:93]')
    A('s_lshl_b32 s90, s%d, 5' % sGRP)
    A('s_add_u32 s90, s90, s%d' % sIDX)
    A('s_lshl_b32 s90, s90, 2')
    A('s_add_u32 s90, s90, s%d' % sWAVE)
    A('s_lshl_b32 s90, s90, 8')
    if isinstance(slot, str):
        A('s_lshl_b32 s91, %s, 2' % slot)
        A('s_add_u32 s90, s90, s91')
        A('s_add_u32 s90, s90, %d' % TS)
    else:
        A('s_add_u32 s90, s90, %d' % (TS + slot * 4))
    A('s_waitcnt lgkmcnt(0)')
    A('v_mov_b32 v%d, s90' % vt)
    A('v_mov_b32 v%d, s92' % (vt + 1))
    A('s_mov_b64 exec, 1')
    A('buffer_store_dword v%d, v%d, %s, 0 offen' % (vt + 1, vt, S(WS)))
    A('s_mov_b64 exec, -1')

class RowLoader:
    def __init__(self, A, vg, va, base, st):
        self.A = A; self.vg = vg; self.va = va; self.base = base; self.st = st
        A('v_lshrrev_b32 v1, 4, v0')
        A('v_and_b32 v2, 15, v0')
        A('v_lshlrev_b32 v3, 1, v1')
        A('v_xor_b32 v2, v2, v3')
        A('v_lshlrev_b32 v2, 4, v2')
        A('v_lshl_add_u32 v2, v1, 13, v2')
        A('s_lshl_b32 s%d, s%d, 8' % (st, sIDX))
        A('s_lshl_b32 s%d, s%d, 17' % (st + 1, sWAVE))
        A('s_add_u32 s%d, s%d, s%d' % (st, st, st + 1))
        A('v_add_u32 v%d, s%d, v2' % (vg, st))
        A('v_xor_b32 v%d, 0x80, v%d' % (vg + 1, vg))
        A('s_lshl_b32 s%d, s%d, 12' % (st, sWAVE))
        A('s_add_u32 s%d, s%d, %d' % (st, st, base))
    def init_tr(self):
        A = self.A; va = self.va
        A('v_lshrrev_b32 v1, 4, v0')
        A('v_bfe_u32 v2, v0, 2, 2')
        A('v_lshl_add_u32 v3, v1, 3, v2')
        A('v_lshlrev_b32 v%d, 8, v3' % va)
        A('v_and_b32 v1, 1, v1')
        A('v_lshlrev_b32 v1, 3, v1')
        A('v_lshl_add_u32 v1, v2, 1, v1')
        A('v_bfe_u32 v2, v0, 1, 1')
        A('s_lshl_b32 s%d, s%d, 2' % (self.st + 1, sWAVE))
        A('v_add_u32 v2, s%d, v2' % (self.st + 1))
        A('v_xor_b32 v1, v1, v2')
        A('v_lshl_add_u32 v%d, v1, 4, v%d' % (va, va))
        A('v_and_b32 v1, 1, v0')
        A('v_lshl_add_u32 v%d, v1, 3, v%d' % (va, va))
        A('v_add_u32 v%d, %d, v%d' % (va, self.base, va))
        A('v_xor_b32 v%d, 32, v%d' % (va + 1, va))
        A('v_add_u32 v%d, 0x10000, v%d' % (va + 2, va))
        A('v_add_u32 v%d, 0x10000, v%d' % (va + 3, va + 1))
    def dma(self, srd_, c):
        A = self.A; st = self.st
        for j in range(4):
            A('s_add_u32 m0, s%d, %d' % (st, c * 16384 + j * 1024))
            A('s_mov_b32 s%d, %d' % (st + 1, (64 * c + 4 * j) * 8192))
            A('buffer_load_dwordx4 v%d, %s, s%d offen lds' % (self.vg + (j >> 1), S(srd_), st + 1))
    def tr(self, c, tile, kind, dst):
        for hb in range(2):
            for u in range(2):
                r = dst + 4 * hb + 2 * u
                self.A('ds_read_b64_tr_b16 %s[%d:%d], v%d offset:%d' % (kind, r, r + 1, self.va + tile + 2 * (c >> 2), (c & 3) * 16384 + hb * 8192 + u * 1024))
```

```python
from asmlib import *
import hazard

FLG = 0x0000000
PB = 0x0100000
MR = 0x0180000
MH = 0x0200000
TS = 0x0300000
QX = 0x1000000
KX = 0x2000000
VX = 0x3000000
OP = 0x4000000
BK = 0x8000000
BV = 0x8200000
BO = 0x8400000
NA = 4
NB = 3
F_KV = FLG
F_OP = FLG + 128 * 128
F_BKV = FLG + 256 * 128
F_BO = FLG + 384 * 128
NFLAGS = 512
D_ARR = 56 * 4
D_CLR = 57 * 4
D_ERR = 58 * 4
D_OVF = 59 * 4
def d_cnt_off(x): return 0 if x == 0 else 64 + 4 * x

XA, MEM0, WQ, WK, WV, WO, XB, WQKV, BWO, OUT, DBG, WS = [8 + 4 * i for i in range(12)]
def S(r): return 's[%d:%d]' % (r, r + 3)
sXCC, sWAVE, sGRP, sIDX, sFOR = 3, 4, 5, 6, 7
sBUD = 56
LOG2E = 1.4426950408889634

import struct
def f2u(f): return struct.unpack('<I', struct.pack('<f', f))[0]

def spin_check(A):
    A('s_sub_u32 s%d, s%d, 1' % (sBUD, sBUD))
    A('s_cbranch_scc1 L_timeout')

def prologue(A, fake=None, warm='', wmode=3):
    A('s_cmp_ge_u32 s2, 256')
    A('s_cbranch_scc1 L_exit')
    A('s_load_dwordx16 s[64:79], s[0:1], 0')
    A('s_load_dwordx8 s[80:87], s[0:1], 64')
    A('s_load_dwordx2 s[88:89], s[0:1], 96')
    A('s_getreg_b32 s%d, hwreg(HW_REG_XCC_ID)' % sXCC)
    A('s_and_b32 s%d, s%d, 0xf' % (sXCC, sXCC))
    if fake == 'shift':
        pass
    if fake == 'ovf':
        A('s_mov_b32 s%d, 9' % sXCC)
    if fake == 'half':
        A('s_bitcmp1_b32 s2, 3')
        A('s_cselect_b32 s%d, 9, s%d' % (sXCC, sXCC))
    A('v_lshrrev_b32 v1, 6, v0')
    A('v_and_b32 v0, 63, v0')
    A('v_readfirstlane_b32 s%d, v1' % sWAVE)
    A('s_mov_b32 s%d, 0x400000' % sBUD)
    A('s_waitcnt lgkmcnt(0)')
    sizes = {XA: (64, 2048 * 512 * 2), MEM0: (66, 8192), WQ: (68, 1 << 22), WK: (70, 1 << 22), WV: (72, 1 << 22), WO: (74, 1 << 22),
             XB: (78, 2048 * 512 * 2), WQKV: (80, 512 * 1536 * 2), BWO: (82, 512 * 512 * 2), OUT: (84, 2048 * 1024 * 2), DBG: (86, 256), WS: (88, 1 << 28)}
    for r in (DBG, WS, XA, MEM0, WQ, WK, WV, WO, XB, WQKV, BWO, OUT):
        srd(A, r, sizes[r][0], sizes[r][1])
    A('s_cmp_lg_u32 s%d, 0' % sWAVE)
    A('s_cbranch_scc1 L_warm')
    A('s_and_b32 s57, s%d, 3' % sXCC)
    A('s_lshl_b32 s57, s57, 6')
    A('s_and_b32 s58, s%d, 12' % sXCC)
    A('s_add_u32 s57, s57, s58')
    A('v_mov_b32 v2, s57')
    A('v_mov_b32 v3, 1')
    A('s_mov_b64 exec, 1')
    A('buffer_atomic_add v3, v2, %s, 0 offen sc0' % S(DBG))
    A('s_waitcnt vmcnt(0)')
    A('s_mov_b64 exec, -1')
    A('v_readfirstlane_b32 s58, v3')
    A('s_lshl_b32 s59, s%d, 5' % sXCC)
    A('s_add_u32 s59, s59, s58')
    A('s_cmp_ge_u32 s58, 32')
    A('s_cbranch_scc1 L_ovf')
    A('s_cmp_ge_u32 s%d, 8' % sXCC)
    A('s_cbranch_scc0 L_role_done')
    A('L_ovf:')
    A('v_mov_b32 v2, %d' % D_OVF)
    A('v_mov_b32 v3, 1')
    A('s_mov_b64 exec, 1')
    A('buffer_atomic_add v3, v2, %s, 0 offen sc0' % S(DBG))
    A('s_waitcnt vmcnt(0)')
    A('s_mov_b64 exec, -1')
    A('v_readfirstlane_b32 s58, v3')
    A('v_and_b32 v2, 3, v0')
    A('v_lshlrev_b32 v2, 6, v2')
    A('v_and_b32 v3, 12, v0')
    A('v_add_u32 v2, v2, v3')
    A('L_ovf_wait:')
    spin_check(A)
    A('s_sleep 8')
    A('buffer_load_dword v3, v2, %s, 0 offen sc1' % S(DBG))
    A('s_waitcnt vmcnt(0)')
    A('s_mov_b32 s60, 0')
    for x in range(16):
        A('v_readlane_b32 s61, v3, %d' % x)
        A('s_add_u32 s60, s60, s61')
    A('s_cmp_lt_u32 s60, 256')
    A('s_cbranch_scc1 L_ovf_wait')
    A('s_mov_b32 s59, 0x1000')
    for x in range(8):
        lab = A.label('L_ovf_n')
        A('v_readlane_b32 s61, v3, %d' % x)
        A('s_min_u32 s61, s61, 32')
        A('s_sub_u32 s60, 32, s61')
        A('s_cmp_lt_u32 s58, s60')
        A('s_cbranch_scc0 %s' % lab)
        A('s_add_u32 s59, s61, s58')
        A('s_add_u32 s59, s59, %d' % (x * 32 + 0x10000))
        A('s_branch L_role_done')
        A('%s:' % lab)
        A('s_sub_u32 s58, s58, s60')
    A('L_role_done:')
    A('v_mov_b32 v2, 0')
    A('v_mov_b32 v3, s59')
    A('ds_write_b32 v2, v3')
    A('s_waitcnt lgkmcnt(0)')
    A('s_branch L_role_wait')
    A('L_warm:')
    if warm and wmode in (1, 2):
        A('s_cmp_eq_u32 s%d, 0' % sXCC)
        A('s_cbranch_scc1 L_role_wait')
        A('s_lshl_b32 s60, s2, 14')
        A('s_sub_u32 s61, s%d, 1' % sWAVE)
        A('s_mul_i32 s61, s61, 6144')
        A('s_add_u32 s60, s60, s61')
        A('v_lshlrev_b32 v1, 4, v0')
        A('v_add_u32 v1, s60, v1')
        A('v_xor_b32 v2, 0x4000, v1')
        for r in [dict(q=WQ, k=WK, v=WV, o=WO)[c] for c in warm]:
            for va in ((1, 2) if wmode == 2 else (1,)):
                for i in range(6):
                    if i == 4:
                        lab = A.label('L_w')
                        A('s_cmp_eq_u32 s%d, 3' % sWAVE)
                        A('s_cbranch_scc1 %s' % lab)
                        A('s_movk_i32 s61, 4096')
                    A('buffer_load_dwordx4 v[252:255], v%d, %s, %s offen offset:%d' % (va, S(r), '0' if i < 4 else 's61', (i % 4) * 1024))
                A('%s:' % lab)
    A('L_role_wait:')
    A('s_barrier')
    A('v_mov_b32 v2, 0')
    A('ds_read_b32 v3, v2')
    A('s_waitcnt lgkmcnt(0)')
    A('v_readfirstlane_b32 s59, v3')
    A('s_barrier')
    A('s_lshr_b32 s%d, s59, 16' % sFOR)
    A('s_bfe_u32 s%d, s59, 0x80005' % sGRP)
    A('s_and_b32 s%d, s59, 31' % sIDX)
    A('s_cmp_ge_u32 s%d, 8' % sGRP)
    A('s_cbranch_scc1 L_exit')
    if warm and wmode == 3:
        A('s_cmp_lt_u32 s%d, 5' % sGRP)
        A('s_cbranch_scc1 L_nowarm')
        A('s_sub_u32 s60, s%d, 5' % sGRP)
        A('s_lshl_b32 s60, s60, 5')
        A('s_add_u32 s60, s60, s%d' % sIDX)
        A('s_lshl_b32 s60, s60, 2')
        A('s_add_u32 s60, s60, s%d' % sWAVE)
        A('s_mul_i32 s60, s60, %d' % (11 * 1024))
        A('v_lshlrev_b32 v1, 4, v0')
        for r in [dict(q=WQ, k=WK, v=WV, o=WO)[c] for c in warm]:
            A('s_mov_b32 s61, s60')
            for i in range(11):
                A('buffer_load_dwordx4 v[252:255], v1, %s, s61 offen' % S(r))
                A('s_add_u32 s61, s61, 1024')
        A('L_nowarm:')

def epilogue(A):
    A('L_timeout:')
    A('s_mov_b64 exec, 1')
    A('v_mov_b32 v2, %d' % D_ERR)
    A('v_mov_b32 v3, s%d' % sGRP)
    A('v_add_u32 v3, 0x100, v3')
    A('buffer_store_dword v3, v2, %s, 0 offen sc1' % S(DBG))
    A('L_exit:')
    A('s_endpgm')

def wait_dbg_word(A, off, minval, vt, va, mask=None):
    lab = A.label('L_wd')
    A('v_mov_b32 v%d, %d' % (va, off))
    A('%s:' % lab)
    spin_check(A)
    A('buffer_load_dword v%d, v%d, %s, 0 offen sc1' % (vt, va, S(DBG)))
    A('s_waitcnt vmcnt(0)')
    A('v_readfirstlane_b32 s57, v%d' % vt)
    if mask is not None:
        A('s_and_b32 s58, s57, 0x%x' % mask)
        A('s_cmp_lt_u32 s58, %d' % minval)
    else:
        A('s_cmp_lt_u32 s57, %d' % minval)
    A('s_cbranch_scc1 %s' % lab)

class QKVLoader:
    def __init__(self, A, vg, va, vb, lds_base, stmp):
        self.A = A; self.vg = vg; self.va = va; self.vb = vb; self.base = lds_base; self.st = stmp
        A('v_lshrrev_b32 v1, 2, v0')
        A('v_lshlrev_b32 v1, 13, v1')
        A('v_and_b32 v2, 3, v0')
        A('v_lshrrev_b32 v3, 5, v0')
        A('v_lshlrev_b32 v3, 1, v3')
        A('v_xor_b32 v2, v2, v3')
        A('v_lshlrev_b32 v2, 4, v2')
        A('v_add_u32 v1, v1, v2')
        A('s_lshl_b32 s%d, s%d, 8' % (stmp, sIDX))
        A('s_lshl_b32 s%d, s%d, 6' % (stmp + 1, sWAVE))
        A('s_add_u32 s%d, s%d, s%d' % (stmp, stmp, stmp + 1))
        A('v_add_u32 v%d, s%d, v1' % (vg, stmp))
        A('s_lshl_b32 s%d, s%d, 15' % (stmp + 2, sWAVE))
        A('s_add_u32 s%d, s%d, %d' % (stmp + 2, stmp + 2, lds_base))
        A('v_lshrrev_b32 v1, 4, v0')
        A('v_lshlrev_b32 v2, 9, v1')
        A('v_bfe_u32 v3, v0, 2, 2')
        A('v_lshl_add_u32 v2, v3, 6, v2')
        A('v_and_b32 v3, 3, v0')
        A('v_lshl_add_u32 v2, v3, 3, v2')
        A('v_and_b32 v1, 1, v1')
        A('v_lshl_add_u32 v2, v1, 5, v2')
        A('v_add_u32 v%d, s%d, v2' % (va, stmp + 2))
        A('v_xor_b32 v%d, 32, v%d' % (vb, va))
    def dma(self, srd_, i):
        A = self.A; st = self.st
        A('s_add_u32 m0, s%d, %d' % (st + 2, i * 1024))
        A('s_mov_b32 s%d, %d' % (st + 3, i * 16 * 8192))
        A('buffer_load_dwordx4 v%d, %s, s%d offen lds' % (self.vg, S(srd_), st + 3))
    def tr(self, kind, dst, ks):
        for tile, ad in ((0, self.va), (1, self.vb)):
            for u in range(2):
                r = dst + tile * 64 + ks * 4 + 2 * u
                self.A('ds_read_b64_tr_b16 %s[%d:%d], v%d offset:%d' % (kind, r, r + 1, ad, ks * 2048 + u * 256))

def rt_stamp(A, opt, slot, vt=1):
    if opt.get('dbgt') and not isinstance(slot, str):
        lab = A.label('L_dt')
        A('s_and_b32 s90, s%d, 15' % sIDX)
        A('s_or_b32 s90, s90, s%d' % sWAVE)
        A('s_cmp_lg_u32 s90, 0')
        A('s_cbranch_scc1 %s' % lab)
        A('s_memrealtime s[92:93]')
        A('s_min_u32 s90, s%d, 1' % sGRP)
        A('s_cmp_ge_u32 s%d, 5' % sGRP)
        A('s_addc_u32 s90, s90, 0')
        A('s_mul_i32 s90, s90, 20')
        A('s_add_u32 s90, s90, %d' % (8 + 4 * min(slot, 4) if slot != 7 else 8 + 12))
        A('s_waitcnt lgkmcnt(0)')
        A('s_and_b32 s92, s92, 0xffffff')
        A('v_mov_b32 v%d, s90' % vt)
        A('v_mov_b32 v%d, s92' % (vt + 1))
        A('s_mov_b64 exec, 1')
        if not (slot in (3, 4, 5, 6) and opt.get('_b')):
            A('buffer_atomic_umax v%d, v%d, %s, 0 offen' % (vt + 1, vt, S(DBG)))
        A('s_mov_b64 exec, -1')
        A('%s:' % lab)
        return
    if not opt.get('stamp'):
        return
    A('s_memrealtime s[92:93]')
    A('s_lshl_b32 s90, s%d, 5' % sGRP)
    A('s_add_u32 s90, s90, s%d' % sIDX)
    A('s_lshl_b32 s90, s90, 2')
    A('s_add_u32 s90, s90, s%d' % sWAVE)
    A('s_lshl_b32 s90, s90, 8')
    if isinstance(slot, str):
        A('s_lshl_b32 s91, %s, 2' % slot)
        A('s_add_u32 s90, s90, s91')
        A('s_add_u32 s90, s90, %d' % TS)
    else:
        A('s_add_u32 s90, s90, %d' % (TS + slot * 4))
    A('s_waitcnt lgkmcnt(0)')
    A('v_mov_b32 v%d, s90' % vt)
    A('v_mov_b32 v%d, s92' % (vt + 1))
    A('s_mov_b64 exec, 1')
    A('buffer_store_dword v%d, v%d, %s, 0 offen' % (vt + 1, vt, S(WS)))
    A('s_mov_b64 exec, -1')

class RowLoader:
    def __init__(self, A, vg, va, base, st):
        self.A = A; self.vg = vg; self.va = va; self.base = base; self.st = st
        A('v_lshrrev_b32 v1, 4, v0')
        A('v_and_b32 v2, 15, v0')
        A('v_lshlrev_b32 v3, 1, v1')
        A('v_xor_b32 v2, v2, v3')
        A('v_lshlrev_b32 v2, 4, v2')
        A('v_lshl_add_u32 v2, v1, 13, v2')
        A('s_lshl_b32 s%d, s%d, 8' % (st, sIDX))
        A('s_lshl_b32 s%d, s%d, 17' % (st + 1, sWAVE))
        A('s_add_u32 s%d, s%d, s%d' % (st, st, st + 1))
        A('v_add_u32 v%d, s%d, v2' % (vg, st))
        A('v_xor_b32 v%d, 0x80, v%d' % (vg + 1, vg))
        A('s_lshl_b32 s%d, s%d, 12' % (st, sWAVE))
        A('s_add_u32 s%d, s%d, %d' % (st, st, base))
    def init_tr(self):
        A = self.A; va = self.va
        A('v_lshrrev_b32 v1, 4, v0')
        A('v_bfe_u32 v2, v0, 2, 2')
        A('v_lshl_add_u32 v3, v1, 3, v2')
        A('v_lshlrev_b32 v%d, 8, v3' % va)
        A('v_and_b32 v1, 1, v1')
        A('v_lshlrev_b32 v1, 3, v1')
        A('v_lshl_add_u32 v1, v2, 1, v1')
        A('v_bfe_u32 v2, v0, 1, 1')
        A('s_lshl_b32 s%d, s%d, 2' % (self.st + 1, sWAVE))
        A('v_add_u32 v2, s%d, v2' % (self.st + 1))
        A('v_xor_b32 v1, v1, v2')
        A('v_lshl_add_u32 v%d, v1, 4, v%d' % (va, va))
        A('v_and_b32 v1, 1, v0')
        A('v_lshl_add_u32 v%d, v1, 3, v%d' % (va, va))
        A('v_add_u32 v%d, %d, v%d' % (va, self.base, va))
        A('v_xor_b32 v%d, 32, v%d' % (va + 1, va))
        A('v_add_u32 v%d, 0x10000, v%d' % (va + 2, va))
        A('v_add_u32 v%d, 0x10000, v%d' % (va + 3, va + 1))
    def dma(self, srd_, c):
        A = self.A; st = self.st
        for j in range(4):
            A('s_add_u32 m0, s%d, %d' % (st, c * 16384 + j * 1024))
            A('s_mov_b32 s%d, %d' % (st + 1, (64 * c + 4 * j) * 8192))
            A('buffer_load_dwordx4 v%d, %s, s%d offen lds' % (self.vg + (j >> 1), S(srd_), st + 1))
    def tr(self, c, tile, kind, dst):
        for hb in range(2):
            for u in range(2):
                r = dst + 4 * hb + 2 * u
                self.A('ds_read_b64_tr_b16 %s[%d:%d], v%d offset:%d' % (kind, r, r + 1, self.va + tile + 2 * (c >> 2), (c & 3) * 16384 + hb * 8192 + u * 1024))
```

```python
from common import *

def nseg_of_group(g):
    return len(range(g, 64, 3))

def p_phase(A, opt):
    A('L_aworker:')
    if 'p' not in opt['roles']:
        A('s_endpgm')
    A('s_and_b32 s60, s%d, 3' % sIDX)
    A('s_lshr_b32 s61, s%d, 2' % sIDX)
    A('s_sub_u32 s62, s%d, 1' % sGRP)
    A('s_lshl_b32 s62, s62, 3')
    A('s_add_u32 s%d, s61, s62' % sIDX)
    A('s_add_u32 s%d, s60, 1' % sGRP)
    ld = RowLoader(A, 104, 106, 32768, 64)
    mats = [(WK, 'a', 0), (WV, 'a', 128), (WQ, 'v', 128)]
    for c in range(8):
        ld.dma(mats[0][0], c)
    ld.init_tr()
    A('v_lshlrev_b32 v8, 4, v0')
    A('s_and_b32 s69, s%d, 1' % sWAVE)
    A('s_lshl_b32 s69, s69, 7')
    A('v_xor_b32 v110, s69, v8')
    for i in range(1, 8):
        A('v_xor_b32 v%d, %d, v110' % (110 + i, 16 * i))
    A('v_and_b32 v1, 15, v0')
    A('v_lshrrev_b32 v2, 4, v0')
    A('v_xor_b32 v2, v2, v1')
    A('v_lshlrev_b32 v2, 4, v2')
    A('v_lshl_add_u32 v4, v1, 10, v2')
    for q in range(1, 4):
        A('v_xor_b32 v%d, %d, v4' % (4 + q, 64 * q))
    A('s_lshl_b32 s68, s%d, 13' % sIDX)
    A('s_lshl_b32 s69, s%d, 10' % sWAVE)
    A('s_add_u32 s68, s68, s69')
    A('v_add_u32 v9, s68, v8')
    A('v_add_u32 v10, s69, v9')
    A('s_lshl_b32 s68, s60, 5')
    A('s_add_u32 s68, s68, s%d' % sIDX)
    A('s_lshl_b32 s68, s68, 7')
    A('v_mov_b32 v11, s68')
    A('s_lshl_b32 s70, s%d, 13' % sWAVE)
    def xdma1(sseg, sbuf, i):
        return ['s_add_u32 m0, s%d, %d' % (sbuf, i * 1024),
                's_add_u32 s69, s%d, %d' % (sseg, i * 1024),
                'buffer_load_dwordx4 v%d, %s, s69 offen lds' % (110 + i, S(XA))]
    A('s_lshl_b32 s71, s60, 15')
    A('s_add_u32 s71, s71, s70')
    for i in range(8):
        for x in xdma1(71, 70, i):
            A(x)
    for n in range(24):
        m, c = n // 8, n % 8
        young = 4 * (min(23, max(7, n + 6)) - n) + (8 if n < 8 else 0)
        A('s_waitcnt vmcnt(%d) lgkmcnt(0)' % young)
        A('s_barrier')
        if 1 <= n <= 16:
            ld.dma(mats[(n + 7) // 8][0], (n - 1) % 8)
        for tile in range(2):
            ld.tr(c, tile, mats[m][1], mats[m][2] + tile * 64 + 8 * c)
    A('s_waitcnt lgkmcnt(0)')
    wait_dbg_word(A, D_CLR, 1, 1, 2)
    rt_stamp(A, opt, 1)
    if opt.get('loadonly'):
        A('s_endpgm')
    A('s_mov_b32 s72, s60')
    A('s_mov_b32 s73, 0')
    A('s_mov_b32 s74, 32768')
    XF = 16
    ACC = 32
    PK = 80
    def acc(m, i, j): return ACC + m * 16 + (i * 2 + j) * 4
    A('s_mov_b32 s77, 0x40000000')
    def stores():
        r = []
        for m, base in ((0, KX), (2, VX), (1, QX)):
            for j in range(2):
                p = PK + (0 if m == 0 else (8 if m == 2 else 16)) + 4 * j
                r.append(['s_add_u32 s78, s77, %d' % (base + j * (1024 if m == 2 else 4096)),
                          'buffer_store_dwordx4 v[%d:%d], v%d, %s, s78 offen sc1' % (p, p + 3, 10 if m == 2 else 9, S(WS))])
        return r
    def cvts(m):
        r = []
        for j in range(2):
            p = PK + (0 if m == 0 else (8 if m == 2 else 16)) + 4 * j
            for i in range(2):
                d = acc(m, i, j)
                o0, o1 = (2 * i, 2 * i + 1) if m == 2 else (i, i + 2)
                r.append('v_cvt_pk_bf16_f32 v%d, v%d, v%d' % (p + o0, d, d + 1))
                r.append('v_cvt_pk_bf16_f32 v%d, v%d, v%d' % (p + o1, d + 2, d + 3))
        return r
    def pub():
        A('s_barrier')
        A('v_mov_b32 v12, s73')
        A('s_mov_b64 exec, 1')
        A('buffer_store_dword v12, v11, %s, 0 offen sc1' % S(WS))
        A('s_mov_b64 exec, -1')
    A('L_p_loop:')
    A('s_waitcnt vmcnt(1)')
    A('s_barrier')
    A('s_add_u32 s75, s72, 4')
    A('s_min_u32 s75, s75, 63')
    A('s_lshl_b32 s71, s75, 15')
    A('s_add_u32 s71, s71, s70')
    A('s_add_u32 s76, s74, s70')
    def rd(ks):
        b = XF + (ks & 1) * 8
        return ['ds_read_b128 v[%d:%d], v%d offset:%d' % (b + 4 * tt, b + 4 * tt + 3, 4 + ks % 4, tt * 16384 + (ks // 4) * 256) for tt in range(2)]
    for x in rd(0):
        A(x)
    st = stores()
    for ks in range(16):
        b = XF + (ks & 1) * 8
        M = []
        for m, (kind, base) in enumerate((('a', 0), ('v', 128))):
            for et in range(2):
                for tt in range(2):
                    d = acc(m, et, tt); wr = base + et * 64 + ks * 4
                    M.append('v_mfma_f32_16x16x32_bf16 v[%d:%d], %s[%d:%d], v[%d:%d], %s' % (d, d + 3, kind, wr, wr + 3, b + 4 * tt, b + 4 * tt + 3, '0' if ks == 0 else 'v[%d:%d]' % (d, d + 3)))
        for tt in range(2):
            for et in range(2):
                d = acc(2, tt, et); wr = 128 + et * 64 + ks * 4
                M.append('v_mfma_f32_16x16x32_bf16 v[%d:%d], v[%d:%d], a[%d:%d], %s' % (d, d + 3, b + 4 * tt, b + 4 * tt + 3, wr, wr + 3, '0' if ks == 0 else 'v[%d:%d]' % (d, d + 3)))
        F = [[] for _ in range(12)]
        if ks < 15:
            r = rd(ks + 1); F[0] = [r[0]]; F[1] = [r[1]]
        if ks < 3:
            F[3] = st[2 * ks]; F[7] = st[2 * ks + 1]
        elif ks < 11:
            F[4] = xdma1(71, 76, ks - 3)
        if ks == 15:
            c0, c1 = cvts(0), cvts(1)
            for q in range(4):
                F[5 + q] = c0[2 * q:2 * q + 2]
            for q in range(3):
                F[9 + q] = c1[2 * q:2 * q + 2]
            F[11] = F[11] + c1[6:] + cvts(2)
        A('s_waitcnt lgkmcnt(0)')
        for mi, f in zip(M, F):
            A(mi)
            for x in f:
                A(x)
        if ks == 13:
            A('s_waitcnt vmcnt(8)')
            pub()
    A('s_lshl_b32 s77, s72, 18')
    A('s_add_u32 s73, s73, 1')
    if opt.get('stamp'):
        A('s_add_u32 s89, s73, 8')
        rt_stamp(A, opt, 's89')
    if 'a' in opt.get('hold', ''):
        A('s_cmp_lg_u32 s73, 2')
        A('s_cbranch_scc1 L_p_nohold')
        hold_for_chain(A)
        A('L_p_nohold:')
    for q in range(4):
        A('v_xor_b32 v%d, 0x8000, v%d' % (4 + q, 4 + q))
    A('s_xor_b32 s74, s74, 32768')
    A('s_add_u32 s72, s72, 4')
    A('s_cmp_lt_u32 s72, 64')
    A('s_cbranch_scc1 L_p_loop')
    for x in st:
        A(x[0]); A(x[1])
    A('s_waitcnt vmcnt(0)')
    pub()


def o_phase(A, opt):
    import chain
    WOR = chain.WOR
    ST, KE, OE, FB = 0, 8192, 12288, 32768
    CA = chain.CA
    vIdx, vSel = 4, 8
    aQ, aL, aF, aKEw, aKEr, aOEw, aG, aOPst, aOPld, aOut, aFl, aFlAll = 5, 6, 7, 12, 13, 14, 15, 16, 17, 18, 19, 20
    vNeg = 21
    R0, R1, R2, T = 24, 56, 88, 120
    mOdd, mC = 96, 80
    sK, sSeg, sFb, sM0 = 70, 71, 72, 73
    A('L_o_start:')
    rt_stamp(A, opt, 2)
    A('v_and_b32 v1, 15, v0')
    A('v_lshrrev_b32 v2, 4, v0')
    A('v_lshlrev_b32 v3, 12, v2')
    A('v_lshl_add_u32 v3, v1, 3, v3')
    A('s_lshl_b32 s61, s%d, 17' % sIDX)
    A('s_lshl_b32 s62, s%d, 8' % sWAVE)
    A('s_add_u32 s61, s61, s62')
    A('v_add_u32 v22, s61, v3')
    for blk in range(8):
        for u in range(4):
            chain.wo_load(A, 22, blk, u, dense=True)
    A('v_lshlrev_b32 v%d, 4, v0' % aL)
    A('s_lshl_b32 s61, s%d, 11' % sWAVE)
    A('v_add_u32 v%d, s61, v%d' % (aQ, aL))
    A('s_add_u32 s%d, s61, %d' % (sM0, FB))
    A('s_lshl_b32 s62, s%d, 13' % sIDX)
    A('v_add_u32 v%d, s62, v%d' % (aG, aQ))
    A('v_add_u32 v%d, %d, v%d' % (aF, FB, aL))
    A('v_bfe_u32 v3, v0, 1, 1')
    A('v_mov_b32 v%d, 0x4444' % vIdx)
    A('v_mov_b32 v26, 0xeeee')
    A('v_cmp_eq_u32 vcc, 1, v3')
    A('v_cndmask_b32 v%d, v%d, v26, vcc' % (vIdx, vIdx))
    A('v_and_b32 v29, 1, v0')
    A('v_mov_b32 v27, 0x3f80')
    A('v_mov_b32 v28, 0x3f800000')
    A('v_cmp_eq_u32 vcc, 1, v29')
    A('v_cndmask_b32 v27, v27, v28, vcc')
    A('v_lshrrev_b32 v26, 1, v1')
    for u in range(4):
        A('v_cmp_eq_u32 vcc, %d, v26' % u)
        A('v_cndmask_b32 v%d, 0, v27, vcc' % (vSel + u))
    A('v_lshlrev_b32 v27, 4, v1')
    A('v_lshl_add_u32 v27, v2, 2, v27')
    A('s_lshl_b32 s62, s%d, 9' % sWAVE)
    A('v_add_u32 v%d, s62, v27' % aKEw)
    A('v_bfe_u32 v27, v0, 3, 1')
    A('v_lshlrev_b32 v27, 8, v27')
    A('v_lshl_add_u32 v27, v2, 6, v27')
    A('v_bfe_u32 v28, v0, 2, 1')
    A('v_lshl_add_u32 v27, v28, 4, v27')
    A('v_lshl_add_u32 v%d, v3, 3, v27' % aKEr)
    A('v_lshlrev_b32 v27, 17, v2')
    A('v_lshl_add_u32 v27, v1, 4, v27')
    A('s_lshl_b32 s62, s%d, 10' % sIDX)
    A('s_lshl_b32 s63, s%d, 8' % sWAVE)
    A('s_add_u32 s62, s62, s63')
    A('v_add_u32 v%d, s62, v27' % aOPst)
    A('v_lshlrev_b32 v27, 10, v2')
    A('v_lshl_add_u32 v27, v1, 4, v27')
    A('s_lshl_b32 s62, s%d, 15' % sIDX)
    A('s_add_u32 s62, s62, s63')
    A('v_add_u32 v%d, s62, v27' % aOPld)
    A('v_lshlrev_b32 v27, 7, v2')
    A('v_lshl_add_u32 v27, v1, 3, v27')
    A('s_lshl_b32 s62, s%d, 11' % sIDX)
    A('s_add_u32 s62, s62, s63')
    A('v_add_u32 v%d, s62, v27' % aOut)
    A('s_lshl_b32 s62, s60, 12')
    A('s_add_u32 s62, s62, %d' % F_OP)
    A('v_and_b32 v27, 31, v0')
    A('v_lshlrev_b32 v27, 7, v27')
    A('v_add_u32 v%d, s62, v27' % aFlAll)
    A('s_lshl_b32 s63, s%d, 7' % sIDX)
    A('s_add_u32 s62, s62, s63')
    A('v_mov_b32 v%d, s62' % aFl)
    A('v_mov_b32 v%d, 0x%x' % (vNeg, f2u(-1e30)))
    A('s_mov_b32 s%d, 0xffff0000' % mOdd); A('s_mov_b32 s%d, 0xffff0000' % (mOdd + 1))
    A('v_lshlrev_b32 v27, 2, v2')
    for rho in range(4):
        A('v_add_u32 v28, %d, v27' % rho)
        A('v_cmp_le_u32 s[%d:%d], v28, v1' % (mC + 2 * rho, mC + 2 * rho + 1))
    A('s_mov_b32 s79, 0x%x' % f2u(CA))
    A('s_mov_b32 s61, 0x05040100')
    A('s_mov_b32 s62, 0x07060302')
    for blk in range(8):
        A('s_waitcnt vmcnt(%d)' % (56 - 8 * blk))
        chain.wo_fix(A, blk, 48, 61, 62)
    wait_dbg_word(A, D_ARR, 32, 1, 2, mask=0xffff)
    def prefetch(sseg):
        A('s_lshl_b32 s61, s%d, 18' % sseg)
        for i, base in enumerate((QX, KX, VX)):
            A('s_add_u32 s62, s61, %d' % base)
            A('s_add_u32 m0, s%d, %d' % (sM0, i * 8192))
            A('buffer_load_dwordx4 v%d, %s, s62 offen sc1 lds' % (aG, S(WS)))
            A('buffer_load_dwordx4 v%d, %s, s62 offen offset:1024 sc1 lds' % (aG, S(WS)))
        A('s_xor_b32 s%d, s%d, %d' % (sM0, sM0, 32768 ^ 65536))
    def pub_flag():
        A('v_mov_b32 v1, s%d' % sK)
        A('s_mov_b64 exec, 1')
        A('buffer_store_dword v1, v%d, %s, 0 offen sc1' % (aFl, S(WS)))
        A('s_mov_b64 exec, -1')
    def red_issue():
        lp = A.label('L_o_fw')
        A('%s:' % lp)
        spin_check(A)
        A('buffer_load_dword v1, v%d, %s, 0 offen sc1' % (aFlAll, S(WS)))
        A('s_waitcnt vmcnt(0)')
        A('v_cmp_gt_u32 vcc, s%d, v1' % sK)
        A('s_cbranch_vccnz %s' % lp)
        A('s_sub_u32 s61, s%d, 4' % sSeg)
        A('s_lshl_b32 s61, s61, 20')
        A('s_add_u32 s61, s61, %d' % OP)
        for i in range(8):
            A('buffer_load_dwordx4 v[%d:%d], v%d, %s, s61 offen sc1' % (R2 + 4 * i, R2 + 4 * i + 3, aOPld, S(WS)))
            if i < 7:
                A('s_add_u32 s61, s61, 4096')
    def red_finish(D):
        for i in range(8):
            A('v_mfma_f32_16x16x32_bf16 v[%d:%d], v[%d:%d], v[%d:%d], %s' % (D, D + 3, vSel, vSel + 3, R2 + 4 * i, R2 + 4 * i + 3, '0' if i == 0 else 'v[%d:%d]' % (D, D + 3)))
        A('s_sub_u32 s61, s%d, 4' % sSeg)
        A('s_lshl_b32 s61, s61, 16')
        A('v_cvt_pk_bf16_f32 v%d, v%d, v%d' % (D, D, D + 1))
        A('v_cvt_pk_bf16_f32 v%d, v%d, v%d' % (D + 1, D + 2, D + 3))
        A('s_mov_b32 exec_hi, 0')
        A('buffer_store_dwordx2 v[%d:%d], v%d, %s, s61 offen' % (D, D + 1, aOut, S(OUT)))
        A('s_mov_b64 exec, -1')
    A('s_barrier')
    A('s_mov_b32 s%d, 0' % sK)
    A('s_mov_b32 s%d, s60' % sSeg)
    prefetch(sSeg)
    rt_stamp(A, opt, 3)
    sDone = 74
    KA, VA = R2, R2 + 8
    SM = [R2, R2 + 4]; SX0 = [R2 + 24, R2 + 28]; SX1 = R2 + 16
    AF = R0; QF = R1
    def smma(d, ab, qt):
        for ks in range(4):
            A('v_mfma_f32_16x16x32_bf16 v[%d:%d], v[%d:%d], v[%d:%d], %s' % (d, d + 3, ab + 4 * ks, ab + 4 * ks + 3, QF + 16 * qt + 4 * ks, QF + 16 * qt + 4 * ks + 3, '0' if ks == 0 else 'v[%d:%d]' % (d, d + 3)))
    def mem_ld():
        A('buffer_load_dwordx4 v[%d:%d], v%d, %s, s63 offen sc1' % (T, T + 3, aQ, S(WS)))
        A('buffer_load_dwordx4 v[%d:%d], v%d, %s, s63 offen offset:1024 sc1' % (T + 4, T + 7, aQ, S(WS)))
    def mem_chk():
        A('s_waitcnt vmcnt(0)')
        A('v_max3_u32 v1, v%d, v%d, v%d' % (T, T + 1, T + 2))
        A('v_max3_u32 v2, v%d, v%d, v%d' % (T + 3, T + 4, T + 5))
        A('v_max3_u32 v1, v1, v%d, v%d' % (T + 6, T + 7))
        A('v_max_u32 v1, v1, v2')
        A('v_cmp_eq_u32 vcc, -1, v1')
    A('L_o_loop:')
    A('s_lshl_b32 s63, s%d, 13' % sSeg)
    A('s_add_u32 s63, s63, %d' % MH)
    mem_ld()
    A('s_waitcnt vmcnt(2)')
    A('s_barrier')
    pub_flag()
    for i in range(8):
        A('ds_read_b128 v[%d:%d], v%d offset:%d' % (QF + 4 * i, QF + 4 * i + 3, aF, 1024 * i))
    for i in range(8):
        if i == 6:
            A('s_waitcnt lgkmcnt(6)')
        A('ds_read_b128 v[%d:%d], v%d offset:%d' % (R0 + 4 * i, R0 + 4 * i + 3, aF, 8192 + 1024 * i))
    A('s_cmp_eq_u32 s%d, 0' % sK)
    A('s_cselect_b32 s%d, 1, 0' % sDone)
    A('s_waitcnt vmcnt(1)')
    A('v_max3_u32 v1, v%d, v%d, v%d' % (T, T + 1, T + 2))
    A('v_max3_u32 v2, v%d, v%d, v%d' % (T + 3, T + 4, T + 5))
    A('v_max3_u32 v1, v1, v%d, v%d' % (T + 6, T + 7))
    A('v_max_u32 v1, v1, v2')
    A('v_cmp_eq_u32 s[76:77], -1, v1')
    A('s_cmp_eq_u64 s[76:77], 0')
    A('s_cbranch_scc1 L_o_pre')
    A('s_cmp_eq_u32 s%d, 1' % sDone)
    A('s_cbranch_scc1 L_o_pre')
    red_issue()
    A('s_waitcnt vmcnt(0)')
    red_finish(T)
    A('s_mov_b32 s%d, 1' % sDone)
    A('L_o_pre:')
    A('s_waitcnt lgkmcnt(0)')
    smma(SX1, R0 + 16, 1)
    smma(SX0[0], R0, 0)
    smma(SX0[1], R0, 1)
    for i in range(8):
        A('v_mov_b64 v[%d:%d], 0' % (KA + 2 * i, KA + 2 * i + 1))
    for d in (SX1, SX0[0]):
        for rho in range(4):
            A('v_cndmask_b32 v%d, v%d, v%d, s[%d:%d]' % (d + rho, vNeg, d + rho, mC + 2 * rho, mC + 2 * rho + 1))
    A('s_cmp_eq_u64 s[76:77], 0')
    A('s_cbranch_scc1 L_o_got')
    A('L_o_pa:')
    spin_check(A)
    mem_ld()
    mem_chk()
    A('s_cbranch_vccz L_o_got')
    A('s_sleep %d' % int(opt.get('osl', 2)))
    A('s_branch L_o_pa')
    A('L_o_got:')
    A('ds_write_b128 v%d, v[%d:%d] offset:%d' % (aQ, T, T + 3, ST))
    A('ds_write_b128 v%d, v[%d:%d] offset:%d' % (aQ, T + 4, T + 7, ST + 1024))
    A('s_waitcnt lgkmcnt(0)')
    A('s_barrier')
    for t in range(8):
        A('ds_read_b128 v[%d:%d], v%d offset:%d' % (AF + 4 * t, AF + 4 * t + 3, aL, ST + 1024 * t))
    def kv(m, acc, t):
        for tile in range(2):
            b = m * 128 + tile * 64 + t * 8
            A('v_smfmac_f32_16x16x64_bf16 v[%d:%d], v[%d:%d], a[%d:%d], v%d' % (acc + 4 * tile, acc + 4 * tile + 3, AF + 4 * t, AF + 4 * t + 3, b, b + 7, vIdx))
    for t in range(8):
        A('s_waitcnt lgkmcnt(%d)' % (7 - t))
        kv(0, KA, t)
    kv(1, VA, 0)
    for tile in range(2):
        d = KA + 4 * tile
        A('v_add_f32 v%d, v%d, v%d' % (d, d, d + 2))
        A('v_add_f32 v%d, v%d, v%d' % (d + 1, d + 1, d + 3))
        A('v_cvt_pk_bf16_f32 v%d, v%d, v%d' % (d, d, d + 1))
    A('ds_write_b32 v%d, v%d offset:%d' % (aKEw, KA, KE))
    A('ds_write_b32 v%d, v%d offset:%d' % (aKEw, KA + 4, KE + 256))
    for t in range(1, 4):
        kv(1, VA, t)
    A('s_waitcnt lgkmcnt(0)')
    A('s_barrier')
    KF = R0
    for t in range(4, 8):
        kv(1, VA, t)
        ks = t - 4
        for u in range(2):
            A('ds_read_b64_tr_b16 v[%d:%d], v%d offset:%d' % (KF + 4 * ks + 2 * u, KF + 4 * ks + 2 * u + 1, aKEr, KE + ks * 512 + u * 32))
    A('s_waitcnt lgkmcnt(0)')
    smma(SM[0], KF, 0)
    smma(SM[1], KF, 1)
    for tile in range(2):
        d = VA + 4 * tile
        A('v_add_f32 v%d, v%d, v%d' % (d, d, d + 2))
        A('v_add_f32 v%d, v%d, v%d' % (d + 1, d + 1, d + 3))
        A('v_cvt_pk_bf16_f32 v%d, v%d, v%d' % (d + 2, d, d + 1))
        A('v_cndmask_b32 v%d, v%d, 0, s[%d:%d]' % (d, d + 2, mOdd, mOdd + 1))
        A('v_cndmask_b32 v%d, 0, v%d, s[%d:%d]' % (d + 1, d + 2, mOdd, mOdd + 1))
    VXF = R0 + 24
    A('s_lshl_b32 s61, s%d, 11' % sWAVE)
    A('v_add_u32 v3, s61, v%d' % aF)
    A('ds_read_b128 v[%d:%d], v3 offset:%d' % (VXF, VXF + 3, 16384))
    A('ds_read_b128 v[%d:%d], v3 offset:%d' % (VXF + 4, VXF + 7, 16384 + 1024))
    A('v_xor_b32 v%d, %d, v%d' % (aF, 32768 ^ 65536, aF))
    PX = [R1, R1 + 4]; PM = [R1 + 8, R1 + 10]; RL = [R1 + 12, R1 + 13]
    OT = R0 + 8
    for qt in range(2):
        xs = [SX0[qt] + i for i in range(4)] + ([SX1 + i for i in range(4)] if qt else [])
        ms = [SM[qt] + i for i in range(4)]
        al = ms + xs
        A('v_max3_f32 v1, v%d, v%d, v%d' % tuple(al[:3]))
        k = 3
        while k + 1 < len(al):
            A('v_max3_f32 v1, v1, v%d, v%d' % (al[k], al[k + 1])); k += 2
        if k < len(al):
            A('v_max_f32 v1, v1, v%d' % al[k])
        chain.xred(A, 'v_max_f32', 1, 2)
        A('v_mul_f32 v1, s79, v1')
        for r in al:
            A('v_fma_f32 v%d, v%d, s79, -v1' % (r, r))
        for r in al:
            A('v_exp_f32 v%d, v%d' % (r, r))
        for i in range(4):
            if 2 * i < len(xs):
                A('v_cvt_pk_bf16_f32 v%d, v%d, v%d' % (PX[qt] + i, xs[2 * i], xs[2 * i + 1]))
            else:
                A('v_mov_b32 v%d, 0' % (PX[qt] + i))
        for i in range(2):
            A('v_cvt_pk_bf16_f32 v%d, v%d, v%d' % (PM[qt] + i, ms[2 * i], ms[2 * i + 1]))
        if qt == 0:
            A('s_waitcnt lgkmcnt(0)')
        for et in range(2):
            d = OT + (et * 2 + qt) * 4
            A('v_mfma_f32_16x16x32_bf16 v[%d:%d], v[%d:%d], v[%d:%d], 0' % (d, d + 3, VXF + 4 * et, VXF + 4 * et + 3, PX[qt], PX[qt] + 3))
        for et in range(2):
            d = OT + (et * 2 + qt) * 4
            A('v_mfma_f32_16x16x16_bf16 v[%d:%d], v[%d:%d], v[%d:%d], v[%d:%d]' % (d, d + 3, VA + 4 * et, VA + 4 * et + 1, PM[qt], PM[qt] + 1, d, d + 3))
        A('v_add_f32 v1, v%d, v%d' % (ms[0], ms[1]))
        A('v_add_f32 v2, v%d, v%d' % (ms[2], ms[3]))
        A('v_add_f32 v1, v1, v2')
        A('v_mul_f32 v1, 0.5, v1')
        for r in xs:
            A('v_add_f32 v1, v1, v%d' % r)
        chain.xred(A, 'v_add_f32', 1, 2)
        A('v_rcp_f32 v%d, v1' % RL[qt])
    for qt in range(2):
        for et in range(2):
            d = OT + (et * 2 + qt) * 4
            for i in range(4):
                A('v_mul_f32 v%d, v%d, v%d' % (d + i, d + i, RL[qt]))
            A('v_cvt_pk_bf16_f32 v%d, v%d, v%d' % (T + 4 * qt + 2 * et, d, d + 1))
            A('v_cvt_pk_bf16_f32 v%d, v%d, v%d' % (T + 4 * qt + 2 * et + 1, d + 2, d + 3))
        A('ds_write_b128 v%d, v[%d:%d] offset:%d' % (aQ, T + 4 * qt, T + 4 * qt + 3, OE + 1024 * qt))
    A('s_waitcnt lgkmcnt(0)')
    A('s_barrier')
    OA = R1
    for tt in range(2):
        for ks in range(4):
            b = OA + 16 * tt + 4 * ks
            A('ds_read_b128 v[%d:%d], v%d offset:%d' % (b, b + 3, aL, OE + 2048 * ks + 1024 * tt))
    A('s_cmp_eq_u32 s%d, 1' % sDone)
    A('s_cbranch_scc1 L_o_nored')
    red_issue()
    A('L_o_nored:')
    A('s_add_u32 s63, s%d, 4' % sSeg)
    A('s_min_u32 s63, s63, 63')
    prefetch(63)
    A('s_waitcnt lgkmcnt(0)')
    A('s_lshl_b32 s63, s%d, 20' % sSeg)
    A('s_add_u32 s63, s63, %d' % OP)
    OC = R0
    for tt in range(2):
        for ks in range(4):
            for j in range(8):
                d = OC + 4 * j; wr = WOR(j, ks // 2) + 4 * (ks % 2); b = OA + 16 * tt + 4 * ks
                A('v_mfma_f32_16x16x32_bf16 v[%d:%d], v[%d:%d], v[%d:%d], %s' % (d, d + 3, b, b + 3, wr, wr + 3, '0' if ks == 0 else 'v[%d:%d]' % (d, d + 3)))
        for rho in range(4):
            G = T + 4 * (rho & 1)
            for u in range(4):
                A('v_cvt_pk_bf16_f32 v%d, v%d, v%d' % (G + u, OC + 8 * u + rho, OC + 8 * u + 4 + rho))
            A('s_add_u32 s61, s63, %d' % ((16 * tt + rho) * 32768))
            A('buffer_store_dwordx4 v[%d:%d], v%d, %s, s61 offen sc1' % (G, G + 3, aOPst, S(WS)))
    A('s_cmp_eq_u32 s%d, 1' % sDone)
    A('s_cbranch_scc1 L_o_nored2')
    A('s_waitcnt vmcnt(14)')
    red_finish(R1)
    A('L_o_nored2:')
    if opt.get('stamp'):
        A('s_add_u32 s89, s70, 32')
        rt_stamp(A, opt, 's89')
    A('s_add_u32 s%d, s%d, 1' % (sK, sK))
    A('s_add_u32 s%d, s%d, 4' % (sSeg, sSeg))
    A('s_cmp_lt_u32 s%d, 64' % sSeg)
    A('s_cbranch_scc1 L_o_loop')
    A('s_waitcnt vmcnt(0)')
    A('s_barrier')
    pub_flag()
    red_issue()
    A('s_waitcnt vmcnt(0)')
    red_finish(R1)
    rt_stamp(A, opt, 4)
```

```python
from common import *

CB = 0.25 * LOG2E
NT = 6

def bworker(A, opt):
    opt = dict(opt, _b=1)
    A('L_bworker:')
    sJ, sU = 60, 70
    mHi16 = 96
    A('s_sub_u32 s%d, s%d, 5' % (sJ, sGRP))
    A('s_lshl_b32 s%d, s%d, 2' % (sU, sJ))
    A('s_add_u32 s%d, s%d, s%d' % (sU, sU, sWAVE))
    A('s_mov_b32 s%d, 0xffff0000' % mHi16); A('s_mov_b32 s%d, 0xffff0000' % (mHi16 + 1))
    MS = 16384 + 128
    A('v_lshrrev_b32 v1, 1, v0')
    A('v_mul_u32_u24 v1, 3072, v1')
    A('v_and_b32 v2, 1, v0')
    A('v_lshl_add_u32 v1, v2, 4, v1')
    A('s_lshl_b32 s61, s%d, 5' % sIDX)
    A('s_mul_i32 s62, s%d, %d' % (sWAVE, 128 * 3072))
    A('s_add_u32 s61, s61, s62')
    A('v_add_u32 v1, s61, v1')
    A('s_lshl_b32 s63, s%d, 12' % sWAVE)
    for mat in range(3):
        for i in range(4):
            A('s_add_u32 m0, s63, %d' % (mat * MS + i * 1024))
            A('s_mov_b32 s61, %d' % (mat * 1024 + i * 32 * 3072))
            A('buffer_load_dwordx4 v1, %s, s61 offen lds' % S(WQKV))
    WOI = 131072
    A('v_lshrrev_b32 v1, 2, v0')
    A('v_lshlrev_b32 v1, 10, v1')
    A('v_and_b32 v2, 3, v0')
    A('v_lshl_add_u32 v1, v2, 4, v1')
    A('s_and_b32 s61, s%d, 15' % sIDX)
    A('s_lshl_b32 s61, s61, 6')
    A('s_lshl_b32 s62, s%d, 17' % sWAVE)
    A('s_add_u32 s61, s61, s62')
    A('v_add_u32 v1, s61, v1')
    A('s_lshl_b32 s63, s%d, 13' % sWAVE)
    for i in range(8):
        A('s_add_u32 m0, s63, %d' % (WOI + i * 1024))
        A('s_mov_b32 s61, %d' % (i * 16384))
        A('buffer_load_dwordx4 v1, %s, s61 offen lds' % S(BWO))
    aL, aX, aTq, aTv, aKV, aVr, aFl, aBO, aOut, aTo = 4, 5, 6, 7, 8, 9, 10, 11, 12, 13
    vOne = 14
    A('v_lshlrev_b32 v%d, 4, v0' % aL)
    A('v_and_b32 v1, 31, v0')
    A('v_lshrrev_b32 v2, 5, v0')
    A('v_lshlrev_b32 v3, 10, v1')
    A('v_lshl_add_u32 v%d, v2, 4, v3' % aX)
    A('v_bfe_u32 v3, v0, 2, 2')
    A('v_lshl_add_u32 v3, v2, 3, v3')
    A('v_lshlrev_b32 v3, 5, v3')
    A('v_and_b32 v15, 3, v0')
    A('v_lshl_add_u32 v3, v15, 3, v3')
    A('v_add_u32 v%d, %d, v3' % (aTv, 2 * MS))
    A('v_bfe_u32 v16, v0, 4, 1')
    A('v_mul_u32_u24 v17, %d, v16' % MS)
    A('v_add_u32 v%d, v17, v3' % aTq)
    A('v_bfe_u32 v3, v0, 2, 2')
    A('v_lshl_add_u32 v3, v2, 2, v3')
    A('v_lshlrev_b32 v3, 6, v3')
    A('v_and_b32 v17, 1, v0')
    A('v_lshl_add_u32 v3, v17, 5, v3')
    A('v_lshl_add_u32 v3, v16, 4, v3')
    A('v_bfe_u32 v17, v0, 1, 1')
    A('v_lshl_add_u32 v3, v17, 3, v3')
    A('v_add_u32 v%d, %d, v3' % (aTo, WOI))
    A('s_lshl_b32 s61, s%d, 16' % sIDX)
    A('v_add_u32 v%d, s61, v%d' % (aKV, aL))
    A('v_and_b32 v3, 15, v0')
    A('v_lshl_add_u32 v3, v2, 5, v3')
    A('v_lshlrev_b32 v3, 4, v3')
    A('v_add_u32 v%d, 65536, v3' % aVr)
    A('s_lshl_b32 s61, s%d, 10' % sIDX)
    A('v_add_u32 v%d, s61, v%d' % (aBO, aL))
    A('v_lshlrev_b32 v3, 11, v1')
    A('v_lshl_add_u32 v3, v2, 5, v3')
    A('s_and_b32 s61, s%d, 15' % sIDX)
    A('s_lshl_b32 s61, s61, 6')
    A('s_add_u32 s61, s61, 1024')
    A('v_add_u32 v%d, s61, v3' % aOut)
    A('v_mov_b32 v%d, 0x3f803f80' % vOne)
    A('s_mov_b32 s79, 0x%x' % f2u(CB))
    A('s_waitcnt vmcnt(0)')
    A('s_barrier')
    for ks in range(32):
        for u in range(2):
            A('ds_read_b64_tr_b16 a[%d:%d], v%d offset:%d' % (4 * ks + 2 * u, 4 * ks + 2 * u + 1, aTq, ks * 512 + u * 128))
            A('ds_read_b64_tr_b16 a[%d:%d], v%d offset:%d' % (128 + 4 * ks + 2 * u, 128 + 4 * ks + 2 * u + 1, aTv, ks * 512 + u * 128))
        if ks % 2 == 1:
            A('s_waitcnt lgkmcnt(0)')
    if 'b' in opt.get('hold', ''):
        hold_for_chain(A)
    rt_stamp(A, opt, 1)
    QF = 24
    DQ, DV = 64, 80
    PKK, PKV = 48, 52
    XF = 128
    GA, RA = 96, 104
    A('v_and_b32 v1, 31, v0')
    A('v_lshrrev_b32 v2, 5, v0')
    A('v_xor_b32 v3, v1, v2')
    A('v_lshlrev_b32 v3, 4, v3')
    A('v_lshl_add_u32 v%d, v2, 10, v3' % GA)
    for j in range(1, 8):
        A('v_xor_b32 v%d, %d, v%d' % (GA + j, 32 * j, GA))
    A('v_and_b32 v3, 15, v0')
    A('v_xor_b32 v3, v3, v2')
    A('v_lshlrev_b32 v3, 4, v3')
    A('v_lshl_add_u32 v3, v1, 9, v3')
    A('s_lshl_b32 s74, s%d, 15' % sWAVE)
    A('v_add_u32 v%d, s74, v3' % RA)
    for j in range(1, 8):
        A('v_xor_b32 v%d, %d, v%d' % (RA + j, 32 * j, RA))
    A('s_waitcnt lgkmcnt(0)')
    A('s_barrier')
    A('s_mov_b32 s72, s%d' % sU)
    def xd(n):
        i_, hs = n // 2, n % 2
        g = [['s_add_u32 s75, s%d, %d' % (sU, 12 * i_), 's_min_u32 s75, s75, 63', 's_lshl_b32 s75, s75, 15']]
        for q in range(16):
            g.append(['s_add_u32 m0, s74, %d' % (hs * 16384 + q * 1024), 's_add_u32 s61, s75, %d' % (q * 2048 + hs * 512),
                      'buffer_load_dwordx4 v%d, %s, s61 offen lds' % (GA + q % 8, S(XB))])
        return g
    for grp in xd(0):
        for x in grp:
            A(x)
    for i in range(NT):
        A('s_min_u32 s73, s72, 63')
        for hs in range(2):
            n = 2 * i + hs
            nxt = xd(n + 1) if n + 1 < 2 * NT else []
            A('s_waitcnt vmcnt(%d)' % (2 if (hs == 0 and i > 0) else 0))
            def rdx(k):
                b_ = XF + 4 * (k % 4)
                A('ds_read_b128 v[%d:%d], v%d offset:%d' % (b_, b_ + 3, RA + k % 8, hs * 16384 + (k // 8) * 256))
            rdx(0); rdx(1); rdx(2)
            if nxt:
                for x in nxt.pop(0):
                    A(x)
            for k in range(16):
                ks = 16 * hs + k
                A('s_waitcnt lgkmcnt(%d)' % min(2, 15 - k))
                x = 'v[%d:%d]' % (XF + 4 * (k % 4), XF + 4 * (k % 4) + 3)
                A('v_mfma_f32_32x32x16_bf16 v[%d:%d], a[%d:%d], %s, %s' % (DQ, DQ + 15, 4 * ks, 4 * ks + 3, x, '0' if ks == 0 else 'v[%d:%d]' % (DQ, DQ + 15)))
                if k + 3 < 16:
                    rdx(k + 3)
                if nxt:
                    for y in nxt.pop(0):
                        A(y)
                A('v_mfma_f32_32x32x16_bf16 v[%d:%d], %s, a[%d:%d], %s' % (DV, DV + 15, x, 128 + 4 * ks, 128 + 4 * ks + 3, '0' if ks == 0 else 'v[%d:%d]' % (DV, DV + 15)))
        for r in range(8):
            A('v_mul_f32 v%d, s79, v%d' % (DQ + r, DQ + r))
        for r in range(4):
            A('v_cvt_pk_bf16_f32 v%d, v%d, v%d' % (QF + 4 * i + r, DQ + 2 * r, DQ + 2 * r + 1))
            A('v_cvt_pk_bf16_f32 v%d, v%d, v%d' % (PKK + r, DQ + 8 + 2 * r, DQ + 9 + 2 * r))
        for r in range(8):
            A('v_cvt_pk_bf16_f32 v%d, v%d, v%d' % (PKV + r, DV + 2 * r, DV + 2 * r + 1))
        for r in range(4):
            A('v_cndmask_b32 v%d, v%d, v%d, s[%d:%d]' % (PKV + r, PKV + r, PKV + 4 + r, mHi16, mHi16 + 1))
        A('s_lshl_b32 s61, s73, 10')
        A('s_add_u32 s62, s61, %d' % BK)
        A('buffer_store_dwordx4 v[%d:%d], v%d, %s, s62 offen sc1' % (PKK, PKK + 3, aKV, S(WS)))
        A('s_add_u32 s62, s61, %d' % BV)
        A('buffer_store_dwordx4 v[%d:%d], v%d, %s, s62 offen sc1' % (PKV, PKV + 3, aKV, S(WS)))
        A('s_add_u32 s72, s72, 12')
    rt_stamp(A, opt, 2)
    wait_dbg_word(A, D_CLR, 1, 1, 2)
    A('s_barrier')
    A('s_lshl_b32 s61, s%d, 9' % sIDX)
    A('s_add_u32 s61, s61, %d' % F_BKV)
    A('s_lshl_b32 s62, s%d, 7' % sJ)
    A('s_add_u32 s62, s62, s61')
    A('v_mov_b32 v1, s62')
    A('v_mov_b32 v2, 1')
    A('s_mov_b64 exec, 1')
    A('buffer_store_dword v2, v1, %s, 0 offen sc1' % S(WS))
    A('s_mov_b64 exec, -1')
    for ks in range(32):
        for u in range(2):
            A('ds_read_b64_tr_b16 a[%d:%d], v%d offset:%d' % (128 + 4 * ks + 2 * u, 128 + 4 * ks + 2 * u + 1, aTo, ks * 1024 + u * 512))
        if ks % 4 == 3:
            A('s_waitcnt lgkmcnt(0)')
    A('v_min_u32 v1, 2, v0')
    A('v_lshlrev_b32 v1, 7, v1')
    A('v_add_u32 v1, s61, v1')
    A('L_b_w1:')
    spin_check(A)
    A('buffer_load_dword v2, v1, %s, 0 offen sc1' % S(WS))
    A('s_waitcnt vmcnt(0)')
    A('v_cmp_ne_u32 vcc, 1, v2')
    A('s_cbranch_vccz L_b_g1')
    A('s_sleep 8')
    A('s_branch L_b_w1')
    A('L_b_g1:')
    A('s_lshl_b32 s63, s%d, 14' % sWAVE)
    for m, base in enumerate((BK, BV)):
        for i in range(4):
            A('s_add_u32 m0, s63, %d' % (m * 65536 + i * 4096))
            A('s_add_u32 s61, s63, %d' % (base + i * 4096))
            for q in range(4):
                A('buffer_load_dwordx4 v%d, %s, s61 offen offset:%d sc1 lds' % (aKV, S(WS), q * 1024))
    MX = 48
    for i in range(NT):
        A('v_mov_b32 v%d, 0x%x' % (MX + i, f2u(-3e38)))
    for r in range(16 * NT):
        A('v_accvgpr_write_b32 a%d, 0' % r)
    A('s_waitcnt vmcnt(0)')
    A('s_barrier')
    rt_stamp(A, opt, 3)
    KF = [56, 60]
    SB = [64, 80, 96]
    A('v_mov_b32 v15, v%d' % aL)
    A('ds_read_b128 v[%d:%d], v15' % (KF[0], KF[0] + 3))
    A('s_mov_b32 s71, 0')
    A('L_b_p1:')
    seq = [(p, i) for p in range(2) for i in range(NT)]
    def s1(n):
        p, i = seq[n]; d = SB[n % 3]
        A('v_mfma_f32_32x32x16_bf16 v[%d:%d], v[%d:%d], v[%d:%d], 0' % (d, d + 15, KF[p], KF[p] + 3, QF + 4 * i, QF + 4 * i + 3))
    def m1(n):
        p, i = seq[n]; d = SB[n % 3]
        for r in range(8):
            A('v_max3_f32 v%d, v%d, v%d, v%d' % (MX + i, MX + i, d + 2 * r, d + 2 * r + 1))
    A('ds_read_b128 v[%d:%d], v15 offset:1024' % (KF[1], KF[1] + 3))
    A('s_waitcnt lgkmcnt(1)')
    s1(0); s1(1)
    for n in range(len(seq)):
        if n + 2 < len(seq):
            if n + 2 == NT:
                A('s_waitcnt lgkmcnt(0)')
            s1(n + 2)
            if n + 2 == NT:
                A('ds_read_b128 v[%d:%d], v15 offset:2048' % (KF[0], KF[0] + 3))
        m1(n)
    A('v_add_u32 v15, 2048, v15')
    A('s_add_u32 s71, s71, 2')
    A('s_cmp_lt_u32 s71, 64')
    A('s_cbranch_scc1 L_b_p1')
    rt_stamp(A, opt, 4)
    NEG = 160
    for i in range(NT):
        A('v_mov_b32 v1, v%d' % (MX + i))
        A('v_permlane32_swap_b32 v%d, v1' % (MX + i))
        A('v_max_f32 v1, v1, v%d' % (MX + i))
        for r in range(16):
            A('v_sub_f32 v%d, 0, v1' % (NEG + 16 * i + r))
    VF = [112, 120]
    PB_ = [128, 136]
    A('s_waitcnt lgkmcnt(0)')
    A('v_mov_b32 v15, v%d' % aL)
    A('v_mov_b32 v16, v%d' % aVr)
    def rdkv(p, off):
        A('ds_read_b128 v[%d:%d], v15 offset:%d' % (KF[p], KF[p] + 3, off))
        A('ds_read_b128 v[%d:%d], v16 offset:%d' % (VF[p], VF[p] + 3, off))
        A('ds_read_b128 v[%d:%d], v16 offset:%d' % (VF[p] + 4, VF[p] + 7, off + 256))
    def fixv(p):
        for r in range(8):
            A('v_cndmask_b32 v%d, v%d, v%d, s[%d:%d]' % (VF[p] + r, VF[p] + r, vOne, mHi16, mHi16 + 1))
    def s2(n):
        p, i = seq[n]; d = SB[n % 2]
        A('v_mfma_f32_32x32x16_bf16 v[%d:%d], v[%d:%d], v[%d:%d], v[%d:%d]' % (d, d + 15, KF[p], KF[p] + 3, QF + 4 * i, QF + 4 * i + 3, NEG + 16 * i, NEG + 16 * i + 15))
    def e2(n):
        p, i = seq[n]; d = SB[n % 2]; pk = PB_[n % 2]
        for hf in range(2):
            for r in range(8):
                A('v_exp_f32 v%d, v%d' % (d + 8 * hf + r, d + 8 * hf + r))
            for r in range(4):
                A('v_cvt_pk_bf16_f32 v%d, v%d, v%d' % (pk + 4 * hf + r, d + 8 * hf + 2 * r, d + 8 * hf + 2 * r + 1))
            if hf == 0 and n > 0:
                pv(n - 1, 1)
        pv(n, 0)
    def pv(n, hf):
        p, i = seq[n]; pk = PB_[n % 2]
        A('v_mfma_f32_32x32x16_bf16 a[%d:%d], v[%d:%d], v[%d:%d], a[%d:%d]' % (16 * i, 16 * i + 15, VF[p] + 4 * hf, VF[p] + 4 * hf + 3, pk + 4 * hf, pk + 4 * hf + 3, 16 * i, 16 * i + 15))
    rdkv(0, 0)
    A('s_mov_b32 s71, 0')
    A('L_b_p2:')
    A('s_waitcnt lgkmcnt(0)')
    rdkv(1, 1024)
    s2(0)
    fixv(0)
    for n in range(len(seq)):
        if n + 1 < len(seq):
            if n + 1 == NT:
                A('s_waitcnt lgkmcnt(0)')
                fixv(1)
            s2(n + 1)
        e2(n)
        if n == NT:
            rdkv(0, 2048)
    pv(len(seq) - 1, 1)
    A('v_add_u32 v15, 2048, v15')
    A('v_add_u32 v16, 2048, v16')
    A('s_add_u32 s71, s71, 2')
    A('s_cmp_lt_u32 s71, 64')
    A('s_cbranch_scc1 L_b_p2')
    rt_stamp(A, opt, 5)
    A('s_mov_b32 s72, s%d' % sU)
    for i in range(NT):
        D = 64 + 16 * (i % 2)
        for r in range(9):
            A('v_accvgpr_read_b32 v%d, a%d' % (D + r, 16 * i + r))
        A('v_rcp_f32 v%d, v%d' % (D + 8, D + 8))
        for r in range(8):
            A('v_mul_f32 v%d, v%d, v%d' % (D + r, D + r, D + 8))
        for r in range(4):
            A('v_cvt_pk_bf16_f32 v%d, v%d, v%d' % (D + 12 + r, D + 2 * r, D + 2 * r + 1))
        A('s_min_u32 s73, s72, 63')
        A('s_lshl_b32 s61, s73, 15')
        A('s_add_u32 s61, s61, %d' % BO)
        A('buffer_store_dwordx4 v[%d:%d], v%d, %s, s61 offen sc1' % (D + 12, D + 15, aBO, S(WS)))
        A('s_add_u32 s72, s72, 12')
    A('s_waitcnt vmcnt(0) lgkmcnt(0)')
    A('s_barrier')
    A('s_lshl_b32 s61, s%d, 12' % sJ)
    A('s_add_u32 s61, s61, %d' % F_BO)
    A('s_lshl_b32 s62, s%d, 7' % sIDX)
    A('s_add_u32 s62, s62, s61')
    A('v_mov_b32 v1, s62')
    A('v_mov_b32 v2, 1')
    A('s_mov_b64 exec, 1')
    A('buffer_store_dword v2, v1, %s, 0 offen sc1' % S(WS))
    A('s_mov_b64 exec, -1')
    A('v_and_b32 v1, 31, v0')
    A('v_lshlrev_b32 v1, 7, v1')
    A('v_add_u32 v1, s61, v1')
    A('L_b_w2:')
    spin_check(A)
    A('buffer_load_dword v2, v1, %s, 0 offen sc1' % S(WS))
    A('s_waitcnt vmcnt(0)')
    A('v_cmp_ne_u32 vcc, 1, v2')
    A('s_cbranch_vccz L_b_g2')
    A('s_sleep 8')
    A('s_branch L_b_w2')
    A('L_b_g2:')
    rt_stamp(A, opt, 6)
    A('s_lshr_b32 s72, s%d, 4' % sIDX)
    A('s_mul_i32 s72, s72, 36')
    A('s_add_u32 s72, s72, s%d' % sU)
    A('s_mov_b32 s71, 0')
    A('L_b_3:')
    A('s_cmp_ge_u32 s72, 64')
    A('s_cbranch_scc1 L_exit')
    A('s_lshl_b32 s61, s72, 15')
    A('s_add_u32 s61, s61, %d' % BO)
    for ks in range(32):
        A('buffer_load_dwordx4 v[%d:%d], v%d, %s, s61 offen offset:%d sc1' % (XF + 4 * ks, XF + 4 * ks + 3, aL, S(WS), (ks % 4) * 1024))
        if ks % 4 == 3:
            A('s_add_u32 s61, s61, 4096')
    for ks in range(32):
        A('s_waitcnt vmcnt(%d)' % (31 - ks))
        A('v_mfma_f32_32x32x16_bf16 v[%d:%d], a[%d:%d], v[%d:%d], %s' % (DQ, DQ + 15, 128 + 4 * ks, 128 + 4 * ks + 3, XF + 4 * ks, XF + 4 * ks + 3, '0' if ks == 0 else 'v[%d:%d]' % (DQ, DQ + 15)))
    for r in range(8):
        A('v_cvt_pk_bf16_f32 v%d, v%d, v%d' % (DV + r, DQ + 2 * r, DQ + 2 * r + 1))
    A('s_lshl_b32 s61, s72, 16')
    A('buffer_store_dwordx4 v[%d:%d], v%d, %s, s61 offen' % (DV, DV + 3, aOut, S(OUT)))
    A('buffer_store_dwordx4 v[%d:%d], v%d, %s, s61 offen offset:16' % (DV + 4, DV + 7, aOut, S(OUT)))
    A('s_add_u32 s72, s72, 12')
    A('s_add_u32 s71, s71, 1')
    A('s_cmp_lt_u32 s71, 3')
    A('s_cbranch_scc1 L_b_3')
    rt_stamp(A, opt, 7)
    A('s_endpgm')
```

```python
from common import *
from chain import wo_load, wo_fix, WOR, CA, ph, ph_init, ph_acc, ph_out
from chain3 import *
import chain3

def U(i): return SB + 8 * i
WQA, WQB, WOV = 128, 192, 208
QU = {i: i for i in range(6)}
def qb_reg(i): return U(QU[i]) if i in QU else WQB + 8 * (i - 6)
def wo_res(j, t): return WOV + (j * 2 + t) * 8
aWS2 = 0
WO_L = [(j, t) for j in range(3, 8) for t in range(2)]
BLK_ORDER = [1, 3, 5, 0, 2, 4, 6, 7]
_order = [(4 * (blk & 1) + jj, blk >> 2, (blk >> 1) & 1) for blk in BLK_ORDER for jj in range(4) if 4 * (blk & 1) + jj >= 3]
def wo_cell(j, t, hb): return 12 + _order.index((j, t, hb))
def cell_ad(x):
    off = (x // 4) * 16384 + (x % 4) * 1024
    return (aWS, off) if off < 65536 else (aWS2, off - 65536)
def cell_rd(dst, x): return 'ds_read_b128 v[%d:%d], v%d offset:%d' % ((dst, dst + 3) + cell_ad(x))
def cell_wr(src, x):
    ad, off = cell_ad(x)
    return 'ds_write_b128 v%d, v[%d:%d] offset:%d' % (ad, src, src + 3, off)
def wo_rd(dst, j, t):
    return [cell_rd(dst + 4 * hb, wo_cell(j, t, hb)) for hb in range(2)]
def pre_reads():
    return [cell_rd(U(i) + 4 * hb, 2 * i + hb) for i in range(6) for hb in range(2)]

def load_weights(A, opt, ld, extra):
    mats = [WQ, WK, WV]
    RAW = {1: 208, 3: 224, 5: 240, 0: 20, 2: 36, 4: 108, 6: 52, 7: 68}
    TMP = 84
    def wl(blk):
        t, hb, half = blk >> 2, (blk >> 1) & 1, blk & 1
        for u in range(4):
            e0 = 64 * t + 32 * (u % 2) + 8 * hb + 2 * (u // 2)
            r = RAW[blk] + 4 * u
            A('s_mov_b32 s68, %d' % (e0 * 1024 + half * 128))
            A('buffer_load_dwordx2 v[%d:%d], v107, %s, s68 offen' % (r, r + 1, S(WO)))
            A('buffer_load_dwordx2 v[%d:%d], v107, %s, s68 offen offset:1024' % (r + 2, r + 3, S(WO)))
    def fix(blk):
        t, hb, half = blk >> 2, (blk >> 1) & 1, blk & 1
        for jj in range(4):
            j = 4 * half + jj
            d = wo_res(j, t) + 4 * hb if j < 3 else TMP + 4 * jj
            for u in range(4):
                r = RAW[blk] + 4 * u
                A('v_perm_b32 v%d, v%d, v%d, s%d' % (d + u, r + 2 + jj // 2, r + jj // 2, 62 if jj & 1 else 61))
            if j >= 3:
                A(cell_wr(d, wo_cell(j, t, hb)))
        A('s_waitcnt lgkmcnt(0)')
    DEP = int(opt.get('depth', 8))
    log = [('d', n) for n in range(DEP) for _ in range(4)] + [('x', 0)] * extra
    def wait_for(tag):
        last = max(i for i, t_ in enumerate(log) if t_ == tag)
        n = len(log) - 1 - last
        return min(n, 63)
    wl_at = {14: [1], 15: [3], 16: [5], 17: [0], 18: [2], 19: [4], 20: [6], 21: [7]}
    for n in range(24):
        m, c = n // 8, n % 8
        A('s_waitcnt vmcnt(%d) lgkmcnt(0)' % wait_for(('d', n)))
        if n == int(opt.get('arn', 8)):
            arrive(A)
        else:
            A('s_barrier')
        nx_ = n + DEP - 1 if DEP == 8 else n + DEP
        if DEP <= nx_ <= 23:
            ld.dma(mats[nx_ // 8], nx_ % 8); log += [('d', nx_)] * 4
        end = A.label('L_c_tr')
        for w in range(4):
            nx = A.label('L_c_tr')
            if w < 3:
                A('s_cmp_lg_u32 s%d, %d' % (sWAVE, w))
                A('s_cbranch_scc1 %s' % nx)
            i = c ^ (2 * w)
            if m == 0:
                ld.tr(c, 0, 'v', WQA + 8 * i)
                ld.tr(c, 1, 'v', qb_reg(i))
            else:
                for tile in range(2):
                    ld.tr(c, tile, 'a', (m - 1) * 128 + tile * 64 + 8 * i)
            if w < 3:
                A('s_branch %s' % end)
                A('%s:' % nx)
        A('%s:' % end)
        if n == int(opt.get('arn', 8)):
            A('v_min_u32 v%d, -2, v%d' % (vMem, vMem))
            A('s_mov_b32 s57, %d' % MR)
            A('buffer_store_dword v%d, v%d, %s, s57 offen sc1' % (vMem, aMRst, S(WS))); log += [('x', 1)]
            A('buffer_load_dword v3, off, %s, 0 offset:%d sc1' % (S(DBG), D_CLR)); log += [('x', 1)]
        if 17 <= n <= 19:
            for x in range(4 * (n - 17), 4 * (n - 17) + 4):
                A(cell_wr(SB + 4 * x, x))
        for blk in wl_at.get(n, []):
            wl(blk); log += [('w', blk)] * 8
        if n == int(opt.get('ldn', 21)) and opt.get('hold'):
            A('s_cmp_lg_u32 s%d, 0' % sWAVE)
            A('s_cbranch_scc1 L_c_nold')
            A('v_mov_b32 v1, 1')
            A('v_mov_b32 v2, %d' % D_LD)
            A('s_mov_b64 exec, 1')
            A('buffer_atomic_add v1, v2, %s, 0 offen' % S(DBG))
            A('s_mov_b64 exec, -1')
            A('L_c_nold:')
        if n == 20:
            A('s_mov_b32 s61, 0x05040100')
            A('s_mov_b32 s62, 0x07060302')
        if n >= 20:
            todo = {20: [1], 21: [3], 22: [5], 23: [0, 2, 4, 6]}[n]
            for blk in todo:
                A('s_waitcnt vmcnt(%d)' % wait_for(('w', blk)))
                fix(blk)
    A('s_waitcnt vmcnt(0) lgkmcnt(0)')
    A('s_barrier')
    fix(7)
sLo, sRng, sOne2 = 96, 97, 98
aX = [aQ, 1, 2, 3]
sH = 100
TR = SB + 6
aKX, aPE = aPF, vInc
PE = 14848


class Trk:
    def __init__(self, A, name):
        self.A = A; self.name = name; self.log = []
    def op(self, x, tag=None):
        self.A(x); self.log.append(tag)
    def wait(self, tag):
        last = max(i for i, t in enumerate(self.log) if t == tag)
        n = len(self.log) - 1 - last
        assert n <= 15
        self.A('s_waitcnt %s(%d)' % (self.name, n))
        self.log = self.log[last + 1:]
    def all(self):
        self.A('s_waitcnt %s(0)' % self.name); self.log = []

def mark(A, opt, tag, name):
    if tag == '_f' and opt.get('probe') == name:
        A('s_memtime s[10:11]')
    if tag == '_f' and name in opt.get('rt', '').split(','):
        k = opt['rt'].split(',').index(name)
        A('s_memrealtime s[%d:%d]' % (12 + 2 * k, 13 + 2 * k))

def loop(A, opt, SC, tag):
    o = lambda k, d: int(opt.get(k, d))
    A('L_c_start%s:' % tag)
    A('s_mov_b32 s%d, 0' % sS)
    A('s_mov_b32 s%d, %d' % (sRing, MR))
    A('s_mov_b32 s%d, %d' % (sRst, MR + 2 * 8192))
    A('s_mov_b32 s%d, %d' % (sMRend, MR + 3 * 8192))
    A('s_mov_b32 s%d, 1' % sTag)
    A('s_lshl_b32 s%d, s%d, 7' % (sG1, sIDX))
    A('s_mov_b32 s%d, 0' % sK1)
    A('s_mov_b32 s%d, 0x%x' % (sCA, f2u(CA)))
    A('s_lshl_b32 s%d, s%d, 13' % (sKoff, sIDX))
    A('s_add_u32 s%d, s%d, %d' % (sVoff, sKoff, VX))
    A('s_add_u32 s%d, s%d, %d' % (sKoff, sKoff, KX))
    A('s_mov_b32 s%d, %d' % (sMH, MH))
    A('s_mov_b32 s%d, 0x3f803f80' % sOne)
    A('s_mov_b32 s%d, 32768' % s32k)
    A('s_mov_b32 s%d, 2048' % sX1); A('s_mov_b32 s%d, 4096' % sX2); A('s_mov_b32 s%d, 6144' % sX3)
    A('s_mov_b32 s%d, 8192' % s8k)
    A('s_mov_b32 s%d, 262144' % s256k)
    lo, hi = f2u(2.0 ** -30), f2u(2.0 ** 30)
    if opt.get('forceslow'):
        lo, hi = f2u(2.0 ** 100), f2u(2.0 ** 101)
    A('s_mov_b32 s%d, 0x3f803f80' % sOne2); A('s_mov_b32 s%d, 0x3f803f80' % (sOne2 + 1))
    A('s_mov_b32 s%d, 0x%x' % (sLo, lo))
    A('s_mov_b32 s%d, 0x%x' % (sRng, hi - lo))
    A('s_mov_b32 s%d, 0' % sH)
    A('s_mov_b32 s%d, 1' % sK1)
    A('v_mov_b32 v%d, 0' % vFlag)
    pf = 'buffer_load_dword v%d, v%d, %s, s%d offen sc1' % (vInc, aPF, S(WS), sKoff)
    for x in dma_kv():
        A(x)
    A('s_add_u32 s%d, s%d, s%d' % (sKoff, sKoff, s256k))
    A('s_add_u32 s%d, s%d, s%d' % (sVoff, sVoff, s256k))
    for x in pre_reads():
        A(x)
    for i in range(12):
        A(z64(QA + 2 * i))
    rt_stamp(A, opt, 2)
    ph_init(A, opt)
    if opt.get('clk'):
        A('s_memtime s[8:9]')
    def Qa(i): return sm(QA, AF + 4 * i, WQA + 8 * i, 'v')
    def Qb(i): return sm(QA + 4, AF + 4 * i, qb_reg(i), 'v')
    def Ka(i): return sm(KA, AF + 4 * i, 8 * i, 'a')
    def Kb(i): return sm(KA + 4, AF + 4 * i, 64 + 8 * i, 'a')
    def Va(i): return sm(VA, AF + 4 * i, 128 + 8 * i, 'a')
    def Vb(i): return sm(VA + 4, AF + 4 * i, 192 + 8 * i, 'a')
    def afl(i):
        return 'buffer_load_dwordx4 v[%d:%d], v%d, %s, s%d offen offset:%d sc1' % (AF + 4 * i, AF + 4 * i + 3, aQ, S(WS), sRing, i * 1024)
    def afw(i):
        return 'ds_write_b128 v%d, v[%d:%d] offset:%d' % (aQ, AF + 4 * i, AF + 4 * i + 3, ST + i * 1024)
    def add(d, x, y): return 'v_add_f32 v%d, v%d, v%d' % (d, x, y)
    def cvt(d, x, y): return 'v_cvt_pk_bf16_f32 v%d, v%d, v%d' % (d, x, y)
    def ex(r): return 'v_exp_f32 v%d, v%d' % (r, r)
    def hsum(d): return [add(d, d, d + 2), add(d + 1, d + 1, d + 3)]
    mul = lambda d: 'v_mul_f32 v%d, s%d, v%d' % (d, sCA, d)
    zero = lambda r: 'v_mov_b32 v%d, 0' % r
    cmp_ = lambda i: 'v_cmp_eq_u32 vcc, -1, v%d' % (AF + 4 * i)
    M = lambda name: mark(A, opt, tag, name)
    A('s_and_b32 s57, s%d, 1' % sWAVE)
    A('s_lshl_b32 s57, s57, 3')
    A('v_add_u32 v%d, s57, v%d' % (aPE, aL))
    A('s_lshl_b32 s57, s57, 9')
    A('v_add_u32 v%d, s57, v%d' % (aKX, aL))
    for i in range(3):
        A('v_xor_b32 v%d, s%d, v%d' % (1 + i, sX1 + i, aQ))
    HA = o('ha', 1)
    L = Trk(A, 'lgkmcnt')
    A('L_c_ld%s:' % tag)
    A(afl(0)); A.nop(o('da1', 0)); A(afl(1))
    if HA:
        A.nop(o('ia', 24)); A('buffer_load_dwordx4 v[%d:%d], v%d, %s, s%d offen offset:1024 sc1' % (AF + 28, AF + 31, aQ, S(WS), sRing))
    A('s_waitcnt vmcnt(%d) lgkmcnt(0)' % (1 + HA))
    M('t')
    L.op(afw(0)); A(cmp_(0))
    A(Qb(0)); A(Qa(0))
    A('s_cbranch_vccnz L_c_x0%s' % tag)
    A('s_waitcnt vmcnt(%d)' % HA)
    L.op(afw(1)); A(cmp_(1))
    A(Kb(0)); A(Ka(0))
    A('s_cbranch_vccnz L_c_x1%s' % tag)
    A('L_c_r1%s:' % tag)
    A(Qb(1))
    L.all()
    A('s_barrier')
    M('sbar')
    if tag == '_f' and 'probe' in opt:
        A('s_waitcnt lgkmcnt(0)')
        A('s_sub_u32 s57, s10, s8')
        A('s_cmp_eq_u32 s%d, 0' % sS)
        A('s_cselect_b32 s57, 0, s57')
        A('s_add_u32 s36, s36, s57')
        A('s_memtime s[8:9]')
    rd = {i: 'ds_read_b128 v[%d:%d], v%d offset:%d' % (AF + 4 * i, AF + 4 * i + 3, i // 2, ST + (i % 2) * 1024) for i in range(2, 8)}
    L.op(rd[2], 2)
    for m_, i in ((Qa(1), 3), (Kb(1), 4), (Ka(1), 5), (Va(0), 6), (Vb(0), 7)):
        A(m_)
        if i == 6 and HA:
            A('s_waitcnt vmcnt(0)')
        L.op(rd[i], i)
    SM, SX = AF, AF + 4
    KXR = U(0); QF = U(4); KF = QA; VXF = U(2)
    kk = ['ds_read_b128 v[%d:%d], v%d offset:%d' % (KXR + 4 * q, KXR + 4 * q + 3, aKX, KB + q * 1024) for q in range(4)]
    vx = ['ds_read_b128 v[%d:%d], v%d offset:%d' % (VXF + 4 * q, VXF + 4 * q + 3, aQ, VB + 1024 * q) for q in range(2)]
    vm = {2: 'buffer_store_dword v%d, v%d, %s, s%d offen sc1' % (vMem, aMRst, S(WS), sMH), 5: flag_load()}
    dk = dma_kv()
    qb, qa, kb_, ka_ = QA + 4, QA, KA + 4, KA
    OCt = [KA, KA + 4, QA, QA + 4, AF, AF + 4, AF + 8, AF + 12]
    WU = [U(4), U(3), AF + 16, AF + 24, U(0), U(1), U(2), VA, U(3), AF + 16]
    def wq(k): return [(x, 'w%d' % k) for x in wo_rd(WU[k], *WO_L[k])]
    g1 = {2: [vm[2]], 3: [z64(SM)], 4: [vm[5]], 5: [z64(SM + 2)]}
    for i in range(2, 8):
        L.wait(i); A(Qb(i))
        for x in g1.get(i, []):
            A(x)
        if i >= 6:
            L.op(kk[i - 6])
    A(Qa(2)); L.op(kk[2])
    A(Qa(3)); A(hsum(qb)[0])
    A(Qa(4)); A(hsum(qb)[1])
    A(Qa(5)); A(mul(qb))
    A(Qa(6)); A(mul(qb + 1))
    A(Qa(7)); A(cvt(qb, qb, qb + 1))
    M('qdone')
    w1 = wq(1)
    A(Kb(2)); L.op(kk[3])
    A(Kb(3)); A(hsum(qa)[0]); A(hsum(qa)[1])
    A(Kb(4)); A(mul(qa)); A(mul(qa + 1))
    A(Kb(5)); A(cvt(qa, qa, qa + 1))
    A(Kb(6)); L.op('ds_write2_b32 v%d, v%d, v%d offset1:72' % (aQEw, qa, qb), 'qw')
    A(Kb(7)); L.op(vx[0], 'vx')
    A(Ka(2)); L.op(vx[1], 'vx')
    A(Ka(3)); A(hsum(kb_)[0])
    A(Ka(4))
    L.wait('qw')
    A('s_barrier')
    M('qbar')
    def qt(ks):
        for u in range(2):
            L.op('ds_read_b64_tr_b16 v[%d:%d], v%d offset:%d' % (QF + 4 * ks + 2 * u, QF + 4 * ks + 2 * u + 1, aQEr, QE + ks * 576 + u * 32), 'q%d' % ks)
    def kt(t):
        for u in range(2):
            L.op('ds_read_b64_tr_b16 v[%d:%d], v%d offset:%d' % (KF + 4 * t + 2 * u, KF + 4 * t + 2 * u + 1, aKEr, KE + t * 1152 + u * 32), 'k')
    X = [mm(SX, KXR + 4 * ks, QF + 4 * ks, ks == 0) for ks in range(4)]
    A(dk[0])
    dsl = [int(c) for c in opt.get('ds', '0135')]
    dseq = [[dk[1]], [dk[2], dk[3]], [dk[4]], [dk[5]]]
    def D_(k):
        if k in dsl:
            for x in dseq[dsl.index(k)]:
                A(x)
    A(Ka(5)); qt(0)
    A(Ka(6)); qt(1)
    A(Ka(7)); qt(2)
    A(Va(1)); qt(3)
    A(Vb(1)); D_(0); L.wait('q1'); A(hsum(kb_)[1])
    A(X[0]); A(hsum(ka_)[0]); A(hsum(ka_)[1])
    A(X[1]); L.wait('q3'); A(cvt(kb_ + 3, kb_, kb_ + 1)); A(cvt(kb_ + 2, ka_, ka_ + 1))
    A(X[2]); L.op('ds_write_b64 v%d, v[%d:%d]' % (aKEw, kb_ + 2, kb_ + 3))
    A(X[3]); D_(1)
    PX, PM = U(0), U(0) + 4
    LS, ONE, G, OA, OT = U(1), U(1) + 4, U(4), U(5), AF + 8
    va, vb = VA, VA + 4
    one = lambda q: 'v_mov_b64 v[%d:%d], s[%d:%d]' % (ONE + 2 * q, ONE + 2 * q + 1, sOne2, sOne2 + 1)
    A(Va(2)); D_(2)
    A(Vb(2)); A(ex(SX)); A(ex(SX + 1))
    A(Va(3)); A(ex(SX + 2)); A(ex(SX + 3))
    A(cvt(SX, SX, SX + 1)); A(cvt(SX + 1, SX + 2, SX + 3))
    A(Vb(3)); L.op('ds_write_b64 v%d, v[%d:%d] offset:%d' % (aPE, SX, SX + 1, PE))
    A(Va(4)); D_(3)
    A(Vb(4)); D_(4)
    A(Va(5))
    L.all()
    A('s_barrier')
    M('kbar')
    A(Vb(5)); kt(0)
    A(Va(6)); kt(1)
    A(Va(7)); L.op('ds_read_b128 v[%d:%d], v%d offset:%d' % (PX, PX + 3, aL, PE), 'px')
    w2, w3, w0 = wq(2), wq(3), wq(0)
    A(Vb(6)); D_(5); A(one(0))
    A(Vb(7)); L.wait('k'); A(one(1))
    A(sm(SM, KF, QF, 'v')); L.op(*w1[0])
    A(sm(SM, KF + 4, QF + 8, 'v')); L.op(*w1[1])
    M('xdone')
    def m16(d, a_):
        return 'v_mfma_f32_16x16x16_bf16 v[%d:%d], v[%d:%d], v[%d:%d], v[%d:%d]' % (d, d + 3, a_, a_ + 1, PM, PM + 1, d, d + 3)
    L.wait('px')
    A(mm(LS, ONE, PX, True)); D_(6); A(hsum(va)[0]); A(hsum(va)[1])
    A(mm(OT, VXF, PX, True)); A(hsum(SM)[0]); A(hsum(SM)[1])
    A(mm(OT + 4, VXF + 4, PX, True)); A(ex(SM)); A(ex(SM + 1))
    A(cvt(va, va, va + 1)); A(zero(PM + 1)); A(cvt(PM, SM, SM + 1)); A(zero(va + 1)); A(hsum(vb)[0])
    A(m16(LS, ONE)); A(hsum(vb)[1]); A(cvt(vb, vb, vb + 1))
    A(m16(OT, va)); A(zero(vb + 1)); L.op(*w0[0])
    A(m16(OT + 4, vb)); L.op(*w0[1])
    M('pv')
    A('v_rcp_f32 v%d, v%d' % (TR, LS))
    A('v_subrev_u32 v%d, s%d, v%d' % (TR + 1, sLo, LS))
    A('L_c_norm%s:' % tag)
    for i in range(4):
        A('v_mul_f32 v%d, v%d, v%d' % (OT + i, OT + i, TR))
    GO = LS
    A(cvt(GO, OT, OT + 1)); A(cvt(GO + 1, OT + 2, OT + 3))
    for i in range(4, 8):
        A('v_mul_f32 v%d, v%d, v%d' % (OT + i, OT + i, TR))
    A(cvt(GO + 2, OT + 4, OT + 5)); A(cvt(GO + 3, OT + 6, OT + 7))
    L.op('ds_write_b128 v%d, v[%d:%d] offset:%d' % (aOEw, GO, GO + 3, OE), 'ow')
    M('ow')
    A('v_cmp_lt_u32 vcc, s%d, v%d' % (sRng, TR + 1))
    ZP = va + 2
    A(z64(ZP))
    L.op(*w2[0]); L.op(*w2[1])
    A('s_cbranch_vccnz L_c_slow%s' % tag)
    zm = lambda d: 'v_mfma_f32_32x32x8_bf16 v[%d:%d], v[%d:%d], v[%d:%d], 0' % (d, d + 15, ZP, ZP + 1, ZP, ZP + 1)
    A(zm(QA)); D_(7)
    L.wait('ow')
    A('s_barrier')
    M('obar')
    L.op('ds_read_b128 v[%d:%d], v%d offset:%d' % (OA, OA + 3, aOEr, OE), 'o0')
    L.op('ds_read_b128 v[%d:%d], v%d offset:%d' % (OA + 4, OA + 7, aOEr, OE + 1024), 'o1')
    A(zm(AF)); D_(8)
    L.op(*w3[0]); L.op(*w3[1])
    zz = []
    wr = []
    for k in range(4, 10):
        wr += wq(k)
    def nw(n=1):
        for _ in range(n):
            L.op(*wr.pop(0))
    def wreg(j, t):
        return wo_res(j, t) if j < 3 else WU[WO_L.index((j, t))]
    def O(j, t):
        A(sm(OCt[j], OA + 4 * t, wreg(j, t), 'v'))
    def hs(j): return hsum(OCt[j])
    def cv(hf, hi):
        j = 4 * hf + 2 * hi
        return [cvt(G + 4 * hf + 2 * hi + b, OCt[j] + b, OCt[j + 1] + b) for b in range(2)]
    bfi = lambda hf: 'v_bfi_b32 v%d, 1, s%d, v%d' % (G + 4 * hf, sTag, G + 4 * hf)
    st = lambda hf: 'buffer_store_dwordx4 v[%d:%d], v%d, %s, %s offen %s' % (G + 4 * hf, G + 4 * hf + 3, aPBst, S(WS), 's%d' % s32k if hf else '0', SC)
    for x in zz[6:]:
        A(x)
    L.wait('o0')
    M('oa')
    O(3, 0)
    L.wait('o1')
    O(3, 1); nw()
    O(2, 0); nw()
    O(2, 1); nw(); A(hs(3)[0])
    O(0, 0); nw(); A(hs(3)[1])
    O(0, 1); nw(); A(hs(2)[0])
    O(1, 0); nw(); A(hs(2)[1])
    O(1, 1); nw(); A(cv(0, 1)[0])
    L.wait('w3')
    O(4, 0); nw(); A(cv(0, 1)[1]); A(hs(0)[0])
    O(4, 1); nw(2); A(hs(0)[1]); A(hs(1)[0])
    L.wait('w5')
    O(5, 0); nw(2); A(hs(1)[1]); A(cv(0, 0)[0])
    O(5, 1); A(cv(0, 0)[1]); A(bfi(0))
    L.wait('w7')
    O(6, 0); A(st(0)); A(hs(4)[0]); A(hs(4)[1])
    M('s1')
    O(6, 1); A(hs(5)[0]); A(hs(5)[1])
    L.wait('w9')
    O(7, 0); A(cv(1, 0)[0])
    O(7, 1)
    M('odone')
    for x in [cv(1, 0)[1], bfi(1)] + hs(6) + hs(7) + cv(1, 1) + [st(1)]:
        A(x)
    M('s2')
    R, D = AF + 16, AF + 24
    R2 = AF + 8
    def pb_loads(R=R):
        A('buffer_load_dwordx4 v[%d:%d], v%d, %s, s%d offen sc1' % (R, R + 3, aL, S(WS), sPBld))
        A('buffer_load_dwordx4 v[%d:%d], v%d, %s, s%d offen offset:1024 sc1' % (R + 4, R + 7, aL, S(WS), sPBld))
    hk = [z64(QA + 2 * i) for i in range(12)]
    for r_ in (sRing, sRst):
        hk += ['s_add_u32 s%d, s%d, s%d' % (r_, r_, s8k), 's_cmp_eq_u32 s%d, s%d' % (r_, sMRend), 's_cselect_b32 s%d, %d, s%d' % (r_, MR, r_)]
    hk += ['s_add_u32 s%d, s%d, 1' % (sS, sS), 's_add_u32 s%d, s%d, s%d' % (sKoff, sKoff, s256k), 's_add_u32 s%d, s%d, s%d' % (sVoff, sVoff, s256k),
           's_add_u32 s%d, s%d, s%d' % (sMH, sMH, s8k), 'v_mov_b32 v%d, -1' % (D + 4)]
    pr = pre_reads()
    P1 = o('p1', 12); P2 = o('p2', 12); P3 = o('p3', 12); HB = o('hb', 1)
    P0 = o('p0', 10)
    for x in hk + pr[:max(P0, 0)]:
        A(x)
    la, lb = A.label('L_c_h'), A.label('L_c_h')
    if P0 >= 0:
        A('s_cmp_ge_u32 s%d, 2' % sWAVE)
        A('s_cbranch_scc1 %s' % la)
        pb_loads()
        A('%s:' % la)
    for x in pr[max(P0, 0):P1]:
        A(x)
    if P0 >= 0:
        A('s_cbranch_scc0 %s' % lb)
    A.nop(o('db', 24))
    pb_loads()
    A('%s:' % lb)
    M('poll')
    for x in pr[P1:max(P1, P2)]:
        A(x)
    if HB:
        A.nop(o('ib', 20))
        pb_loads(R2)
    for x in pr[max(P1, P2):P3]:
        A(x)
    A('s_waitcnt vmcnt(%d)' % (2 * HB + 1))
    A(mm(D, vSel, R, True))
    A('v_xor_b32 v%d, s%d, v%d' % (D + 5, sTag, R))
    A('s_waitcnt vmcnt(%d)' % (2 * HB))
    A(mm(D, vSel, R + 4, False))
    M('pbd')
    A('v_xor_b32 v%d, s%d, v%d' % (D + 6, sTag, R + 4))
    A('L_c_pc%s:' % tag)
    A('v_or_b32 v%d, v%d, v%d' % (D + 5, D + 5, D + 6))
    A('v_and_b32 v%d, 1, v%d' % (D + 5, D + 5))
    A('v_cmp_ne_u32 vcc, 0, v%d' % (D + 5))
    for rot in (4, 8):
        A('v_add_f32_dpp v%d, v%d, v%d row_ror:%d row_mask:0xf bank_mask:0xf' % (D, D, D, rot))
        A('v_add_f32_dpp v%d, v%d, v%d row_ror:%d row_mask:0xf bank_mask:0xf' % (D + 1, D + 1, D + 1, rot))
        if rot == 4:
            A('s_cbranch_vccnz L_c_px%s' % tag)
    A(cvt(vMem, D, D + 1))
    A('v_min_u32 v%d, -2, v%d' % (vMem, vMem))
    A('buffer_store_dword v%d, v%d, %s, s%d offen %s' % (vMem, aMRst, S(WS), sRing, SC))
    M('e')
    A('buffer_store_dword v%d, v%d, %s, s%d offen %s' % (D + 4, aMRst, S(WS), sRst, SC))
    A('s_xor_b32 s%d, s%d, 1' % (sTag, sTag))
    A('s_mov_b32 s%d, 0' % sH)
    A('s_cmp_eq_u32 s%d, 63' % sS)
    A('s_cbranch_scc1 L_c_done')
    ensure_kv(A)
    for x in pr[P3:]:
        A(x)
    A.nop(o('da', 20))
    if o('da2', 32):
        A('s_cmp_ge_u32 s%d, 2' % sWAVE)
        A('s_cbranch_scc1 L_c_ld%s' % tag)
        A.nop(o('da2', 32))
    A('s_branch L_c_ld%s' % tag)
    if o('tramp', 1):
        A('L_c_slow%s:' % tag)
        A('s_branch L_c_slow2%s' % tag)
    def cnt(i):
        if opt.get('stamp') == '2':
            A('s_add_u32 s%d, s%d, 62' % (chain3_ACC(i), chain3_ACC(i)))
    A('L_c_px%s:' % tag)
    spin_check(A); cnt(12)
    def look(Rx, y):
        A('s_waitcnt vmcnt(%d)' % y)
        A(mm(D, vSel, Rx, True))
        A('v_xor_b32 v%d, s%d, v%d' % (D + 5, sTag, Rx))
        A(mm(D, vSel, Rx + 4, False))
        A('v_xor_b32 v%d, s%d, v%d' % (D + 6, sTag, Rx + 4))
        A('s_branch L_c_pc%s' % tag)
    if HB:
        A('s_xor_b32 s%d, s%d, 1' % (sH, sH))
        A('s_bitcmp1_b32 s%d, 0' % sH)
        A('s_cbranch_scc0 L_c_py%s' % tag)
        pb_loads(R); look(R2, 2)
        A('L_c_py%s:' % tag)
        pb_loads(R2); look(R, 2)
    else:
        pb_loads(R2); look(R2, 0)
    A('L_c_x0%s:' % tag)
    spin_check(A); cnt(13)
    A('s_waitcnt vmcnt(0) lgkmcnt(0)')
    for i in range(4):
        A(z64(QA + 2 * i))
    A('s_branch L_c_ld%s' % tag)
    A('L_c_x1%s:' % tag)
    spin_check(A); cnt(14)
    def ldh(r): A('buffer_load_dwordx4 v[%d:%d], v%d, %s, s%d offen offset:1024 sc1' % (r, r + 3, aQ, S(WS), sRing))
    def look1(r, y):
        A('s_waitcnt vmcnt(%d) lgkmcnt(0)' % y)
        A('v_cmp_eq_u32 vcc, -1, v%d' % r)
        A('v_mov_b64 v[%d:%d], v[%d:%d]' % (AF + 4, AF + 5, r, r + 1))
        A('v_mov_b64 v[%d:%d], v[%d:%d]' % (AF + 6, AF + 7, r + 2, r + 3))
        A(afw(1))
        A('s_cbranch_vccnz L_c_x1%s' % tag)
        A('s_branch L_c_r1%s' % tag)
    if HA:
        A('s_xor_b32 s%d, s%d, 2' % (sH, sH))
        A('s_bitcmp1_b32 s%d, 1' % sH)
        A('s_cbranch_scc0 L_c_y1%s' % tag)
        ldh(AF + 24); look1(AF + 28, 1)
        A('L_c_y1%s:' % tag)
        ldh(AF + 28); look1(AF + 24, 1)
    else:
        ldh(AF + 28); look1(AF + 28, 0)
    A(('L_c_slow2%s:' if o('tramp', 1) else 'L_c_slow%s:') % tag)
    T = OT
    SY = [SX, LS]
    A('s_sub_u32 s57, s%d, s%d' % (sKoff, s256k))
    A('s_waitcnt lgkmcnt(0)')
    qt(0); qt(1)
    A('s_waitcnt lgkmcnt(0)')
    for tile in range(2):
        for kp in range(2):
            for ks in range(2 * kp, 2 * kp + 2):
                A('buffer_load_dwordx4 v[%d:%d], v%d, %s, s57 offen offset:%d sc1' % (T + 4 * (ks % 2), T + 4 * (ks % 2) + 3, aL, S(WS), ks * 1024))
            A('s_waitcnt vmcnt(0)')
            for ks in range(2 * kp, 2 * kp + 2):
                A(mm(SY[tile], T + 4 * (ks % 2), QF + 4 * ks, ks == 0))
            A('s_nop 7')
        A('s_add_u32 s57, s57, 4096')
    A(z64(SM)); A(z64(SM + 2))
    A(sm(SM, KF, QF, 'v')); A(sm(SM, KF + 4, QF + 8, 'v'))
    for x in hsum(SM):
        A(x)
    al = [SM, SM + 1] + [SY[0] + i for i in range(4)] + [SY[1] + i for i in range(4)]
    A('v_max_f32 v%d, v%d, v%d' % (TR, al[0], al[1]))
    for i in range(2, 10, 2):
        A('v_max3_f32 v%d, v%d, v%d, v%d' % (TR, TR, al[i], al[i + 1]))
    for sw in ('16', '32'):
        A('v_mov_b32 v%d, v%d' % (TR + 1, TR))
        A('v_permlane%s_swap_b32 v%d, v%d' % (sw, TR, TR + 1))
        A('v_max_f32 v%d, v%d, v%d' % (TR, TR, TR + 1))
    for r_ in al:
        A('v_sub_f32 v%d, v%d, v%d' % (r_, r_, TR))
        A(ex(r_))
    for i in range(4):
        A(cvt(PX + i, al[2 + 2 * i], al[3 + 2 * i]))
    A(cvt(PM, SM, SM + 1))
    A(mm(LS, ONE, PX, True)); A(mm(OT, VXF, PX, True)); A(mm(OT + 4, VXF + 4, PX, True))
    A(m16(LS, ONE)); A(m16(OT, va)); A(m16(OT + 4, vb))
    A(w0[0][0]); A(w0[1][0])
    A('v_rcp_f32 v%d, v%d' % (TR, LS))
    A(zero(TR + 1))
    A('s_nop 7')
    A('s_branch L_c_norm%s' % tag)

def chain3_ACC(i):
    import chain
    return chain.ACCS[i]

def chain(A, opt):
    n0 = len(A.lines)
    setup(A, opt, load_weights)
    A('s_cmp_lg_u32 s57, 0')
    A('s_cbranch_scc1 L_c_start_s')
    loop(A, opt, opt.get('fsc', ''), '_f')
    loop(A, opt, 'sc1', '_s')
    A('L_c_done:')
    A('buffer_store_dword v%d, v%d, %s, s%d offen sc1' % (vMem, aMRst, S(WS), sMH))
    if opt.get('clk'):
        A('s_memtime s[10:11]')
        A('s_waitcnt lgkmcnt(0)')
        A('s_sub_u32 s36, s10, s8')
    if 'rt' in opt:
        A('s_lshl_b32 s60, s%d, 2' % sIDX)
        A('s_add_u32 s60, s60, s%d' % sWAVE)
        A('s_lshl_b32 s60, s60, 9')
        A('s_add_u32 s60, s60, %d' % (TS + 0x40000))
        A('v_lshrrev_b32 v1, 2, v%d' % aL)
        A('buffer_store_dword v%d, v1, %s, s60 offen' % (vInc, S(WS)))
        A('buffer_store_dword v%d, v1, %s, s60 offen offset:256' % (aPF, S(WS)))
    rt_stamp(A, opt, 3)
    ph_out(A, opt, 15)
    A('s_endpgm')
    if opt.get('probe', '').startswith('i'):
        N = int(opt['probe'][1:])
        k = A.lines.index('  s_memtime s[8:9]') + 1
        n = 0; lst = []
        while not A.lines[k].startswith('L_c_px_f'):
            l = A.lines[k]; k += 1
            if l.endswith(':'):
                continue
            n += 1; lst.append('%d %s' % (n, l.strip()))
            if n == N:
                A.lines.insert(k, '  s_memtime s[10:11]'); k += 1
        open('probe_listing.txt', 'w').write('\n'.join(lst) + '\n')
    if opt.get('lsc'):
        k0 = A.lines.index('L_c_ld_f:'); k1 = A.lines.index('L_c_start_s:')
        for i in range(k0, k1):
            l = A.lines[i]
            if 'buffer_load_dwordx4' in l and 'lds' not in l and 's57' not in l:
                A.lines[i] = l.replace('sc1', opt['lsc'].replace('_', ' '))
    ex = opt.get('exp', '')
    for i in range(n0, len(A.lines)):
        l = A.lines[i]
        if 'm' in ex and ('buffer_store_dword v%d, v%d, %s, s%d offen sc1' % (vMem, aMRst, S(WS), sMH)) in l:
            A.lines[i] = '  s_nop 0'
        if 'p' in ex and ('v_add_u32 v%d, v%d, v%d' % (aPF, vInc, aPF)) in l:
            A.lines[i] = '  s_nop 0'
        if 'p' in ex and ('s%d' % s256k) in l and 's_add_u32' in l:
            A.lines[i] = '  s_nop 0'
        if 'd' in ex and 'sc1 lds' in l:
            A.lines[i] = '  s_nop 0'
        if 'f' in ex and flag_load() in l and 'smfmac' in A.lines[i - 1]:
            A.lines[i] = '  v_mov_b32 v%d, 99' % vFlag
        if 'b' in ex and 's_cbranch_vccnz L_c_slow' in l:
            A.lines[i] = '  s_nop 0'; continue
        if 'c' in ex and ('s_cbranch_vccnz L_c_x' in l or 's_cbranch_vccnz L_c_px' in l):
            A.lines[i] = '  s_nop 0'; continue
        if opt.get('free') and ('s_cbranch_vccnz L_c_x' in l or 's_cbranch_vccnz L_c_px' in l or 's_cbranch_vccnz L_c_slow' in l):
            A.lines[i] = l.replace('s_cbranch_vccnz', 's_cbranch_cdbgsys' if opt['free'] == '1' else 's_cbranch_execz')
```

```python
from common import *
from chain import wo_load, wo_fix, WOR, CA, ph, ph_init, ph_acc, ph_out

ST, QE, KE, OE, KB, VB, WSB = 0, 8192, 10496, 12800, 16384, 24576, 32768
vIdx, aPBst, aMRst, aQ, aL, aWS, aQEw, aQEr, aKEw, aKEr, aOEw, aOEr, vMem, vFlag, aPF, vInc = range(4, 20)
AF = 20
SB = 52
QA, KA, VA = 100, 108, 116
vSel = 124
sS, sRing, sRst, sTag, sG1, sK1, sC, sPBld, sCA, sM0K, sM0V = 70, 71, 72, 73, 74, 75, 77, 76, 79, 69, 59
sKoff, sVoff, sMH, sOne, s32k, sX1, sX2, sX3, s8k, s256k, sMRend = 60, 61, 62, 63, 64, 65, 66, 67, 68, 78, 58
mOW = 100
def sm(d, a_, b, kind):
    return 'v_smfmac_f32_16x16x64_bf16 v[%d:%d], v[%d:%d], %s[%d:%d], v%d' % (d, d + 3, a_, a_ + 3, kind, b, b + 7, vIdx)
def mm(d, a_, b, first):
    return 'v_mfma_f32_16x16x32_bf16 v[%d:%d], v[%d:%d], v[%d:%d], %s' % (d, d + 3, a_, a_ + 3, b, b + 3, '0' if first else 'v[%d:%d]' % (d, d + 3))
def z64(r):
    return 'v_mov_b64 v[%d:%d], 0' % (r, r + 1)

def weave(A, main, fill, per=1):
    fill = list(fill)
    for i, m in enumerate(main):
        A(m)
        k = per[i] if isinstance(per, (list, tuple)) else per
        for _ in range(k):
            if fill:
                A(fill.pop(0))
    for f in fill:
        A(f)

def arrive(A):
    A('s_barrier')
    A('s_cmp_lg_u32 s%d, 0' % sWAVE)
    A('s_cbranch_scc1 L_c_noarr')
    A('s_lshl_b32 s61, s%d, 16' % sFOR)
    A('s_add_u32 s61, s61, 1')
    A('v_mov_b32 v108, s61')
    A('v_mov_b32 v109, %d' % D_ARR)
    A('s_mov_b64 exec, 1')
    A('buffer_atomic_add v108, v109, %s, 0 offen' % S(DBG))
    A('s_mov_b64 exec, -1')
    A('L_c_noarr:')

def setup(A, opt, loader):
    A('L_chain:')
    A('s_setprio 3')
    if opt.get('cw', '0') == '1':
        A('s_getpc_b64 s[60:61]')
        A('v_lshlrev_b32 v1, 7, v0')
        A('s_lshl_b32 s62, s%d, 13' % sWAVE)
        A('v_add_u32 v1, s62, v1')
        A('global_load_dword v251, v1, s[60:61]')
    if opt.get('tlb', '0') == '1':
        A('v_lshlrev_b32 v1, 17, v0')
        A('s_lshl_b32 s62, s%d, 23' % sWAVE)
        A('s_add_u32 s62, s62, %d' % KX)
        A('buffer_load_dword v250, v1, %s, s62 offen sc1' % S(WS))
    ld = RowLoader(A, 100, 102, WSB, 64)
    for c in range(int(opt.get('depth', 8))):
        ld.dma(WQ, c)
    ld.init_tr()
    A('v_and_b32 v1, 15, v0')
    A('v_lshrrev_b32 v2, 4, v0')
    A('v_bfe_u32 v3, v0, 1, 1')
    A('v_and_b32 v28, 3, v0')
    A('v_and_b32 v29, 1, v0')
    A('v_and_b32 v30, 1, v2')
    A('v_lshrrev_b32 v31, 1, v2')
    A('v_lshrrev_b32 v26, 2, v1')
    A('v_lshlrev_b32 v%d, 4, v0' % aL)
    A('s_lshl_b32 s60, s%d, 11' % sWAVE)
    A('v_add_u32 v%d, s60, v%d' % (aQ, aL))
    A('s_add_u32 s%d, s60, %d' % (sM0K, KB))
    A('s_add_u32 s%d, s60, %d' % (sM0V, VB))
    A('v_add_u32 v%d, s64, v%d' % (aWS, aL))
    A('v_mov_b32 v%d, 0x4444' % vIdx)
    A('v_mov_b32 v27, 0xeeee')
    A('v_cmp_eq_u32 vcc, 1, v3')
    A('v_cndmask_b32 v%d, v%d, v27, vcc' % (vIdx, vIdx))
    A('v_mov_b32 v27, 0')
    A('v_mov_b32 v32, 0x3f80')
    A('v_cmp_eq_u32 vcc, 0, v28')
    A('v_cndmask_b32 v27, v27, v32, vcc')
    A('v_mov_b32 v32, 0x3f800000')
    A('v_cmp_eq_u32 vcc, 1, v28')
    A('v_cndmask_b32 v27, v27, v32, vcc')
    for u in range(4):
        A('v_cmp_eq_u32 vcc, %d, v26' % u)
        A('v_cndmask_b32 v%d, 0, v27, vcc' % (vSel + u))
    A('v_lshl_add_u32 v27, v26, 2, v2')
    A('v_lshlrev_b32 v27, 11, v27')
    A('v_lshl_add_u32 v27, v28, 4, v27')
    A('s_lshl_b32 s61, s%d, 16' % sWAVE)
    A('s_lshl_b32 s62, s%d, 6' % sIDX)
    A('s_add_u32 s61, s61, s62')
    A('s_add_u32 s61, s61, %d' % PB)
    A('v_add_u32 v%d, s61, v27' % aPBst)
    A('s_and_b32 s61, s%d, 1' % sWAVE)
    A('s_lshl_b32 s61, s61, 5')
    A('s_add_u32 s61, s61, s%d' % sIDX)
    A('s_lshr_b32 s62, s61, 4')
    A('s_lshl_b32 s62, s62, 5')
    A('s_and_b32 s61, s61, 15')
    A('s_add_u32 s61, s61, s62')
    A('s_lshr_b32 s62, s%d, 1' % sWAVE)
    A('s_lshl_b32 s62, s62, 4')
    A('s_add_u32 s%d, s61, s62' % sC)
    A('s_lshl_b32 s61, s%d, 11' % sC)
    A('s_add_u32 s%d, s61, %d' % (sPBld, PB))
    A('v_lshlrev_b32 v27, 4, v2')
    A('v_lshl_add_u32 v27, v28, 2, v27')
    A('s_lshl_b32 s61, s%d, 6' % sC)
    A('v_add_u32 v%d, s61, v27' % aMRst)
    A('v_mov_b32 v33, 0x80000000')
    A('v_cmp_lt_u32 vcc, 3, v1')
    A('v_cndmask_b32 v%d, v%d, v33, vcc' % (aMRst, aMRst))
    A('v_lshlrev_b32 v27, 4, v1')
    A('v_lshl_add_u32 v27, v2, 2, v27')
    A('s_mul_i32 s61, s%d, 576' % sWAVE)
    A('s_add_u32 s62, s61, %d' % QE)
    A('v_add_u32 v%d, s62, v27' % aQEw)
    A('v_lshrrev_b32 v27, 1, v26')
    A('v_mul_u32_u24 v27, 288, v27')
    A('v_lshl_add_u32 v27, v2, 6, v27')
    A('v_and_b32 v32, 1, v26')
    A('v_lshl_add_u32 v27, v32, 4, v27')
    A('v_lshl_add_u32 v%d, v3, 3, v27' % aQEr)
    A('v_mul_u32_u24 v27, 288, v30')
    A('v_lshl_add_u32 v27, v31, 7, v27')
    A('v_lshl_add_u32 v27, v1, 3, v27')
    A('s_add_u32 s62, s61, %d' % KE)
    A('v_add_u32 v%d, s62, v27' % aKEw)
    A('v_mul_u32_u24 v27, 576, v31')
    A('v_mul_u32_u24 v32, 288, v29')
    A('v_add_u32 v27, v27, v32')
    A('v_lshl_add_u32 v27, v3, 7, v27')
    A('v_lshl_add_u32 v27, v30, 6, v27')
    A('v_lshl_add_u32 v%d, v26, 3, v27' % aKEr)
    A('v_lshrrev_b32 v27, 3, v1')
    A('v_lshl_add_u32 v27, v27, 2, v28')
    A('v_lshlrev_b32 v27, 4, v27')
    A('v_lshl_add_u32 v27, v2, 7, v27')
    A('s_lshl_b32 s61, s%d, 9' % sWAVE)
    A('v_add_u32 v%d, s61, v27' % aOEw)
    A('v_lshl_add_u32 v27, v26, 1, v29')
    A('v_lshlrev_b32 v27, 4, v27')
    A('v_lshl_add_u32 v27, v2, 7, v27')
    A('v_lshl_add_u32 v%d, v3, 9, v27' % aOEr)
    A('v_and_b32 v27, 31, v0')
    A('v_lshlrev_b32 v27, 6, v27')
    A('v_add_u32 v27, s60, v27')
    A('v_add_u32 v%d, 262144, v27' % aPF)
    A('v_add_u32 v27, %d, v27' % (VX - KX + 262144))
    A('v_cmp_lt_u32 vcc, 31, v0')
    A('v_cndmask_b32 v%d, v%d, v27, vcc' % (aPF, aPF))
    A('s_mov_b32 s%d, 0x0f0f0f0f' % mOW); A('s_mov_b32 s%d, 0x0f0f0f0f' % (mOW + 1))
    A('s_and_b32 s61, s%d, 3' % sC)
    A('s_lshl_b32 s61, s61, 11')
    A('s_lshr_b32 s62, s%d, 2' % sC)
    A('s_lshl_b32 s62, s62, 5')
    A('s_add_u32 s61, s61, s62')
    A('v_lshlrev_b32 v27, 10, v30')
    A('v_lshl_add_u32 v27, v28, 3, v27')
    A('v_lshl_add_u32 v27, v31, 2, v27')
    A('v_add_u32 v27, s61, v27')
    A('buffer_load_dword v%d, v27, %s, 0 offen' % (vMem, S(MEM0)))
    A('v_lshlrev_b32 v27, 14, v30')
    A('v_lshl_add_u32 v27, v31, 12, v27')
    A('v_lshl_add_u32 v27, v1, 3, v27')
    A('s_lshl_b32 s61, s%d, 17' % sIDX)
    A('s_lshl_b32 s62, s%d, 8' % sWAVE)
    A('s_add_u32 s61, s61, s62')
    A('v_add_u32 v107, s61, v27')
    A('v_lshrrev_b32 v27, 2, v0')
    A('v_lshlrev_b32 v27, 13, v27')
    A('v_lshl_add_u32 v27, v28, 4, v27')
    A('s_lshl_b32 s61, s%d, 6' % sC)
    A('v_add_u32 v106, s61, v27')
    A('v_add_u32 v0, 0x10000, v%d' % aWS)
    for i in range(4):
        A('v_mov_b32 v%d, 0' % (108 + i))
        A('v_mov_b32 v%d, -1' % (112 + i))
    A('buffer_store_dwordx4 v[108:111], v%d, %s, 0 offen sc1' % (aPBst, S(WS)))
    A('s_mov_b32 s61, 32768')
    A('buffer_store_dwordx4 v[108:111], v%d, %s, s61 offen sc1' % (aPBst, S(WS)))
    for i in range(4):
        A('s_mov_b32 s61, %d' % (MH + i * 16 * 8192))
        A('buffer_store_dwordx4 v[112:115], v106, %s, s61 offen sc1' % S(WS))
    A('s_mov_b64 exec, 0xfff')
    A('s_mov_b32 s61, %d' % MR)
    A('buffer_store_dwordx4 v[112:115], v106, %s, s61 offen sc1' % S(WS))
    A('s_mov_b64 exec, -1')
    loader(A, opt, ld, 8)
    rt_stamp(A, opt, 1)
    if opt.get('loadonly'):
        A('s_endpgm')
    A('v_readfirstlane_b32 s57, v3')
    A('s_cmp_lg_u32 s57, 0')
    A('s_cbranch_scc1 L_c_clr')
    wait_dbg_word(A, D_CLR, 1, 1, 2)
    A('L_c_clr:')
    A('v_mbcnt_lo_u32_b32 v1, -1, 0')
    A('v_and_b32 v1, 3, v1')
    A('v_lshlrev_b32 v1, 12, v1')
    A('s_lshl_b32 s%d, s%d, 7' % (sG1, sIDX))
    A('L_c_f0:')
    spin_check(A)
    A('buffer_load_dword v2, v1, %s, s%d offen sc1' % (S(WS), sG1))
    A('buffer_load_dword v3, off, %s, 0 offset:%d sc1' % (S(DBG), D_ARR))
    A('s_waitcnt vmcnt(0)')
    A('v_cmp_eq_u32 vcc, 0, v2')
    A('v_readfirstlane_b32 s57, v3')
    A('s_cbranch_vccnz L_c_f0')
    A('s_and_b32 s58, s57, 0xffff')
    A('s_cmp_lt_u32 s58, 32')
    A('s_cbranch_scc1 L_c_f0')
    A('s_lshr_b32 s57, s57, 16')

def flag_load():
    return 'buffer_load_dword v%d, off, %s, s%d sc1' % (vFlag, S(WS), sG1)

def ensure_kv(A):
    ok = A.label('L_kv_ok'); lp = A.label('L_kv_lp')
    A('%s:' % lp)
    A('v_readfirstlane_b32 s57, v%d' % vFlag)
    A('s_cmp_gt_u32 s57, s%d' % sK1)
    A('s_cbranch_scc1 %s' % ok)
    spin_check(A)
    A(flag_load())
    A('s_waitcnt vmcnt(0)')
    A('s_branch %s' % lp)
    A('%s:' % ok)
    A('v_mov_b32 v%d, 0' % vFlag)
    A('s_add_u32 s%d, s%d, s%d' % (sG1, sG1, sX2))
    A('s_bitcmp1_b32 s%d, 14' % sG1)
    A('s_addc_u32 s%d, s%d, 0' % (sK1, sK1))
    A('s_bitset0_b32 s%d, 14' % sG1)
    A('s_min_u32 s%d, s%d, 15' % (sK1, sK1))

def dma_kv():
    return ['s_mov_b32 m0, s%d' % sM0K,
            'buffer_load_dwordx4 v%d, %s, s%d offen sc1 lds' % (aQ, S(WS), sKoff),
            'buffer_load_dwordx4 v%d, %s, s%d offen offset:1024 sc1 lds' % (aQ, S(WS), sKoff),
            's_mov_b32 m0, s%d' % sM0V,
            'buffer_load_dwordx4 v%d, %s, s%d offen sc1 lds' % (aQ, S(WS), sVoff),
            'buffer_load_dwordx4 v%d, %s, s%d offen offset:1024 sc1 lds' % (aQ, S(WS), sVoff)]

def sb_reads(i):
    b = SB + 16 * (i % 3)
    return ['ds_read_b128 v[%d:%d], v%d offset:%d' % (b + 8 * m + 4 * hb, b + 8 * m + 4 * hb + 3, aWS, (2 * i + hb) * 2048 + m * 1024) for m in range(2) for hb in range(2)]

def loop(A, opt, SC, tag):
    DB = int(opt.get('db', 0)); DA = int(opt.get('da', 0)); DB2 = int(opt.get('db2', 0))
    A('L_c_start%s:' % tag)
    A('s_mov_b32 s%d, 0' % sS)
    A('s_mov_b32 s%d, %d' % (sRing, MR))
    A('s_mov_b32 s%d, %d' % (sRst, MR + 2 * 8192))
    A('s_mov_b32 s%d, %d' % (sMRend, MR + 3 * 8192))
    A('s_mov_b32 s%d, 1' % sTag)
    A('s_mov_b32 s%d, 32' % sG1)
    A('s_mov_b32 s%d, 0' % sK1)
    A('s_mov_b32 s%d, 0x%x' % (sCA, f2u(CA)))
    A('s_lshl_b32 s%d, s%d, 13' % (sKoff, sIDX))
    A('s_add_u32 s%d, s%d, %d' % (sVoff, sKoff, VX))
    A('s_add_u32 s%d, s%d, %d' % (sKoff, sKoff, KX))
    A('s_mov_b32 s%d, %d' % (sMH, MH))
    A('s_mov_b32 s%d, 0x3f803f80' % sOne)
    A('s_mov_b32 s%d, 32768' % s32k)
    A('s_mov_b32 s%d, 2048' % sX1); A('s_mov_b32 s%d, 4096' % sX2); A('s_mov_b32 s%d, 6144' % sX3)
    A('s_mov_b32 s%d, 8192' % s8k)
    A('s_mov_b32 s%d, 262144' % s256k)
    A('buffer_store_dword v%d, v%d, %s, s%d offen %s' % (vMem, aMRst, S(WS), sRing, SC))
    A('v_mov_b32 v%d, 0' % vFlag)
    ensure_kv(A)
    for x in dma_kv():
        A(x)
    A('s_add_u32 s%d, s%d, s%d' % (sKoff, sKoff, s256k))
    A('s_add_u32 s%d, s%d, s%d' % (sVoff, sVoff, s256k))
    ensure_kv(A)
    for i in range(3):
        for x in sb_reads(i):
            A(x)
    for i in range(12):
        A(z64(QA + 2 * i))
    rt_stamp(A, opt, 2)
    ph_init(A, opt)
    def Q(i, tile): return sm(QA + 4 * tile, AF + 4 * i, (8 * i) if tile == 0 else SB + 16 * (i % 3), 'a' if tile == 0 else 'v')
    def K(i, tile): return sm(KA + 4 * tile, AF + 4 * i, (64 + 8 * i) if tile == 0 else SB + 16 * (i % 3) + 8, 'a' if tile == 0 else 'v')
    V = [sm(VA + 4 * tile, AF + 4 * i, 128 + tile * 64 + 8 * i, 'a') for i in range(8) for tile in range(2)]
    def afl(i):
        return 'buffer_load_dwordx4 v[%d:%d], v%d, %s, s%d offen offset:%d sc1' % (AF + 4 * i, AF + 4 * i + 3, aQ, S(WS), sRing, i * 1024)
    def afw(i):
        return 'ds_write_b128 v%d, v[%d:%d] offset:%d' % (aQ, AF + 4 * i, AF + 4 * i + 3, ST + i * 1024)
    A('L_c_loop%s:' % tag)
    ph(A, opt, 0)
    A.nop(DA)
    A(afl(0)); A(afl(1))
    ensure_kv(A)
    A('v_xor_b32 v1, s%d, v%d' % (sX1, aQ))
    A('v_xor_b32 v2, s%d, v%d' % (sX2, aQ))
    A('v_xor_b32 v3, s%d, v%d' % (sX3, aQ))
    A('L_c_r0%s:' % tag)
    A('s_waitcnt vmcnt(1) lgkmcnt(0)')
    ph(A, opt, 1)
    A('v_cmp_eq_u32 vcc, -1, v%d' % AF)
    A(Q(0, 0))
    A(afw(0))
    A(Q(0, 1))
    A('s_cbranch_vccnz L_c_x0%s' % tag)
    A(K(0, 0))
    A('L_c_r1%s:' % tag)
    A('s_waitcnt vmcnt(0)')
    A('v_cmp_eq_u32 vcc, -1, v%d' % (AF + 4))
    A(afw(1))
    A('s_nop 2')
    A('s_cbranch_vccnz L_c_x1%s' % tag)
    A(K(0, 1))
    A('buffer_store_dword v%d, v%d, %s, s%d offen sc1' % (vMem, aMRst, S(WS), sMH))
    A(Q(1, 0))
    A('buffer_load_dword v%d, v%d, %s, 0 offen sc1' % (vFlag, aPF, S(WS)))
    A(Q(1, 1))
    A(K(1, 0))
    A('s_waitcnt lgkmcnt(0)')
    A('s_barrier')
    rd = ['ds_read_b128 v[%d:%d], v%d offset:%d' % (AF + 4 * i, AF + 4 * i + 3, i // 2, ST + (i % 2) * 1024) for i in range(2, 8)]
    A(rd[0]); A(rd[1])
    weave(A, [K(1, 1)] + V[0:4], rd[2:] + sb_reads(3) + sb_reads(4)[:2], per=2)
    ph(A, opt, 2)
    SM, SX = AF, AF + 4
    KXF = [SB + 32, SB]
    QF = SB + 16
    def kx(tile):
        kb = KXF[tile]
        return ['ds_read_b128 v[%d:%d], v%d offset:%d' % (kb + 4 * ks, kb + 4 * ks + 3, aL, KB + tile * 4096 + ks * 1024) for ks in range(4)]
    A('s_waitcnt lgkmcnt(11)')
    weave(A, [Q(2, 0), Q(2, 1), K(2, 0), K(2, 1)], sb_reads(4)[2:] + [z64(SM), z64(SM + 2)], per=1)
    A('s_waitcnt lgkmcnt(4)')
    weave(A, [Q(3, 0), Q(3, 1), K(3, 0), K(3, 1)], sb_reads(5), per=1)
    A('s_waitcnt lgkmcnt(4)')
    weave(A, [Q(4, 0), Q(4, 1), K(4, 0), K(4, 1)], sb_reads(6), per=1)
    A('s_waitcnt lgkmcnt(4)')
    weave(A, [Q(5, 0), Q(5, 1), K(5, 0), K(5, 1)], sb_reads(7), per=1)
    A('s_waitcnt lgkmcnt(4)')
    weave(A, [Q(6, 0), Q(6, 1), Q(7, 0)], kx(0)[:3], per=1)
    A('s_waitcnt lgkmcnt(3)')
    A(Q(7, 1)); A(kx(0)[3])
    def padd(acc):
        r = []
        for tile in range(2):
            d = acc + 4 * tile
            r += ['v_add_f32 v%d, v%d, v%d' % (d, d, d + 2), 'v_add_f32 v%d, v%d, v%d' % (d + 1, d + 1, d + 3)]
        return r
    qp = padd(QA) + ['v_cvt_pk_bf16_f32 v%d, v%d, v%d' % (QA, QA, QA + 1), 'v_cvt_pk_bf16_f32 v%d, v%d, v%d' % (QA + 4, QA + 4, QA + 5),
                     'ds_write2_b32 v%d, v%d, v%d offset1:72' % (aQEw, QA, QA + 4)]
    kp = padd(KA) + ['v_cvt_pk_bf16_f32 v%d, v%d, v%d' % (KA + 2, KA, KA + 1), 'v_cvt_pk_bf16_f32 v%d, v%d, v%d' % (KA + 3, KA + 4, KA + 5),
                     'ds_write_b64 v%d, v[%d:%d]' % (aKEw, KA + 2, KA + 3)]
    k1 = kx(1)
    A(K(6, 1)); A(K(6, 0)); A(k1[0]); A(qp[0])
    A(K(7, 0)); A(k1[1]); A(qp[1])
    A(K(7, 1)); A(k1[2]); A(qp[2])
    ph(A, opt, 3)
    A(V[4]); A(k1[3])
    for x in qp[3:]:
        A(x)
    for x in kp:
        A(x)
    for x in V[5:8]:
        A(x)
    A('s_waitcnt lgkmcnt(0)')
    A('s_barrier')
    ph(A, opt, 4)
    KF = QA
    def qtr(ks): return ['ds_read_b64_tr_b16 v[%d:%d], v%d offset:%d' % (QF + 4 * ks + 2 * u, QF + 4 * ks + 2 * u + 1, aQEr, QE + ks * 576 + u * 32) for u in range(2)]
    def ktr(t): return ['ds_read_b64_tr_b16 v[%d:%d], v%d offset:%d' % (KF + 4 * t + 2 * u, KF + 4 * t + 2 * u + 1, aKEr, KE + t * 1152 + u * 32) for u in range(2)]
    trs = qtr(0) + qtr(1) + qtr(2) + qtr(3) + ktr(0) + ktr(1)
    for x in trs[:4]:
        A(x)
    weave(A, V[8:12], trs[4:], per=2)
    OCt = [AF + 12, AF + 16, AF + 20, AF + 24, AF + 28, KA, KA + 4, QA]
    VXF = SB + 32
    A('s_waitcnt lgkmcnt(10)')
    A(mm(SX, KXF[0], QF, True)); A(z64(OCt[5])); A(z64(OCt[5] + 2))
    A('s_waitcnt lgkmcnt(8)')
    A(mm(SX, KXF[0] + 4, QF + 4, False)); A(z64(OCt[6])); A(z64(OCt[6] + 2))
    A('s_waitcnt lgkmcnt(6)')
    A(mm(SX, KXF[0] + 8, QF + 8, False)); A(z64(OCt[0])); A(z64(OCt[0] + 2))
    A('s_waitcnt lgkmcnt(4)')
    A(mm(SX, KXF[0] + 12, QF + 12, False)); A(z64(OCt[1])); A(z64(OCt[1] + 2))
    A('s_waitcnt lgkmcnt(0)')
    A(sm(SM, KF, QF, 'v'))
    A('ds_read_b128 v[%d:%d], v%d offset:%d' % (VXF, VXF + 3, aQ, VB))
    A(sm(SM, KF + 4, QF + 8, 'v'))
    A('ds_read_b128 v[%d:%d], v%d offset:%d' % (VXF + 4, VXF + 7, aQ, VB + 1024))
    A(mm(SX + 4, KXF[1], QF, True)); A(z64(OCt[2])); A(z64(OCt[2] + 2))
    A(mm(SX + 4, KXF[1] + 4, QF + 4, False))
    A('v_max3_f32 v1, v%d, v%d, v%d' % (SX, SX + 1, SX + 2))
    A(mm(SX + 4, KXF[1] + 8, QF + 8, False))
    A('v_add_f32 v%d, v%d, v%d' % (SM, SM, SM + 2))
    A('v_add_f32 v%d, v%d, v%d' % (SM + 1, SM + 1, SM + 3))
    A(mm(SX + 4, KXF[1] + 12, QF + 12, False))
    ph(A, opt, 5)
    A('v_max_f32 v1, v1, v%d' % (SX + 3))
    A(V[12])
    A('v_max3_f32 v1, v1, v%d, v%d' % (SM, SM + 1))
    A(V[13])
    A('v_max3_f32 v1, v1, v%d, v%d' % (SX + 4, SX + 5))
    A('v_max3_f32 v3, v1, v%d, v%d' % (SX + 6, SX + 7))
    A('v_max3_f32 v1, v1, v%d, v%d' % (SX + 6, SX + 7))
    A(V[14])
    A('v_permlane16_swap_b32 v1, v3')
    A('v_max_f32 v2, v1, v3')
    A('v_max_f32 v1, v1, v3')
    A(V[15])
    A('v_permlane32_swap_b32 v1, v2')
    A('v_max_f32 v1, v1, v2')
    A('v_mul_f32 v1, s%d, v1' % sCA)
    PX, PM, ONE = SB, SB + 4, SB + 8
    OT, LS = SB + 16, SB + 24
    for i in range(2):
        A('v_fma_f32 v%d, v%d, s%d, -v1' % (SM + i, SM + i, sCA))
    for i in range(2):
        A('v_exp_f32 v%d, v%d' % (SM + i, SM + i))
    for i in range(8):
        A('v_fma_f32 v%d, v%d, s%d, -v1' % (SX + i, SX + i, sCA))
    A('v_cvt_pk_bf16_f32 v%d, v%d, v%d' % (PM, SM, SM + 1))
    A('v_mov_b32 v%d, 0' % (PM + 1))
    for x in padd(VA):
        A(x)
    for tile in range(2):
        d = VA + 4 * tile
        A('v_cvt_pk_bf16_f32 v%d, v%d, v%d' % (d, d, d + 1))
        A('v_mov_b32 v%d, 0' % (d + 1))
    A('v_mov_b32 v%d, s%d' % (ONE, sOne)); A('v_mov_b32 v%d, s%d' % (ONE + 1, sOne))
    def m16(d, a_):
        return 'v_mfma_f32_16x16x16_bf16 v[%d:%d], v[%d:%d], v[%d:%d], 0' % (d, d + 3, a_, a_ + 1, PM, PM + 1)
    E = ['v_exp_f32 v%d, v%d' % (SX + i, SX + i) for i in range(8)]
    C = ['v_cvt_pk_bf16_f32 v%d, v%d, v%d' % (PX + i, SX + 2 * i, SX + 2 * i + 1) for i in range(4)]
    A(E[0]); A(m16(OT, VA)); A(E[1]); A(E[2]); A(m16(OT + 4, VA + 4)); A(E[3]); A(E[4]); A(m16(LS, ONE)); A(E[5]); A(E[6]); A(E[7])
    A('v_mov_b32 v%d, s%d' % (ONE + 2, sOne)); A('v_mov_b32 v%d, s%d' % (ONE + 3, sOne))
    for x in C:
        A(x)
    A('s_waitcnt lgkmcnt(0)')
    A(mm(LS, ONE, PX, False)); A(z64(OCt[3])); A(z64(OCt[3] + 2))
    A(mm(OT, VXF, PX, False)); A(z64(OCt[4])); A(z64(OCt[4] + 2))
    A(mm(OT + 4, VXF + 4, PX, False)); A(z64(OCt[7])); A(z64(OCt[7] + 2))
    ph(A, opt, 6)
    A('v_rcp_f32 v2, v%d' % LS)
    G = SB + 40
    A('s_mov_b64 exec, s[%d:%d]' % (mOW, mOW + 1))
    for i in range(4):
        A('v_pk_mul_f32 v[%d:%d], v[%d:%d], v[2:3] op_sel_hi:[1,0]' % (OT + 2 * i, OT + 2 * i + 1, OT + 2 * i, OT + 2 * i + 1))
    for i in range(4):
        A('v_cvt_pk_bf16_f32 v%d, v%d, v%d' % (G + i, OT + 2 * i, OT + 2 * i + 1))
    A('ds_write_b128 v%d, v[%d:%d] offset:%d' % (aOEw, G, G + 3, OE))
    A('s_mov_b64 exec, -1')
    ph(A, opt, 7)
    d = dma_kv()
    for x in d[:3]:
        A(x)
    A('s_waitcnt lgkmcnt(0)')
    A('s_barrier')
    OA = SB
    A('ds_read_b128 v[%d:%d], v%d offset:%d' % (OA, OA + 3, aOEr, OE))
    A('ds_read_b128 v[%d:%d], v%d offset:%d' % (OA + 4, OA + 7, aOEr, OE + 1024))
    for x in d[3:]:
        A(x)
    A('s_waitcnt lgkmcnt(1)')
    ph(A, opt, 8)
    O = [[sm(OCt[j], OA + 4 * t, WOR(j, t), 'v') for t in range(2) for j in range(4 * hf, 4 * hf + 4)] for hf in range(2)]
    for x in O[0][:4]:
        A(x)
    A('s_waitcnt lgkmcnt(0)')
    for x in O[0][4:]:
        A(x)
    def opack(hf, pk):
        r = []; Gh = G + 4 * hf
        for j in range(4 * hf, 4 * hf + 4):
            d = OCt[j]
            if pk:
                r.append('v_pk_add_f32 v[%d:%d], v[%d:%d], v[%d:%d]' % (d, d + 1, d, d + 1, d + 2, d + 3))
            else:
                r += ['v_add_f32 v%d, v%d, v%d' % (d, d, d + 2), 'v_add_f32 v%d, v%d, v%d' % (d + 1, d + 1, d + 3)]
        for u in range(4):
            hi, b = u >> 1, u & 1
            j = 4 * hf + 2 * hi
            r.append('v_cvt_pk_bf16_f32 v%d, v%d, v%d' % (Gh + u, OCt[j] + b, OCt[j + 1] + b))
        r.append('v_bfi_b32 v%d, 1, s%d, v%d' % (Gh, sTag, Gh))
        r.append('buffer_store_dwordx4 v[%d:%d], v%d, %s, %s offen %s' % (Gh, Gh + 3, aPBst, S(WS), 's%d' % s32k if hf else '0', SC))
        return r
    weave(A, O[1], opack(0, False), per=[2, 2, 2, 2, 2, 2, 2, 0])
    p1 = opack(1, False)
    for x in p1[0:4] + [p1[8], p1[9], p1[12]] + p1[4:8] + [p1[10], p1[11], p1[13]]:
        A(x)
    ph(A, opt, 9)
    R = AF
    A.nop(DB)
    if DB2:
        lab = A.label('L_c_d')
        A('s_cmp_lt_u32 s%d, 2' % sWAVE)
        A('s_cbranch_scc1 %s' % lab)
        A.nop(DB2)
        A('%s:' % lab)
    def pb_loads():
        A('buffer_load_dwordx4 v[%d:%d], v%d, %s, s%d offen sc1' % (R, R + 3, aL, S(WS), sPBld))
        A('buffer_load_dwordx4 v[%d:%d], v%d, %s, s%d offen offset:1024 sc1' % (R + 4, R + 7, aL, S(WS), sPBld))
    pb_loads()
    for i in range(3):
        for x in sb_reads(i):
            A(x)
    for i in range(12):
        A(z64(QA + 2 * i))
    for r in (sRing, sRst):
        A('s_add_u32 s%d, s%d, s%d' % (r, r, s8k))
        A('s_cmp_eq_u32 s%d, s%d' % (r, sMRend))
        A('s_cselect_b32 s%d, %d, s%d' % (r, MR, r))
    A('s_add_u32 s%d, s%d, 1' % (sS, sS))
    A('s_add_u32 s%d, s%d, s%d' % (sKoff, sKoff, s256k))
    A('s_add_u32 s%d, s%d, s%d' % (sVoff, sVoff, s256k))
    A('s_add_u32 s%d, s%d, s%d' % (sMH, sMH, s8k))
    A('v_add_u32 v%d, v%d, v%d' % (aPF, vInc, aPF))
    A('v_mov_b32 v3, -1')
    D = R + 8
    A('L_c_pbc%s:' % tag)
    A('s_waitcnt vmcnt(1)')
    A(mm(D, vSel, R, True))
    A('v_xor_b32 v1, s%d, v%d' % (sTag, R))
    A('s_waitcnt vmcnt(0)')
    A(mm(D, vSel, R + 4, False))
    A('v_xor_b32 v2, s%d, v%d' % (sTag, R + 4))
    A('v_or_b32 v1, v1, v2')
    A('v_and_b32 v1, 1, v1')
    A('v_cmp_ne_u32 vcc, 0, v1')
    ph(A, opt, 10)
    for rot in (4, 8):
        A('v_add_f32_dpp v%d, v%d, v%d row_ror:%d row_mask:0xf bank_mask:0xf' % (D, D, D, rot))
        A('v_add_f32_dpp v%d, v%d, v%d row_ror:%d row_mask:0xf bank_mask:0xf' % (D + 1, D + 1, D + 1, rot))
        if rot == 4:
            A('s_cbranch_vccnz L_c_pbx%s' % tag)
    A('v_cvt_pk_bf16_f32 v%d, v%d, v%d' % (vMem, D, D + 1))
    A('v_min_u32 v%d, -2, v%d' % (vMem, vMem))
    A('buffer_store_dword v%d, v%d, %s, s%d offen %s' % (vMem, aMRst, S(WS), sRing, SC))
    A('buffer_store_dword v3, v%d, %s, s%d offen %s' % (aMRst, S(WS), sRst, SC))
    A('s_xor_b32 s%d, s%d, 1' % (sTag, sTag))
    ph(A, opt, 11)
    ph_acc(A, opt, 11, 57)
    A('s_cmp_lt_u32 s%d, 63' % sS)
    A('s_cbranch_scc1 L_c_loop%s' % tag)
    A('s_branch L_c_done')
    A('L_c_pbx%s:' % tag)
    spin_check(A)
    pb_loads()
    A('s_branch L_c_pbc%s' % tag)
    A('L_c_x0%s:' % tag)
    spin_check(A)
    A('s_waitcnt vmcnt(0) lgkmcnt(0)')
    A(afl(0)); A(afl(1))
    for i in range(4):
        A(z64(QA + 2 * i))
    A('s_branch L_c_r0%s' % tag)
    A('L_c_x1%s:' % tag)
    spin_check(A)
    A('s_waitcnt lgkmcnt(0)')
    A(afl(1))
    A('s_branch L_c_r1%s' % tag)

def chain(A, opt):
    n0 = len(A.lines)
    setup(A, opt)
    A('s_cmp_lg_u32 s57, 0')
    A('s_cbranch_scc1 L_c_start_s')
    loop(A, opt, '', '_f')
    loop(A, opt, 'sc1', '_s')
    A('L_c_done:')
    A('buffer_store_dword v%d, v%d, %s, s%d offen sc1' % (vMem, aMRst, S(WS), sMH))
    rt_stamp(A, opt, 3)
    ph_out(A, opt, 12)
    A('s_endpgm')
    ex = opt.get('exp', '')
    for i in range(n0, len(A.lines)):
        l = A.lines[i]
        if 'm' in ex and ('buffer_store_dword v%d, v%d, %s, s%d offen sc1' % (vMem, aMRst, S(WS), sMH)) in l:
            A.lines[i] = '  s_nop 0'
        if 'p' in ex and ('v_add_u32 v%d, v%d, v%d' % (aPF, vInc, aPF)) in l:
            A.lines[i] = '  s_nop 0'
        if 'p' in ex and ('s%d' % s256k) in l and 's_add_u32' in l:
            A.lines[i] = '  s_nop 0'
        if 'd' in ex and 'sc1 lds' in l:
            A.lines[i] = '  s_nop 0'
    if opt.get('free'):
        for i in range(n0, len(A.lines)):
            l = A.lines[i]
            if 's_cbranch_vccnz L_c_x' in l or 's_cbranch_vccnz L_c_pbx' in l:
                A.lines[i] = l.replace('s_cbranch_vccnz', 's_cbranch_cdbgsys')
```

```python
from asmlib import *
import hazard

FLG = 0x0000000
PB = 0x0100000
MR = 0x0180000
MH = 0x0200000
TS = 0x0300000
QX = 0x1000000
KX = 0x2000000
VX = 0x3000000
OP = 0x4000000
BK = 0x8000000
BV = 0x8200000
BO = 0x8400000
NA = 4
NB = 3
F_KV = FLG
F_OP = FLG + 128 * 128
F_BKV = FLG + 256 * 128
F_BO = FLG + 384 * 128
NFLAGS = 512
D_ARR = 8 * 4
D_CLR = 57 * 4
D_ERR = 58 * 4
D_OVF = 59 * 4
D_LD = 60 * 4
def d_cnt_off(x): return 0 if x == 0 else 64 + 4 * x

XA, MEM0, WQ, WK, WV, WO, XB, WQKV, BWO, OUT, DBG, WS = [8 + 4 * i for i in range(12)]
def S(r): return 's[%d:%d]' % (r, r + 3)
sXCC, sWAVE, sGRP, sIDX, sFOR = 3, 4, 5, 6, 7
sBUD = 56
LOG2E = 1.4426950408889634

import struct
def f2u(f): return struct.unpack('<I', struct.pack('<f', f))[0]

def spin_check(A):
    A('s_sub_u32 s%d, s%d, 1' % (sBUD, sBUD))
    A('s_cbranch_scc1 L_timeout')

def prologue(A, fake=None, warm='', wmode=3):
    A('s_cmp_ge_u32 s2, 256')
    A('s_cbranch_scc1 L_exit')
    A('s_load_dwordx16 s[64:79], s[0:1], 0')
    A('s_load_dwordx8 s[80:87], s[0:1], 64')
    A('s_load_dwordx2 s[88:89], s[0:1], 96')
    A('s_getreg_b32 s%d, hwreg(HW_REG_XCC_ID)' % sXCC)
    A('s_and_b32 s%d, s%d, 0xf' % (sXCC, sXCC))
    if fake == 'shift':
        pass
    if fake == 'ovf':
        A('s_mov_b32 s%d, 9' % sXCC)
    if fake == 'half':
        A('s_bitcmp1_b32 s2, 3')
        A('s_cselect_b32 s%d, 9, s%d' % (sXCC, sXCC))
    A('v_lshrrev_b32 v1, 6, v0')
    A('v_and_b32 v0, 63, v0')
    A('v_readfirstlane_b32 s%d, v1' % sWAVE)
    A('s_mov_b32 s%d, 0x400000' % sBUD)
    A('s_waitcnt lgkmcnt(0)')
    sizes = {XA: (64, 2048 * 512 * 2), MEM0: (66, 8192), WQ: (68, 1 << 22), WK: (70, 1 << 22), WV: (72, 1 << 22), WO: (74, 1 << 22),
             XB: (78, 2048 * 512 * 2), WQKV: (80, 512 * 1536 * 2), BWO: (82, 512 * 512 * 2), OUT: (84, 2048 * 1024 * 2), DBG: (86, 256), WS: (88, 1 << 28)}
    for r in (DBG, WS, XA, MEM0, WQ, WK, WV, WO, XB, WQKV, BWO, OUT):
        srd(A, r, sizes[r][0], sizes[r][1])
    A('s_cmp_lg_u32 s%d, 0' % sWAVE)
    A('s_cbranch_scc1 L_warm')
    A('s_and_b32 s57, s%d, 3' % sXCC)
    A('s_lshl_b32 s57, s57, 6')
    A('s_and_b32 s58, s%d, 12' % sXCC)
    A('s_add_u32 s57, s57, s58')
    A('v_mov_b32 v2, s57')
    A('v_mov_b32 v3, 1')
    A('s_mov_b64 exec, 1')
    A('buffer_atomic_add v3, v2, %s, 0 offen sc0' % S(DBG))
    A('s_waitcnt vmcnt(0)')
    A('s_mov_b64 exec, -1')
    A('v_readfirstlane_b32 s58, v3')
    A('s_lshl_b32 s59, s%d, 5' % sXCC)
    A('s_add_u32 s59, s59, s58')
    A('s_cmp_ge_u32 s58, 32')
    A('s_cbranch_scc1 L_ovf')
    A('s_cmp_ge_u32 s%d, 8' % sXCC)
    A('s_cbranch_scc0 L_role_done')
    A('L_ovf:')
    A('v_mov_b32 v2, %d' % D_OVF)
    A('v_mov_b32 v3, 1')
    A('s_mov_b64 exec, 1')
    A('buffer_atomic_add v3, v2, %s, 0 offen sc0' % S(DBG))
    A('s_waitcnt vmcnt(0)')
    A('s_mov_b64 exec, -1')
    A('v_readfirstlane_b32 s58, v3')
    A('v_and_b32 v2, 3, v0')
    A('v_lshlrev_b32 v2, 6, v2')
    A('v_and_b32 v3, 12, v0')
    A('v_add_u32 v2, v2, v3')
    A('L_ovf_wait:')
    spin_check(A)
    A('s_sleep 8')
    A('buffer_load_dword v3, v2, %s, 0 offen sc1' % S(DBG))
    A('s_waitcnt vmcnt(0)')
    A('s_mov_b32 s60, 0')
    for x in range(16):
        A('v_readlane_b32 s61, v3, %d' % x)
        A('s_add_u32 s60, s60, s61')
    A('s_cmp_lt_u32 s60, 256')
    A('s_cbranch_scc1 L_ovf_wait')
    A('s_mov_b32 s59, 0x1000')
    for x in range(8):
        lab = A.label('L_ovf_n')
        A('v_readlane_b32 s61, v3, %d' % x)
        A('s_min_u32 s61, s61, 32')
        A('s_sub_u32 s60, 32, s61')
        A('s_cmp_lt_u32 s58, s60')
        A('s_cbranch_scc0 %s' % lab)
        A('s_add_u32 s59, s61, s58')
        A('s_add_u32 s59, s59, %d' % (x * 32 + 0x10000))
        A('s_branch L_role_done')
        A('%s:' % lab)
        A('s_sub_u32 s58, s58, s60')
    A('L_role_done:')
    A('v_mov_b32 v2, 0')
    A('v_mov_b32 v3, s59')
    A('ds_write_b32 v2, v3')
    A('s_waitcnt lgkmcnt(0)')
    A('s_branch L_role_wait')
    A('L_warm:')
    if warm and wmode in (1, 2):
        A('s_cmp_eq_u32 s%d, 0' % sXCC)
        A('s_cbranch_scc1 L_role_wait')
        A('s_lshl_b32 s60, s2, 14')
        A('s_sub_u32 s61, s%d, 1' % sWAVE)
        A('s_mul_i32 s61, s61, 6144')
        A('s_add_u32 s60, s60, s61')
        A('v_lshlrev_b32 v1, 4, v0')
        A('v_add_u32 v1, s60, v1')
        A('v_xor_b32 v2, 0x4000, v1')
        for r in [dict(q=WQ, k=WK, v=WV, o=WO)[c] for c in warm]:
            for va in ((1, 2) if wmode == 2 else (1,)):
                for i in range(6):
                    if i == 4:
                        lab = A.label('L_w')
                        A('s_cmp_eq_u32 s%d, 3' % sWAVE)
                        A('s_cbranch_scc1 %s' % lab)
                        A('s_movk_i32 s61, 4096')
                    A('buffer_load_dwordx4 v[252:255], v%d, %s, %s offen offset:%d' % (va, S(r), '0' if i < 4 else 's61', (i % 4) * 1024))
                A('%s:' % lab)
    A('L_role_wait:')
    A('s_barrier')
    A('v_mov_b32 v2, 0')
    A('ds_read_b32 v3, v2')
    A('s_waitcnt lgkmcnt(0)')
    A('v_readfirstlane_b32 s59, v3')
    A('s_barrier')
    A('s_lshr_b32 s%d, s59, 16' % sFOR)
    A('s_bfe_u32 s%d, s59, 0x80005' % sGRP)
    A('s_and_b32 s%d, s59, 31' % sIDX)
    A('s_cmp_ge_u32 s%d, 8' % sGRP)
    A('s_cbranch_scc1 L_exit')

def warm_b(A, warm, wmode):
    if warm and wmode == 3:
        A('s_cmp_lt_u32 s%d, 5' % sGRP)
        A('s_cbranch_scc1 L_nowarm')
        A('s_sub_u32 s60, s%d, 5' % sGRP)
        A('s_lshl_b32 s60, s60, 5')
        A('s_add_u32 s60, s60, s%d' % sIDX)
        A('s_lshl_b32 s60, s60, 2')
        A('s_add_u32 s60, s60, s%d' % sWAVE)
        A('s_mul_i32 s60, s60, %d' % (11 * 1024))
        A('v_lshlrev_b32 v1, 4, v0')
        A('s_sub_u32 s61, s%d, 5' % sGRP)
        A('s_lshl_b32 s61, s61, 2')
        A('s_add_u32 s61, s61, s%d' % sWAVE)
        A('s_lshl_b32 s61, s61, 15')
        A('s_lshl_b32 s62, s%d, 10' % sIDX)
        A('s_add_u32 s61, s61, s62')
        for i in range(6):
            A('buffer_load_dwordx4 v[252:255], v1, %s, s61 offen' % S(XB))
            A('s_add_u32 s61, s61, %d' % (12 * 32768))
        for r in [dict(q=WQ, k=WK, v=WV, o=WO)[c] for c in warm]:
            A('s_mov_b32 s61, s60')
            for i in range(11):
                A('buffer_load_dwordx4 v[252:255], v1, %s, s61 offen' % S(r))
                A('s_add_u32 s61, s61, 1024')
        A('L_nowarm:')

def epilogue(A):
    A('L_timeout:')
    A('s_mov_b64 exec, 1')
    A('v_mov_b32 v2, %d' % D_ERR)
    A('v_mov_b32 v3, s%d' % sGRP)
    A('v_add_u32 v3, 0x100, v3')
    A('buffer_store_dword v3, v2, %s, 0 offen sc1' % S(DBG))
    A('L_exit:')
    A('s_endpgm')

def wait_dbg_word(A, off, minval, vt, va, mask=None):
    lab = A.label('L_wd'); ok = A.label('L_wd')
    A('%s:' % lab)
    spin_check(A)
    A('s_mov_b64 exec, 1')
    A('buffer_load_dword v%d, off, %s, 0 offset:%d sc1' % (vt, S(DBG), off))
    A('s_mov_b64 exec, -1')
    A('s_waitcnt vmcnt(0)')
    A('v_readfirstlane_b32 s57, v%d' % vt)
    if mask is not None:
        A('s_and_b32 s58, s57, 0x%x' % mask)
        A('s_cmp_ge_u32 s58, %d' % minval)
    else:
        A('s_cmp_ge_u32 s57, %d' % minval)
    A('s_cbranch_scc1 %s' % ok)
    A('s_sleep 8')
    A('s_branch %s' % lab)
    A('%s:' % ok)

class QKVLoader:
    def __init__(self, A, vg, va, vb, lds_base, stmp):
        self.A = A; self.vg = vg; self.va = va; self.vb = vb; self.base = lds_base; self.st = stmp
        A('v_lshrrev_b32 v1, 2, v0')
        A('v_lshlrev_b32 v1, 13, v1')
        A('v_and_b32 v2, 3, v0')
        A('v_lshrrev_b32 v3, 5, v0')
        A('v_lshlrev_b32 v3, 1, v3')
        A('v_xor_b32 v2, v2, v3')
        A('v_lshlrev_b32 v2, 4, v2')
        A('v_add_u32 v1, v1, v2')
        A('s_lshl_b32 s%d, s%d, 8' % (stmp, sIDX))
        A('s_lshl_b32 s%d, s%d, 6' % (stmp + 1, sWAVE))
        A('s_add_u32 s%d, s%d, s%d' % (stmp, stmp, stmp + 1))
        A('v_add_u32 v%d, s%d, v1' % (vg, stmp))
        A('s_lshl_b32 s%d, s%d, 15' % (stmp + 2, sWAVE))
        A('s_add_u32 s%d, s%d, %d' % (stmp + 2, stmp + 2, lds_base))
        A('v_lshrrev_b32 v1, 4, v0')
        A('v_lshlrev_b32 v2, 9, v1')
        A('v_bfe_u32 v3, v0, 2, 2')
        A('v_lshl_add_u32 v2, v3, 6, v2')
        A('v_and_b32 v3, 3, v0')
        A('v_lshl_add_u32 v2, v3, 3, v2')
        A('v_and_b32 v1, 1, v1')
        A('v_lshl_add_u32 v2, v1, 5, v2')
        A('v_add_u32 v%d, s%d, v2' % (va, stmp + 2))
        A('v_xor_b32 v%d, 32, v%d' % (vb, va))
    def dma(self, srd_, i):
        A = self.A; st = self.st
        A('s_add_u32 m0, s%d, %d' % (st + 2, i * 1024))
        A('s_mov_b32 s%d, %d' % (st + 3, i * 16 * 8192))
        A('buffer_load_dwordx4 v%d, %s, s%d offen lds' % (self.vg, S(srd_), st + 3))
    def tr(self, kind, dst, ks):
        for tile, ad in ((0, self.va), (1, self.vb)):
            for u in range(2):
                r = dst + tile * 64 + ks * 4 + 2 * u
                self.A('ds_read_b64_tr_b16 %s[%d:%d], v%d offset:%d' % (kind, r, r + 1, ad, ks * 2048 + u * 256))

def rt_stamp(A, opt, slot, vt=1):
    if opt.get('dbgt') and not isinstance(slot, str):
        lab = A.label('L_dt')
        A('s_and_b32 s90, s%d, 15' % sIDX)
        A('s_or_b32 s90, s90, s%d' % sWAVE)
        A('s_cmp_lg_u32 s90, 0')
        A('s_cbranch_scc1 %s' % lab)
        A('s_memrealtime s[92:93]')
        A('s_min_u32 s90, s%d, 1' % sGRP)
        A('s_cmp_ge_u32 s%d, 5' % sGRP)
        A('s_addc_u32 s90, s90, 0')
        A('s_mul_i32 s90, s90, 20')
        A('s_add_u32 s90, s90, %d' % (8 + 4 * min(slot, 4) if slot != 7 else 8 + 12))
        A('s_waitcnt lgkmcnt(0)')
        A('s_and_b32 s92, s92, 0xffffff')
        A('v_mov_b32 v%d, s90' % vt)
        A('v_mov_b32 v%d, s92' % (vt + 1))
        A('s_mov_b64 exec, 1')
        if not (slot in (3, 4, 5, 6) and opt.get('_b')):
            A('buffer_atomic_umax v%d, v%d, %s, 0 offen' % (vt + 1, vt, S(DBG)))
        A('s_mov_b64 exec, -1')
        A('%s:' % lab)
        return
    if not opt.get('stamp'):
        return
    A('s_memrealtime s[92:93]')
    A('s_lshl_b32 s90, s%d, 5' % sGRP)
    A('s_add_u32 s90, s90, s%d' % sIDX)
    A('s_lshl_b32 s90, s90, 2')
    A('s_add_u32 s90, s90, s%d' % sWAVE)
    A('s_lshl_b32 s90, s90, 8')
    if isinstance(slot, str):
        A('s_lshl_b32 s91, %s, 2' % slot)
        A('s_add_u32 s90, s90, s91')
        A('s_add_u32 s90, s90, %d' % TS)
    else:
        A('s_add_u32 s90, s90, %d' % (TS + slot * 4))
    A('s_waitcnt lgkmcnt(0)')
    A('v_mov_b32 v%d, s90' % vt)
    A('v_mov_b32 v%d, s92' % (vt + 1))
    A('s_mov_b64 exec, 1')
    A('buffer_store_dword v%d, v%d, %s, 0 offen' % (vt + 1, vt, S(WS)))
    A('s_mov_b64 exec, -1')

class RowLoader:
    def __init__(self, A, vg, va, base, st):
        self.A = A; self.vg = vg; self.va = va; self.base = base; self.st = st
        A('v_lshrrev_b32 v1, 4, v0')
        A('v_and_b32 v2, 15, v0')
        A('v_lshlrev_b32 v3, 1, v1')
        A('v_xor_b32 v2, v2, v3')
        A('v_lshlrev_b32 v2, 4, v2')
        A('v_lshl_add_u32 v2, v1, 13, v2')
        A('s_lshl_b32 s%d, s%d, 8' % (st, sIDX))
        A('s_lshl_b32 s%d, s%d, 17' % (st + 1, sWAVE))
        A('s_add_u32 s%d, s%d, s%d' % (st, st, st + 1))
        A('v_add_u32 v%d, s%d, v2' % (vg, st))
        A('v_xor_b32 v%d, 0x80, v%d' % (vg + 1, vg))
        A('s_lshl_b32 s%d, s%d, 12' % (st, sWAVE))
        A('s_add_u32 s%d, s%d, %d' % (st, st, base))
    def init_tr(self):
        A = self.A; va = self.va
        A('v_lshrrev_b32 v1, 4, v0')
        A('v_bfe_u32 v2, v0, 2, 2')
        A('v_lshl_add_u32 v3, v1, 3, v2')
        A('v_lshlrev_b32 v%d, 8, v3' % va)
        A('v_and_b32 v1, 1, v1')
        A('v_lshlrev_b32 v1, 3, v1')
        A('v_lshl_add_u32 v1, v2, 1, v1')
        A('v_bfe_u32 v2, v0, 1, 1')
        A('s_lshl_b32 s%d, s%d, 2' % (self.st + 1, sWAVE))
        A('v_add_u32 v2, s%d, v2' % (self.st + 1))
        A('v_xor_b32 v1, v1, v2')
        A('v_lshl_add_u32 v%d, v1, 4, v%d' % (va, va))
        A('v_and_b32 v1, 1, v0')
        A('v_lshl_add_u32 v%d, v1, 3, v%d' % (va, va))
        A('v_add_u32 v%d, %d, v%d' % (va, self.base, va))
        A('v_xor_b32 v%d, 32, v%d' % (va + 1, va))
        A('v_add_u32 v%d, 0x10000, v%d' % (va + 2, va))
        A('v_add_u32 v%d, 0x10000, v%d' % (va + 3, va + 1))
    def dma(self, srd_, c):
        A = self.A; st = self.st
        for j in range(4):
            A('s_add_u32 m0, s%d, %d' % (st, c * 16384 + j * 1024))
            A('s_mov_b32 s%d, %d' % (st + 1, (64 * c + 4 * j) * 8192))
            A('buffer_load_dwordx4 v%d, %s, s%d offen lds' % (self.vg + (j >> 1), S(srd_), st + 1))
    def tr(self, c, tile, kind, dst):
        for hb in range(2):
            for u in range(2):
                r = dst + 4 * hb + 2 * u
                self.A('ds_read_b64_tr_b16 %s[%d:%d], v%d offset:%d' % (kind, r, r + 1, self.va + tile + 2 * (c >> 2), (c & 3) * 16384 + hb * 8192 + u * 1024))


def hold_for_chain(A, vt=1):
    lab = A.label('L_hold'); lp = A.label('L_holdp')
    A('s_cmp_lg_u32 s%d, 0' % sWAVE)
    A('s_cbranch_scc1 %s' % lab)
    A('s_mov_b32 s58, %d' % D_LD)
    A('%s:' % lp)
    spin_check(A)
    A('s_sleep 16')
    A('buffer_load_dword v%d, off, %s, s58 sc1' % (vt, S(DBG)))
    A('s_waitcnt vmcnt(0)')
    A('v_readfirstlane_b32 s57, v%d' % vt)
    A('s_cmp_lt_u32 s57, 32')
    A('s_cbranch_scc1 %s' % lp)
    A('%s:' % lab)
    A('s_barrier')
```

```python
import sys
from common import *
import aworker

def clear_flags(A):
    lab = A.label('L_noclr')
    A('s_cmp_lg_u32 s59, %d' % (5 * 32))
    A('s_cbranch_scc0 L_doclr')
    A('s_cmp_lg_u32 s59, %d' % (5 * 32 + 0x10000))
    A('s_cbranch_scc1 %s' % lab)
    A('L_doclr:')
    A('s_cmp_lg_u32 s%d, 3' % sWAVE)
    A('s_cbranch_scc1 %s' % lab)
    A('v_lshlrev_b32 v1, 7, v0')
    A('v_mov_b32 v2, 0')
    for i in range(NFLAGS // 64):
        A('s_mov_b32 s57, %d' % (FLG + i * 8192))
        A('buffer_store_dword v2, v1, %s, s57 offen sc1' % S(WS))
    A('s_waitcnt vmcnt(0)')
    A('v_mov_b32 v1, %d' % D_CLR)
    A('v_mov_b32 v2, 1')
    A('s_mov_b64 exec, 1')
    A('buffer_store_dword v2, v1, %s, 0 offen sc1' % S(DBG))
    A('s_mov_b64 exec, -1')
    A('%s:' % lab)

def build(opt):
    A = Asm()
    prologue(A, opt.get('fake'), opt.get('warm', 'qkvo').replace('-', ''), int(opt.get('wmode', 3)))
    rt_stamp(A, opt, 0)
    clear_flags(A)
    warm_b(A, opt.get('warm', 'qkvo').replace('-', ''), int(opt.get('wmode', 3)))
    A('s_cmp_eq_u32 s%d, 0' % sGRP)
    A('s_cbranch_scc1 L_chain')
    A('s_cmp_ge_u32 s%d, 5' % sGRP)
    A('s_cbranch_scc1 L_bworker')
    aworker.p_phase(A, opt)
    if 'o' in opt['roles']:
        aworker.o_phase(A, opt)
    A('s_endpgm')
    if 'c' in opt['roles']:
        import chain10
        chain10.chain(A, opt)
    else:
        A('L_chain:')
        A('s_endpgm')
    if 'b' in opt['roles']:
        import bworker
        bworker.bworker(A, opt)
    else:
        A('L_bworker:')
        A('s_endpgm')
    epilogue(A)
    osc = opt.get('osc', '-').replace('-', '').replace('_', ' ')
    A.lines = [l + ' ' + osc if ('buffer_store' in l and S(OUT) in l) else l for l in A.lines]
    lines, n = hazard.fix(A.lines)
    body = '\n'.join(lines) + '\n'
    return kernel_file([dict(name=NAME + '_kernel', body=body, grid=(256, 1, 1), block=(256, 1, 1), lds=163840, vgpr=512, accum=256)])

if __name__ == '__main__':
    out = sys.argv[1]
    opt = dict(roles=sys.argv[2])
    for kv in sys.argv[3:]:
        k, v_ = kv.split('=')
        opt[k] = v_
    open(out, 'w').write(build(opt))
```

```python
import re
E64OK = ('v_add_f32', 'v_mul_f32', 'v_mov_b32', 'v_mov_b64', 'v_exp_f32', 'v_rcp_f32', 'v_xor_b32', 'v_or_b32', 'v_and_b32', 'v_min_u32', 'v_subrev_u32', 'v_cmp_eq_u32', 'v_cmp_ne_u32', 'v_cmp_lt_u32', 'v_max_f32', 'v_sub_f32')
INL = re.compile(r'^(-?\d+|0x[0-9a-f]+)$')
def size(t):
    mn = t.split()[0]
    if mn.startswith(('buffer_', 'ds_', 'v_mfma', 'v_smfmac', 'v_cvt_pk', 'v_pk_', 'v_bfi', 'v_fma', 'v_max3', 's_memtime', 'v_readlane', 'v_perm_b32', 'global_')) or mn.endswith(('_e64', '_dpp')):
        return 8
    ops = [x.strip() for x in t.split(None, 1)[1].split(',')] if ' ' in t else []
    if mn in ('s_waitcnt', 's_nop', 's_barrier', 's_branch', 's_sleep') or mn.startswith('s_cbranch'):
        return 4
    for x in ops:
        if INL.match(x):
            v = int(x, 0)
            if not (-16 <= v <= 64):
                return 8
    return 4
def run(lines, start, end, fill=False):
    k0 = lines.index(start); k1 = lines.index(end)
    off = 0; cand = None; n = 0; miss = 0
    out = lines[:k0 + 1]
    for l in lines[k0 + 1:k1]:
        t = l.strip()
        if not t or t.endswith(':') or t.startswith((';', '.')):
            out.append(l); continue
        sz = size(t)
        if sz == 8:
            if off % 8 == 4:
                if cand is not None:
                    c = out[cand].strip(); mn = c.split()[0]
                    out[cand] = '  ' + c.replace(mn, mn + '_e64', 1); off += 4; n += 1
                elif fill:
                    out.append('  s_nop 0'); off += 4; n += 1
                else:
                    miss += 1
            cand = None
        elif t.split()[0] in E64OK:
            cand = len(out)
        out.append(l); off += sz
    return out + lines[k1:], n, miss
```

```python
from common import *

def nseg_of_group(g):
    return len(range(g, 64, 3))

def p_phase(A, opt):
    A('L_aworker:')
    if 'p' not in opt['roles']:
        A('s_endpgm')
    A('s_and_b32 s60, s%d, 3' % sIDX)
    A('s_lshr_b32 s61, s%d, 2' % sIDX)
    A('s_sub_u32 s62, s%d, 1' % sGRP)
    A('s_lshl_b32 s62, s62, 3')
    A('s_add_u32 s%d, s61, s62' % sIDX)
    A('s_add_u32 s%d, s60, 1' % sGRP)
    ld = RowLoader(A, 104, 106, 32768, 64)
    mats = [(WK, 'a', 0), (WV, 'a', 128), (WQ, 'v', 128)]
    for c in range(8):
        ld.dma(mats[0][0], c)
    ld.init_tr()
    A('v_lshlrev_b32 v8, 4, v0')
    A('s_and_b32 s69, s%d, 1' % sWAVE)
    A('s_lshl_b32 s69, s69, 7')
    A('v_xor_b32 v110, s69, v8')
    for i in range(1, 8):
        A('v_xor_b32 v%d, %d, v110' % (110 + i, 16 * i))
    A('v_and_b32 v1, 15, v0')
    A('v_lshrrev_b32 v2, 4, v0')
    A('v_xor_b32 v2, v2, v1')
    A('v_lshlrev_b32 v2, 4, v2')
    A('v_lshl_add_u32 v4, v1, 10, v2')
    for q in range(1, 4):
        A('v_xor_b32 v%d, %d, v4' % (4 + q, 64 * q))
    A('s_lshl_b32 s68, s%d, 13' % sIDX)
    A('s_lshl_b32 s69, s%d, 10' % sWAVE)
    A('s_add_u32 s68, s68, s69')
    A('v_add_u32 v9, s68, v8')
    A('v_add_u32 v10, s69, v9')
    A('s_lshl_b32 s68, s60, 5')
    A('s_add_u32 s68, s68, s%d' % sIDX)
    A('s_lshl_b32 s68, s68, 7')
    A('v_mov_b32 v11, s68')
    A('s_lshl_b32 s70, s%d, 13' % sWAVE)
    def xdma1(sseg, sbuf, i):
        return ['s_add_u32 m0, s%d, %d' % (sbuf, i * 1024),
                's_add_u32 s69, s%d, %d' % (sseg, i * 1024),
                'buffer_load_dwordx4 v%d, %s, s69 offen lds' % (110 + i, S(XA))]
    A('s_lshl_b32 s71, s60, 15')
    A('s_add_u32 s71, s71, s70')
    for i in range(8):
        for x in xdma1(71, 70, i):
            A(x)
    for n in range(24):
        m, c = n // 8, n % 8
        young = 4 * (min(23, max(7, n + 6)) - n) + (8 if n < 8 else 0)
        A('s_waitcnt vmcnt(%d) lgkmcnt(0)' % young)
        A('s_barrier')
        if 1 <= n <= 16:
            ld.dma(mats[(n + 7) // 8][0], (n - 1) % 8)
        for tile in range(2):
            ld.tr(c, tile, mats[m][1], mats[m][2] + tile * 64 + 8 * c)
    A('s_waitcnt lgkmcnt(0)')
    wait_dbg_word(A, D_CLR, 1, 1, 2)
    rt_stamp(A, opt, 1)
    if opt.get('loadonly'):
        A('s_endpgm')
    A('s_mov_b32 s72, s60')
    A('s_mov_b32 s73, 0')
    A('s_mov_b32 s74, 32768')
    XF = 16
    ACC = 32
    PK = 80
    def acc(m, i, j): return ACC + m * 16 + (i * 2 + j) * 4
    A('s_mov_b32 s77, 0x40000000')
    def stores():
        r = []
        for m, base in ((0, KX), (2, VX), (1, QX)):
            for j in range(2):
                p = PK + (0 if m == 0 else (8 if m == 2 else 16)) + 4 * j
                r.append(['s_add_u32 s78, s77, %d' % (base + j * (1024 if m == 2 else 4096)),
                          'buffer_store_dwordx4 v[%d:%d], v%d, %s, s78 offen sc1' % (p, p + 3, 10 if m == 2 else 9, S(WS))])
        return r
    def cvts(m):
        r = []
        for j in range(2):
            p = PK + (0 if m == 0 else (8 if m == 2 else 16)) + 4 * j
            for i in range(2):
                d = acc(m, i, j)
                o0, o1 = (2 * i, 2 * i + 1) if m == 2 else (i, i + 2)
                r.append('v_cvt_pk_bf16_f32 v%d, v%d, v%d' % (p + o0, d, d + 1))
                r.append('v_cvt_pk_bf16_f32 v%d, v%d, v%d' % (p + o1, d + 2, d + 3))
        return r
    def pub():
        A('s_barrier')
        A('v_mov_b32 v12, s73')
        A('s_mov_b64 exec, 1')
        A('buffer_store_dword v12, v11, %s, 0 offen sc1' % S(WS))
        A('s_mov_b64 exec, -1')
    A('L_p_loop:')
    A('s_waitcnt vmcnt(1)')
    A('s_barrier')
    A('s_add_u32 s75, s72, 4')
    A('s_min_u32 s75, s75, 63')
    A('s_lshl_b32 s71, s75, 15')
    A('s_add_u32 s71, s71, s70')
    A('s_add_u32 s76, s74, s70')
    def rd(ks):
        b = XF + (ks & 1) * 8
        return ['ds_read_b128 v[%d:%d], v%d offset:%d' % (b + 4 * tt, b + 4 * tt + 3, 4 + ks % 4, tt * 16384 + (ks // 4) * 256) for tt in range(2)]
    for x in rd(0):
        A(x)
    st = stores()
    for ks in range(16):
        b = XF + (ks & 1) * 8
        M = []
        for m, (kind, base) in enumerate((('a', 0), ('v', 128))):
            for et in range(2):
                for tt in range(2):
                    d = acc(m, et, tt); wr = base + et * 64 + ks * 4
                    M.append('v_mfma_f32_16x16x32_bf16 v[%d:%d], %s[%d:%d], v[%d:%d], %s' % (d, d + 3, kind, wr, wr + 3, b + 4 * tt, b + 4 * tt + 3, '0' if ks == 0 else 'v[%d:%d]' % (d, d + 3)))
        for tt in range(2):
            for et in range(2):
                d = acc(2, tt, et); wr = 128 + et * 64 + ks * 4
                M.append('v_mfma_f32_16x16x32_bf16 v[%d:%d], v[%d:%d], a[%d:%d], %s' % (d, d + 3, b + 4 * tt, b + 4 * tt + 3, wr, wr + 3, '0' if ks == 0 else 'v[%d:%d]' % (d, d + 3)))
        F = [[] for _ in range(12)]
        if ks < 15:
            r = rd(ks + 1); F[0] = [r[0]]; F[1] = [r[1]]
        if ks < 3:
            F[3] = st[2 * ks]; F[7] = st[2 * ks + 1]
        elif ks < 11:
            F[4] = xdma1(71, 76, ks - 3)
        if ks == 15:
            c0, c1 = cvts(0), cvts(1)
            for q in range(4):
                F[5 + q] = c0[2 * q:2 * q + 2]
            for q in range(3):
                F[9 + q] = c1[2 * q:2 * q + 2]
            F[11] = F[11] + c1[6:] + cvts(2)
        A('s_waitcnt lgkmcnt(0)')
        for mi, f in zip(M, F):
            A(mi)
            for x in f:
                A(x)
        if ks == 13:
            A('s_waitcnt vmcnt(8)')
            pub()
    A('s_lshl_b32 s77, s72, 18')
    A('s_add_u32 s73, s73, 1')
    if opt.get('stamp'):
        A('s_add_u32 s89, s73, 8')
        rt_stamp(A, opt, 's89')
    if 'a' in opt.get('hold', ''):
        A('s_cmp_lg_u32 s73, 2')
        A('s_cbranch_scc1 L_p_nohold')
        hold_for_chain(A)
        A('L_p_nohold:')
    for q in range(4):
        A('v_xor_b32 v%d, 0x8000, v%d' % (4 + q, 4 + q))
    A('s_xor_b32 s74, s74, 32768')
    A('s_add_u32 s72, s72, 4')
    A('s_cmp_lt_u32 s72, 64')
    A('s_cbranch_scc1 L_p_loop')
    for x in st:
        A(x[0]); A(x[1])
    A('s_waitcnt vmcnt(0)')
    pub()


def o_phase(A, opt):
    import chain
    WOR = chain.WOR
    ST, KE, OE, FB = 0, 8192, 12288, 32768
    CA = chain.CA
    vIdx, vSel = 4, 8
    aQ, aL, aF, aKEw, aKEr, aOEw, aG, aOPst, aOPld, aOut, aFl, aFlAll = 5, 6, 7, 12, 13, 14, 15, 16, 17, 18, 19, 20
    vNeg = 21
    R0, R1, R2, T = 24, 56, 88, 120
    mOdd, mC = 96, 80
    sK, sSeg, sFb, sM0 = 70, 71, 72, 73
    A('L_o_start:')
    rt_stamp(A, opt, 2)
    A('v_and_b32 v1, 15, v0')
    A('v_lshrrev_b32 v2, 4, v0')
    A('v_lshlrev_b32 v3, 12, v2')
    A('v_lshl_add_u32 v3, v1, 3, v3')
    A('s_lshl_b32 s61, s%d, 17' % sIDX)
    A('s_lshl_b32 s62, s%d, 8' % sWAVE)
    A('s_add_u32 s61, s61, s62')
    A('v_add_u32 v22, s61, v3')
    for blk in range(8):
        for u in range(4):
            chain.wo_load(A, 22, blk, u, dense=True)
    A('v_lshlrev_b32 v%d, 4, v0' % aL)
    A('s_lshl_b32 s61, s%d, 11' % sWAVE)
    A('v_add_u32 v%d, s61, v%d' % (aQ, aL))
    A('s_add_u32 s%d, s61, %d' % (sM0, FB))
    A('s_lshl_b32 s62, s%d, 13' % sIDX)
    A('v_add_u32 v%d, s62, v%d' % (aG, aQ))
    A('v_add_u32 v%d, %d, v%d' % (aF, FB, aL))
    A('v_bfe_u32 v3, v0, 1, 1')
    A('v_mov_b32 v%d, 0x4444' % vIdx)
    A('v_mov_b32 v26, 0xeeee')
    A('v_cmp_eq_u32 vcc, 1, v3')
    A('v_cndmask_b32 v%d, v%d, v26, vcc' % (vIdx, vIdx))
    A('v_and_b32 v29, 1, v0')
    A('v_mov_b32 v27, 0x3f80')
    A('v_mov_b32 v28, 0x3f800000')
    A('v_cmp_eq_u32 vcc, 1, v29')
    A('v_cndmask_b32 v27, v27, v28, vcc')
    A('v_lshrrev_b32 v26, 1, v1')
    for u in range(4):
        A('v_cmp_eq_u32 vcc, %d, v26' % u)
        A('v_cndmask_b32 v%d, 0, v27, vcc' % (vSel + u))
    A('v_lshlrev_b32 v27, 4, v1')
    A('v_lshl_add_u32 v27, v2, 2, v27')
    A('s_lshl_b32 s62, s%d, 9' % sWAVE)
    A('v_add_u32 v%d, s62, v27' % aKEw)
    A('v_bfe_u32 v27, v0, 3, 1')
    A('v_lshlrev_b32 v27, 8, v27')
    A('v_lshl_add_u32 v27, v2, 6, v27')
    A('v_bfe_u32 v28, v0, 2, 1')
    A('v_lshl_add_u32 v27, v28, 4, v27')
    A('v_lshl_add_u32 v%d, v3, 3, v27' % aKEr)
    A('v_lshlrev_b32 v27, 17, v2')
    A('v_lshl_add_u32 v27, v1, 4, v27')
    A('s_lshl_b32 s62, s%d, 10' % sIDX)
    A('s_lshl_b32 s63, s%d, 8' % sWAVE)
    A('s_add_u32 s62, s62, s63')
    A('v_add_u32 v%d, s62, v27' % aOPst)
    A('v_lshlrev_b32 v27, 10, v2')
    A('v_lshl_add_u32 v27, v1, 4, v27')
    A('s_lshl_b32 s62, s%d, 15' % sIDX)
    A('s_add_u32 s62, s62, s63')
    A('v_add_u32 v%d, s62, v27' % aOPld)
    A('v_lshlrev_b32 v27, 7, v2')
    A('v_lshl_add_u32 v27, v1, 3, v27')
    A('s_lshl_b32 s62, s%d, 11' % sIDX)
    A('s_add_u32 s62, s62, s63')
    A('v_add_u32 v%d, s62, v27' % aOut)
    A('s_lshl_b32 s62, s60, 12')
    A('s_add_u32 s62, s62, %d' % F_OP)
    A('v_and_b32 v27, 31, v0')
    A('v_lshlrev_b32 v27, 7, v27')
    A('v_add_u32 v%d, s62, v27' % aFlAll)
    A('s_lshl_b32 s63, s%d, 7' % sIDX)
    A('s_add_u32 s62, s62, s63')
    A('v_mov_b32 v%d, s62' % aFl)
    A('v_mov_b32 v%d, 0x%x' % (vNeg, f2u(-1e30)))
    A('s_mov_b32 s%d, 0xffff0000' % mOdd); A('s_mov_b32 s%d, 0xffff0000' % (mOdd + 1))
    A('v_lshlrev_b32 v27, 2, v2')
    for rho in range(4):
        A('v_add_u32 v28, %d, v27' % rho)
        A('v_cmp_le_u32 s[%d:%d], v28, v1' % (mC + 2 * rho, mC + 2 * rho + 1))
    A('s_mov_b32 s79, 0x%x' % f2u(CA))
    A('s_mov_b32 s61, 0x05040100')
    A('s_mov_b32 s62, 0x07060302')
    for blk in range(8):
        A('s_waitcnt vmcnt(%d)' % (56 - 8 * blk))
        chain.wo_fix(A, blk, 48, 61, 62)
    wait_dbg_word(A, D_ARR, 32, 1, 2, mask=0xffff)
    def prefetch(sseg):
        A('s_lshl_b32 s61, s%d, 18' % sseg)
        for i, base in enumerate((QX, KX, VX)):
            A('s_add_u32 s62, s61, %d' % base)
            A('s_add_u32 m0, s%d, %d' % (sM0, i * 8192))
            A('buffer_load_dwordx4 v%d, %s, s62 offen sc1 lds' % (aG, S(WS)))
            A('buffer_load_dwordx4 v%d, %s, s62 offen offset:1024 sc1 lds' % (aG, S(WS)))
        A('s_xor_b32 s%d, s%d, %d' % (sM0, sM0, 32768 ^ 65536))
    def pub_flag():
        A('v_mov_b32 v1, s%d' % sK)
        A('s_mov_b64 exec, 1')
        A('buffer_store_dword v1, v%d, %s, 0 offen sc1' % (aFl, S(WS)))
        A('s_mov_b64 exec, -1')
    def red_issue(flags=True):
        if flags:
            lp = A.label('L_o_fw')
            A('%s:' % lp)
            spin_check(A)
            A('buffer_load_dword v1, v%d, %s, 0 offen sc1' % (aFlAll, S(WS)))
            A('s_waitcnt vmcnt(0)')
            A('v_cmp_gt_u32 vcc, s%d, v1' % sK)
            A('s_cbranch_vccnz %s' % lp)
        A('s_sub_u32 s61, s%d, 4' % sSeg)
        A('s_lshl_b32 s61, s61, 20')
        A('s_add_u32 s61, s61, %d' % OP)
        for i in range(8):
            A('buffer_load_dwordx4 v[%d:%d], v%d, %s, s61 offen sc1' % (R2 + 4 * i, R2 + 4 * i + 3, aOPld, S(WS)))
            if i < 7:
                A('s_add_u32 s61, s61, 4096')
    def red_finish(D):
        for i in range(8):
            A('v_mfma_f32_16x16x32_bf16 v[%d:%d], v[%d:%d], v[%d:%d], %s' % (D, D + 3, vSel, vSel + 3, R2 + 4 * i, R2 + 4 * i + 3, '0' if i == 0 else 'v[%d:%d]' % (D, D + 3)))
        A('s_sub_u32 s61, s%d, 4' % sSeg)
        A('s_lshl_b32 s61, s61, 16')
        A('v_cvt_pk_bf16_f32 v%d, v%d, v%d' % (D, D, D + 1))
        A('v_cvt_pk_bf16_f32 v%d, v%d, v%d' % (D + 1, D + 2, D + 3))
        A('s_mov_b32 exec_hi, 0')
        A('buffer_store_dwordx2 v[%d:%d], v%d, %s, s61 offen' % (D, D + 1, aOut, S(OUT)))
        A('s_mov_b64 exec, -1')
    for i in range(4):
        A('v_mov_b32 v%d, -1' % (T + i))
    A('s_add_u32 s63, s60, 60')
    A('s_lshl_b32 s63, s63, 20')
    A('s_add_u32 s63, s63, %d' % OP)
    for q in range(8):
        A('s_add_u32 s61, s63, %d' % ((16 * (q // 4) + q % 4) * 32768))
        A('buffer_store_dwordx4 v[%d:%d], v%d, %s, s61 offen sc1' % (T, T + 3, aOPst, S(WS)))
    A('s_barrier')
    A('s_mov_b32 s%d, 0' % sK)
    A('s_mov_b32 s%d, s60' % sSeg)
    prefetch(sSeg)
    rt_stamp(A, opt, 3)
    sDone = 74
    KA, VA = R2, R2 + 8
    SM = [R2, R2 + 4]; SX0 = [R2 + 24, R2 + 28]; SX1 = R2 + 16
    AF = R0; QF = R1
    def smma(d, ab, qt):
        for ks in range(4):
            A('v_mfma_f32_16x16x32_bf16 v[%d:%d], v[%d:%d], v[%d:%d], %s' % (d, d + 3, ab + 4 * ks, ab + 4 * ks + 3, QF + 16 * qt + 4 * ks, QF + 16 * qt + 4 * ks + 3, '0' if ks == 0 else 'v[%d:%d]' % (d, d + 3)))
    def mem_ld():
        A('buffer_load_dwordx4 v[%d:%d], v%d, %s, s63 offen sc1' % (T, T + 3, aQ, S(WS)))
        A('buffer_load_dwordx4 v[%d:%d], v%d, %s, s63 offen offset:1024 sc1' % (T + 4, T + 7, aQ, S(WS)))
    def mem_chk():
        A('s_waitcnt vmcnt(0)')
        A('v_max3_u32 v1, v%d, v%d, v%d' % (T, T + 1, T + 2))
        A('v_max3_u32 v2, v%d, v%d, v%d' % (T + 3, T + 4, T + 5))
        A('v_max3_u32 v1, v1, v%d, v%d' % (T + 6, T + 7))
        A('v_max_u32 v1, v1, v2')
        A('v_cmp_eq_u32 vcc, -1, v1')
    A('L_o_loop:')
    A('s_lshl_b32 s63, s%d, 13' % sSeg)
    A('s_add_u32 s63, s63, %d' % MH)
    mem_ld()
    A('s_waitcnt vmcnt(2)')
    A('s_barrier')
    pub_flag()
    for i in range(8):
        A('ds_read_b128 v[%d:%d], v%d offset:%d' % (QF + 4 * i, QF + 4 * i + 3, aF, 1024 * i))
    for i in range(8):
        if i == 6:
            A('s_waitcnt lgkmcnt(6)')
        A('ds_read_b128 v[%d:%d], v%d offset:%d' % (R0 + 4 * i, R0 + 4 * i + 3, aF, 8192 + 1024 * i))
    A('s_cmp_eq_u32 s%d, 0' % sK)
    A('s_cselect_b32 s%d, 1, 0' % sDone)
    A('s_waitcnt vmcnt(1)')
    A('v_max3_u32 v1, v%d, v%d, v%d' % (T, T + 1, T + 2))
    A('v_max3_u32 v2, v%d, v%d, v%d' % (T + 3, T + 4, T + 5))
    A('v_max3_u32 v1, v1, v%d, v%d' % (T + 6, T + 7))
    A('v_max_u32 v1, v1, v2')
    A('v_cmp_eq_u32 s[76:77], -1, v1')
    A('s_cmp_eq_u64 s[76:77], 0')
    A('s_cbranch_scc1 L_o_pre')
    A('s_cmp_eq_u32 s%d, 1' % sDone)
    A('s_cbranch_scc1 L_o_pre')
    red_issue()
    A('s_waitcnt vmcnt(0)')
    red_finish(T)
    A('s_mov_b32 s%d, 1' % sDone)
    A('L_o_pre:')
    A('s_waitcnt lgkmcnt(0)')
    smma(SX1, R0 + 16, 1)
    smma(SX0[0], R0, 0)
    smma(SX0[1], R0, 1)
    for i in range(8):
        A('v_mov_b64 v[%d:%d], 0' % (KA + 2 * i, KA + 2 * i + 1))
    for d in (SX1, SX0[0]):
        for rho in range(4):
            A('v_cndmask_b32 v%d, v%d, v%d, s[%d:%d]' % (d + rho, vNeg, d + rho, mC + 2 * rho, mC + 2 * rho + 1))
    A('s_cmp_eq_u64 s[76:77], 0')
    A('s_cbranch_scc1 L_o_got')
    A('L_o_pa:')
    spin_check(A)
    mem_ld()
    mem_chk()
    A('s_cbranch_vccz L_o_got')
    A('s_sleep %d' % int(opt.get('osl', 2)))
    A('s_branch L_o_pa')
    A('L_o_got:')
    A('ds_write_b128 v%d, v[%d:%d] offset:%d' % (aQ, T, T + 3, ST))
    A('ds_write_b128 v%d, v[%d:%d] offset:%d' % (aQ, T + 4, T + 7, ST + 1024))
    A('s_waitcnt lgkmcnt(0)')
    A('s_barrier')
    for t in range(8):
        A('ds_read_b128 v[%d:%d], v%d offset:%d' % (AF + 4 * t, AF + 4 * t + 3, aL, ST + 1024 * t))
    def kv(m, acc, t):
        for tile in range(2):
            b = m * 128 + tile * 64 + t * 8
            A('v_smfmac_f32_16x16x64_bf16 v[%d:%d], v[%d:%d], a[%d:%d], v%d' % (acc + 4 * tile, acc + 4 * tile + 3, AF + 4 * t, AF + 4 * t + 3, b, b + 7, vIdx))
    for t in range(8):
        A('s_waitcnt lgkmcnt(%d)' % (7 - t))
        kv(0, KA, t)
    kv(1, VA, 0)
    for tile in range(2):
        d = KA + 4 * tile
        A('v_add_f32 v%d, v%d, v%d' % (d, d, d + 2))
        A('v_add_f32 v%d, v%d, v%d' % (d + 1, d + 1, d + 3))
        A('v_cvt_pk_bf16_f32 v%d, v%d, v%d' % (d, d, d + 1))
    A('ds_write_b32 v%d, v%d offset:%d' % (aKEw, KA, KE))
    A('ds_write_b32 v%d, v%d offset:%d' % (aKEw, KA + 4, KE + 256))
    for t in range(1, 4):
        kv(1, VA, t)
    A('s_waitcnt lgkmcnt(0)')
    A('s_barrier')
    KF = R0
    for t in range(4, 8):
        kv(1, VA, t)
        ks = t - 4
        for u in range(2):
            A('ds_read_b64_tr_b16 v[%d:%d], v%d offset:%d' % (KF + 4 * ks + 2 * u, KF + 4 * ks + 2 * u + 1, aKEr, KE + ks * 512 + u * 32))
    A('s_waitcnt lgkmcnt(0)')
    smma(SM[0], KF, 0)
    smma(SM[1], KF, 1)
    for tile in range(2):
        d = VA + 4 * tile
        A('v_add_f32 v%d, v%d, v%d' % (d, d, d + 2))
        A('v_add_f32 v%d, v%d, v%d' % (d + 1, d + 1, d + 3))
        A('v_cvt_pk_bf16_f32 v%d, v%d, v%d' % (d + 2, d, d + 1))
        A('v_cndmask_b32 v%d, v%d, 0, s[%d:%d]' % (d, d + 2, mOdd, mOdd + 1))
        A('v_cndmask_b32 v%d, 0, v%d, s[%d:%d]' % (d + 1, d + 2, mOdd, mOdd + 1))
    VXF = R0 + 24
    A('s_lshl_b32 s61, s%d, 11' % sWAVE)
    A('v_add_u32 v3, s61, v%d' % aF)
    A('ds_read_b128 v[%d:%d], v3 offset:%d' % (VXF, VXF + 3, 16384))
    A('ds_read_b128 v[%d:%d], v3 offset:%d' % (VXF + 4, VXF + 7, 16384 + 1024))
    A('v_xor_b32 v%d, %d, v%d' % (aF, 32768 ^ 65536, aF))
    PX = [R1, R1 + 4]; PM = [R1 + 8, R1 + 10]; RL = [R1 + 12, R1 + 13]
    OT = R0 + 8
    for qt in range(2):
        xs = [SX0[qt] + i for i in range(4)] + ([SX1 + i for i in range(4)] if qt else [])
        ms = [SM[qt] + i for i in range(4)]
        al = ms + xs
        A('v_max3_f32 v1, v%d, v%d, v%d' % tuple(al[:3]))
        k = 3
        while k + 1 < len(al):
            A('v_max3_f32 v1, v1, v%d, v%d' % (al[k], al[k + 1])); k += 2
        if k < len(al):
            A('v_max_f32 v1, v1, v%d' % al[k])
        chain.xred(A, 'v_max_f32', 1, 2)
        A('v_mul_f32 v1, s79, v1')
        for r in al:
            A('v_fma_f32 v%d, v%d, s79, -v1' % (r, r))
        for r in al:
            A('v_exp_f32 v%d, v%d' % (r, r))
        for i in range(4):
            if 2 * i < len(xs):
                A('v_cvt_pk_bf16_f32 v%d, v%d, v%d' % (PX[qt] + i, xs[2 * i], xs[2 * i + 1]))
            else:
                A('v_mov_b32 v%d, 0' % (PX[qt] + i))
        for i in range(2):
            A('v_cvt_pk_bf16_f32 v%d, v%d, v%d' % (PM[qt] + i, ms[2 * i], ms[2 * i + 1]))
        if qt == 0:
            A('s_waitcnt lgkmcnt(0)')
        for et in range(2):
            d = OT + (et * 2 + qt) * 4
            A('v_mfma_f32_16x16x32_bf16 v[%d:%d], v[%d:%d], v[%d:%d], 0' % (d, d + 3, VXF + 4 * et, VXF + 4 * et + 3, PX[qt], PX[qt] + 3))
        for et in range(2):
            d = OT + (et * 2 + qt) * 4
            A('v_mfma_f32_16x16x16_bf16 v[%d:%d], v[%d:%d], v[%d:%d], v[%d:%d]' % (d, d + 3, VA + 4 * et, VA + 4 * et + 1, PM[qt], PM[qt] + 1, d, d + 3))
        A('v_add_f32 v1, v%d, v%d' % (ms[0], ms[1]))
        A('v_add_f32 v2, v%d, v%d' % (ms[2], ms[3]))
        A('v_add_f32 v1, v1, v2')
        A('v_mul_f32 v1, 0.5, v1')
        for r in xs:
            A('v_add_f32 v1, v1, v%d' % r)
        chain.xred(A, 'v_add_f32', 1, 2)
        A('v_rcp_f32 v%d, v1' % RL[qt])
    for qt in range(2):
        for et in range(2):
            d = OT + (et * 2 + qt) * 4
            for i in range(4):
                A('v_mul_f32 v%d, v%d, v%d' % (d + i, d + i, RL[qt]))
            A('v_cvt_pk_bf16_f32 v%d, v%d, v%d' % (T + 4 * qt + 2 * et, d, d + 1))
            A('v_cvt_pk_bf16_f32 v%d, v%d, v%d' % (T + 4 * qt + 2 * et + 1, d + 2, d + 3))
        A('ds_write_b128 v%d, v[%d:%d] offset:%d' % (aQ, T + 4 * qt, T + 4 * qt + 3, OE + 1024 * qt))
    A('s_waitcnt lgkmcnt(0)')
    A('s_barrier')
    OA = R1
    for tt in range(2):
        for ks in range(4):
            b = OA + 16 * tt + 4 * ks
            A('ds_read_b128 v[%d:%d], v%d offset:%d' % (b, b + 3, aL, OE + 2048 * ks + 1024 * tt))
    A('s_cmp_eq_u32 s%d, 1' % sDone)
    A('s_cbranch_scc1 L_o_nored')
    red_issue()
    A('L_o_nored:')
    A('s_add_u32 s63, s%d, 4' % sSeg)
    A('s_min_u32 s63, s63, 300')
    A('s_cmp_gt_u32 s63, 63')
    A('s_cselect_b32 s63, 0x700, s63')
    prefetch(63)
    A('s_waitcnt lgkmcnt(0)')
    A('s_lshl_b32 s63, s%d, 20' % sSeg)
    A('s_add_u32 s63, s63, %d' % OP)
    OC = R0
    for tt in range(2):
        for ks in range(4):
            for j in range(8):
                d = OC + 4 * j; wr = WOR(j, ks // 2) + 4 * (ks % 2); b = OA + 16 * tt + 4 * ks
                A('v_mfma_f32_16x16x32_bf16 v[%d:%d], v[%d:%d], v[%d:%d], %s' % (d, d + 3, b, b + 3, wr, wr + 3, '0' if ks == 0 else 'v[%d:%d]' % (d, d + 3)))
        for rho in range(4):
            G = T + 4 * (rho & 1)
            for u in range(4):
                A('v_cvt_pk_bf16_f32 v%d, v%d, v%d' % (G + u, OC + 8 * u + rho, OC + 8 * u + 4 + rho))
            for u in range(4):
                A('v_min_u32 v%d, -2, v%d' % (G + u, G + u))
            A('s_add_u32 s61, s63, %d' % ((16 * tt + rho) * 32768))
            A('buffer_store_dwordx4 v[%d:%d], v%d, %s, s61 offen sc1' % (G, G + 3, aOPst, S(WS)))
    A('s_cmp_eq_u32 s%d, 1' % sDone)
    A('s_cbranch_scc1 L_o_nored2')
    A('s_waitcnt vmcnt(14)')
    red_finish(R1)
    A('L_o_nored2:')
    if opt.get('stamp'):
        A('s_add_u32 s89, s70, 32')
        rt_stamp(A, opt, 's89')
    A('s_add_u32 s%d, s%d, 1' % (sK, sK))
    A('s_add_u32 s%d, s%d, 4' % (sSeg, sSeg))
    A('s_cmp_lt_u32 s%d, 64' % sSeg)
    A('s_cbranch_scc1 L_o_loop')
    A('s_waitcnt vmcnt(%d)' % int(opt.get('lw', 2)))
    A('L_o_last:')
    spin_check(A)
    red_issue(False)
    A('s_waitcnt vmcnt(0)')
    A('v_max_u32 v1, v%d, v%d' % (R2, R2 + 1))
    for i in range(2, 32, 2):
        A('v_max3_u32 v1, v1, v%d, v%d' % (R2 + i, R2 + i + 1))
    A('v_cmp_eq_u32 vcc, -1, v1')
    A('s_cbranch_vccnz L_o_last')
    red_finish(R1)
    rt_stamp(A, opt, 4)
```

```python
from common import *
from chain import wo_load, wo_fix, WOR, CA, ph, ph_init, ph_acc, ph_out
from chain3 import *
import chain3

def U(i): return SB + 8 * i
WQA, WQB, WOV = 128, 192, 208
QU = {i: i for i in range(6)}
def qb_reg(i): return U(QU[i]) if i in QU else WQB + 8 * (i - 6)
def wo_res(j, t): return WOV + (j * 2 + t) * 8
aWS2 = 0
WO_L = [(j, t) for j in range(3, 8) for t in range(2)]
BLK_ORDER = [1, 3, 5, 0, 2, 4, 6, 7]
_order = [(4 * (blk & 1) + jj, blk >> 2, (blk >> 1) & 1) for blk in BLK_ORDER for jj in range(4) if 4 * (blk & 1) + jj >= 3]
def wo_cell(j, t, hb): return 12 + _order.index((j, t, hb))
def cell_ad(x):
    off = (x // 4) * 16384 + (x % 4) * 1024
    return (aWS, off) if off < 65536 else (aWS2, off - 65536)
def cell_rd(dst, x): return 'ds_read_b128 v[%d:%d], v%d offset:%d' % ((dst, dst + 3) + cell_ad(x))
def cell_wr(src, x):
    ad, off = cell_ad(x)
    return 'ds_write_b128 v%d, v[%d:%d] offset:%d' % (ad, src, src + 3, off)
def wo_rd(dst, j, t):
    return [cell_rd(dst + 4 * hb, wo_cell(j, t, hb)) for hb in range(2)]
def pre_reads():
    return [cell_rd(U(i) + 4 * hb, 2 * i + hb) for i in range(6) for hb in range(2)]

def load_weights(A, opt, ld, extra):
    mats = [WQ, WK, WV]
    RAW = {1: 208, 3: 224, 5: 240, 0: 20, 2: 36, 4: 108, 6: 52, 7: 68}
    TMP = 84
    def wl(blk):
        t, hb, half = blk >> 2, (blk >> 1) & 1, blk & 1
        for u in range(4):
            e0 = 64 * t + 32 * (u % 2) + 8 * hb + 2 * (u // 2)
            r = RAW[blk] + 4 * u
            A('s_mov_b32 s68, %d' % (e0 * 1024 + half * 128))
            A('buffer_load_dwordx2 v[%d:%d], v107, %s, s68 offen' % (r, r + 1, S(WO)))
            A('buffer_load_dwordx2 v[%d:%d], v107, %s, s68 offen offset:1024' % (r + 2, r + 3, S(WO)))
    def fix(blk):
        t, hb, half = blk >> 2, (blk >> 1) & 1, blk & 1
        for jj in range(4):
            j = 4 * half + jj
            d = wo_res(j, t) + 4 * hb if j < 3 else TMP + 4 * jj
            for u in range(4):
                r = RAW[blk] + 4 * u
                A('v_perm_b32 v%d, v%d, v%d, s%d' % (d + u, r + 2 + jj // 2, r + jj // 2, 62 if jj & 1 else 61))
            if j >= 3:
                A(cell_wr(d, wo_cell(j, t, hb)))
        A('s_waitcnt lgkmcnt(0)')
    DEP = int(opt.get('depth', 8))
    log = [('d', n) for n in range(DEP) for _ in range(4)] + [('x', 0)] * extra
    def wait_for(tag):
        last = max(i for i, t_ in enumerate(log) if t_ == tag)
        n = len(log) - 1 - last
        return min(n, 63)
    wl_at = {14: [1], 15: [3], 16: [5], 17: [0], 18: [2], 19: [4], 20: [6], 21: [7]}
    for n in range(24):
        m, c = n // 8, n % 8
        A('s_waitcnt vmcnt(%d) lgkmcnt(0)' % wait_for(('d', n)))
        if n == int(opt.get('arn', 8)):
            arrive(A)
        else:
            A('s_barrier')
        nx_ = n + DEP - 1 if DEP == 8 else n + DEP
        if DEP <= nx_ <= 23:
            ld.dma(mats[nx_ // 8], nx_ % 8); log += [('d', nx_)] * 4
        end = A.label('L_c_tr')
        for w in range(4):
            nx = A.label('L_c_tr')
            if w < 3:
                A('s_cmp_lg_u32 s%d, %d' % (sWAVE, w))
                A('s_cbranch_scc1 %s' % nx)
            i = c ^ (2 * w)
            if m == 0:
                ld.tr(c, 0, 'v', WQA + 8 * i)
                ld.tr(c, 1, 'v', qb_reg(i))
            else:
                for tile in range(2):
                    ld.tr(c, tile, 'a', (m - 1) * 128 + tile * 64 + 8 * i)
            if w < 3:
                A('s_branch %s' % end)
                A('%s:' % nx)
        A('%s:' % end)
        if n == int(opt.get('arn', 8)):
            A('v_min_u32 v%d, -2, v%d' % (vMem, vMem))
            A('s_mov_b32 s57, %d' % MR)
            A('buffer_store_dword v%d, v%d, %s, s57 offen sc1' % (vMem, aMRst, S(WS))); log += [('x', 1)]
            A('buffer_load_dword v3, off, %s, 0 offset:%d sc1' % (S(DBG), D_CLR)); log += [('x', 1)]
        if 9 <= n <= 16:
            if n == 9:
                A('s_mov_b32 s66, 0x%x' % f2u(CA))
                A('s_mov_b32 s67, 0xffff0000')
            regs = ([WQA + i for i in range(80)] + [SB + i for i in range(48)])[16 * (n - 9):16 * (n - 8)]
            for r in regs:
                A('v_lshlrev_b32 v1, 16, v%d' % r)
                A('v_and_b32 v2, s67, v%d' % r)
                A('v_mul_f32 v1, s66, v1')
                A('v_mul_f32 v2, s66, v2')
                A('v_cvt_pk_bf16_f32 v%d, v1, v2' % r)
        if 17 <= n <= 19:
            for x in range(4 * (n - 17), 4 * (n - 17) + 4):
                A(cell_wr(SB + 4 * x, x))
        for blk in wl_at.get(n, []):
            wl(blk); log += [('w', blk)] * 8
        if n == int(opt.get('ldn', 21)) and opt.get('hold'):
            A('s_cmp_lg_u32 s%d, 0' % sWAVE)
            A('s_cbranch_scc1 L_c_nold')
            A('v_mov_b32 v1, 1')
            A('v_mov_b32 v2, %d' % D_LD)
            A('s_mov_b64 exec, 1')
            A('buffer_atomic_add v1, v2, %s, 0 offen' % S(DBG))
            A('s_mov_b64 exec, -1')
            A('L_c_nold:')
        if n == int(opt.get('fn', 22)):
            A('v_readfirstlane_b32 s57, v3')
            A('v_mov_b32 v2, 0')
            A('s_cmp_eq_u32 s57, 0')
            A('s_cbranch_scc1 L_c_nf')
            A('v_mbcnt_lo_u32_b32 v1, -1, 0')
            A('v_and_b32 v1, 3, v1')
            A('v_lshlrev_b32 v1, 12, v1')
            A('s_lshl_b32 s%d, s%d, 7' % (sG1, sIDX))
            A('buffer_load_dword v2, v1, %s, s%d offen sc1' % (S(WS), sG1))
            A('buffer_load_dword v%d, off, %s, 0 offset:%d sc1' % (vFlag, S(DBG), D_ARR))
            A('L_c_nf:')
        if n == 20:
            A('s_mov_b32 s61, 0x05040100')
            A('s_mov_b32 s62, 0x07060302')
        if n >= 20:
            todo = {20: [1], 21: [3], 22: [5], 23: [0, 2, 4, 6]}[n]
            for blk in todo:
                A('s_waitcnt vmcnt(%d)' % wait_for(('w', blk)))
                fix(blk)
    A('s_waitcnt vmcnt(0) lgkmcnt(0)')
    A('s_barrier')
    fix(7)
sLo, sRng, sOne2 = 96, 97, 98
aX = [aQ, 1, 2, 3]
sH = 100
TR = SB + 6
aKX, aPE = aPF, vInc
PE = 14848


class Trk:
    def __init__(self, A, name):
        self.A = A; self.name = name; self.log = []
    def op(self, x, tag=None):
        self.A(x); self.log.append(tag)
    def wait(self, tag):
        last = max(i for i, t in enumerate(self.log) if t == tag)
        n = len(self.log) - 1 - last
        assert n <= 15
        self.A('s_waitcnt %s(%d)' % (self.name, n))
        self.log = self.log[last + 1:]
    def all(self):
        self.A('s_waitcnt %s(0)' % self.name); self.log = []

def mark(A, opt, tag, name):
    if tag == '_f' and opt.get('probe') == name:
        A('s_memtime s[10:11]')
    if tag == '_f' and name in opt.get('rt', '').split(','):
        k = opt['rt'].split(',').index(name)
        A('s_memrealtime s[%d:%d]' % (12 + 2 * k, 13 + 2 * k))

def loop(A, opt, SC, tag):
    o = lambda k, d: int(opt.get(k, d))
    A('L_c_start%s:' % tag)
    A('s_mov_b32 s84, s%d' % WS)
    A('s_or_b32 s85, s%d, 0x40000' % (WS + 1))
    A('s_mov_b32 s86, 0x4000000')
    A('s_mov_b32 s87, 0x20000')
    A('s_mov_b32 s%d, 0' % sS)
    A('s_mov_b32 s%d, %d' % (sRing, MR))
    A('s_mov_b32 s%d, %d' % (sRst, MR + 2 * 8192))
    A('s_mov_b32 s%d, %d' % (sMRend, MR + 3 * 8192))
    A('s_mov_b32 s%d, 1' % sTag)
    A('s_lshl_b32 s%d, s%d, 7' % (sG1, sIDX))
    A('s_mov_b32 s%d, 0' % sK1)
    A('s_mov_b32 s%d, 0x%x' % (sCA, f2u(CA)))
    A('s_lshl_b32 s%d, s%d, 13' % (sKoff, sIDX))
    A('s_lshr_b32 s57, s%d, 1' % sWAVE)
    A('s_lshl_b32 s57, s57, 24')
    A('s_add_u32 s%d, s%d, s57' % (sVoff, sKoff))
    A('s_and_b32 s57, s%d, 1' % sWAVE)
    A('s_lshl_b32 s57, s57, 12')
    A('s_add_u32 s%d, s%d, s57' % (sVoff, sVoff))
    A('s_add_u32 s%d, s%d, %d' % (sVoff, sVoff, KX))
    A('s_add_u32 s%d, s%d, %d' % (sKoff, sKoff, KX))
    A('s_mov_b32 s%d, %d' % (sMH, MH))
    A('s_mov_b32 s%d, 0x3f803f80' % sOne)
    A('s_mov_b32 s%d, 32768' % s32k)
    A('s_mov_b32 s%d, 2048' % sX1); A('s_mov_b32 s%d, 4096' % sX2); A('s_mov_b32 s%d, 6144' % sX3)
    A('s_mov_b32 s%d, 8192' % s8k)
    A('s_mov_b32 s%d, 262144' % s256k)
    lo, hi = f2u(2.0 ** -30), f2u(2.0 ** 30)
    if opt.get('forceslow'):
        lo, hi = f2u(2.0 ** 100), f2u(2.0 ** 101)
    A('s_mov_b32 s%d, 0x3f803f80' % sOne2); A('s_mov_b32 s%d, 0x3f803f80' % (sOne2 + 1))
    A('s_mov_b32 s%d, 0x%x' % (sLo, lo))
    A('s_mov_b32 s%d, 0x%x' % (sRng, hi - lo))
    A('s_mov_b32 s%d, 0' % sH)
    A('s_mov_b32 s%d, 1' % sK1)
    A('v_mov_b32 v%d, 0' % vFlag)
    pf = 'buffer_load_dword v%d, v%d, %s, s%d offen sc1' % (vInc, aPF, S(WS), sKoff)
    for x in dma_kv():
        A(x)
    A('s_add_u32 s%d, s%d, s%d' % (sKoff, sKoff, s256k))
    A('s_add_u32 s%d, s%d, s%d' % (sVoff, sVoff, s256k))
    for x in pre_reads():
        A(x)
    for i in range(12):
        A(z64(QA + 2 * i))
    rt_stamp(A, opt, 2)
    ph_init(A, opt)
    if opt.get('clk'):
        A('s_memtime s[8:9]')
    def Qa(i): return sm(QA, AF + 4 * i, WQA + 8 * i, 'v')
    def Qb(i): return sm(QA + 4, AF + 4 * i, qb_reg(i), 'v')
    def Ka(i): return sm(KA, AF + 4 * i, 8 * i, 'a')
    def Kb(i): return sm(KA + 4, AF + 4 * i, 64 + 8 * i, 'a')
    def Va(i): return sm(VA, AF + 4 * i, 128 + 8 * i, 'a')
    def Vb(i): return sm(VA + 4, AF + 4 * i, 192 + 8 * i, 'a')
    def afl(i):
        return 'buffer_load_dwordx4 v[%d:%d], v%d, %s, s%d offen offset:%d sc1' % (AF + 4 * i, AF + 4 * i + 3, aQ, S(WS), sRing, i * 1024)
    def afw(i):
        return 'ds_write_b128 v%d, v[%d:%d] offset:%d' % (aQ, AF + 4 * i, AF + 4 * i + 3, ST + i * 1024)
    def add(d, x, y): return 'v_add_f32 v%d, v%d, v%d' % (d, x, y)
    def cvt(d, x, y): return 'v_cvt_pk_bf16_f32 v%d, v%d, v%d' % (d, x, y)
    def ex(r): return 'v_exp_f32 v%d, v%d' % (r, r)
    def hsum(d): return [add(d, d, d + 2), add(d + 1, d + 1, d + 3)]
    mul = lambda d: 'v_mul_f32 v%d, s%d, v%d' % (d, sCA, d)
    zero = lambda r: 'v_mov_b32 v%d, 0' % r
    cmp_ = lambda i: 'v_cmp_eq_u32 vcc, -1, v%d' % (AF + 4 * i)
    M = lambda name: mark(A, opt, tag, name)
    A('s_and_b32 s57, s%d, 1' % sWAVE)
    A('s_lshl_b32 s57, s57, 3')
    A('v_add_u32 v%d, s57, v%d' % (aPE, aL))
    A('s_lshl_b32 s57, s57, 9')
    A('v_add_u32 v%d, s57, v%d' % (aKX, aL))
    for i in range(3):
        A('v_xor_b32 v%d, s%d, v%d' % (1 + i, sX1 + i, aQ))
    HA = o('ha', 1)
    L = Trk(A, 'lgkmcnt')
    if 'al' in opt:
        A.lines.append('.p2alignl 6, 0xbf800000')
        for _ in range(o('al', 0)):
            A('s_nop 0')
    A('L_c_ld%s:' % tag)
    A(afl(0)); A.nop(o('da1', 0)); A(afl(1))
    if HA:
        A.nop(o('ia', 32)); A('buffer_load_dwordx4 v[%d:%d], v%d, %s, s%d offen offset:1024 sc1' % (AF + 28, AF + 31, aQ, S(WS), sRing))
    M('ld')
    A('s_waitcnt vmcnt(%d) lgkmcnt(0)' % (1 + HA))
    M('t')
    if SC or o('full', 1):
        CT = AF + 20
        def mx(r, t): return ['v_max3_u32 v%d, v%d, v%d, v%d' % (t, r, r + 1, r + 2), 'v_max_u32 v%d, v%d, v%d' % (t, t, r + 3), 'v_cmp_eq_u32 vcc, -1, v%d' % t]
        c0, c1 = mx(AF, CT), mx(AF + 4, CT)
        L.op(afw(0)); A(c0[0]); A(c0[1]); A(c0[2])
        A(Qb(0)); A(Qa(0))
        A('s_cbranch_vccnz L_c_x0%s' % tag)
        A('s_waitcnt vmcnt(%d)' % HA)
        L.op(afw(1)); A(c1[0]); A(c1[1]); A(c1[2])
        A(Kb(0)); A(Ka(0))
        A('s_cbranch_vccnz L_c_x1%s' % tag)
    else:
        L.op(afw(0)); A(cmp_(0))
        A(Qb(0)); A(Qa(0))
        A('s_cbranch_vccnz L_c_x0%s' % tag)
        A('s_waitcnt vmcnt(%d)' % HA)
        L.op(afw(1)); A(cmp_(1))
        A(Kb(0)); A(Ka(0))
        A('s_cbranch_vccnz L_c_x1%s' % tag)
    A('L_c_r1%s:' % tag)
    A(Qb(1))
    L.all()
    A('s_barrier')
    M('sbar')
    if tag == '_f' and 'probe' in opt:
        A('s_waitcnt lgkmcnt(0)')
        A('s_sub_u32 s57, s10, s8')
        A('s_cmp_eq_u32 s%d, 0' % sS)
        A('s_cselect_b32 s57, 0, s57')
        A('s_add_u32 s36, s36, s57')
        A('s_memtime s[8:9]')
    rd = {i: 'ds_read_b128 v[%d:%d], v%d offset:%d' % (AF + 4 * i, AF + 4 * i + 3, i // 2, ST + (i % 2) * 1024) for i in range(2, 8)}
    L.op(rd[2], 2)
    for m_, i in ((Qa(1), 3), (Kb(1), 4), (Ka(1), 5), (Va(0), 6), (Vb(0), 7)):
        A(m_)
        if i == 6 and HA:
            A('s_waitcnt vmcnt(0)')
        L.op(rd[i], i)
    SM, SX = AF, AF + 4
    KXR = U(0); QF = U(4); KF = QA; VXF = U(2)
    kk = ['ds_read_b128 v[%d:%d], v%d offset:%d' % (KXR + 4 * q, KXR + 4 * q + 3, aKX, KB + q * 1024) for q in range(4)]
    vx = ['ds_read_b128 v[%d:%d], v%d offset:%d' % (VXF + 4 * q, VXF + 4 * q + 3, aQ, VB + 1024 * q) for q in range(2)]
    vm = {2: 'buffer_store_dword v%d, v%d, %s, s%d offen sc1' % (vMem, aMRst, S(WS), sMH), 5: flag_load()}
    dk = dma_kv()
    qb, qa, kb_, ka_ = QA + 4, QA, KA + 4, KA
    OCt = [KA, KA + 4, QA, QA + 4, AF, AF + 4, AF + 8, AF + 12]
    WU = [U(4), U(3), AF + 16, AF + 24, U(0), U(1), U(2), VA, U(3), AF + 16]
    def wq(k): return [(x, 'w%d' % k) for x in wo_rd(WU[k], *WO_L[k])]
    g1 = {2: [vm[2]], 3: [z64(SM)], 4: [vm[5]], 5: [z64(SM + 2)]}
    if o('de', 5) >= 3:
        pf4 = 'buffer_load_dword v%d, v%d, s[84:87], s%d idxen sc1' % (vFlag, aL, sVoff)
        g1 = {2: [pf4], 3: [z64(SM)], 4: [vm[2]], 5: [z64(SM + 2)], 6: [vm[5]]}
        opt = dict(opt, ds='9999')
    if o('de', 5) == 1:
        g1 = {2: [dk[1]], 3: [dk[2], z64(SM)], 4: [dk[4]], 5: [dk[5], z64(SM + 2)], 6: [vm[2]], 7: [vm[5]]}
        opt = dict(opt, ds='9999')
    if o('de', 5) == 2:
        g1 = {2: [dk[1]], 3: [z64(SM)], 4: [dk[2]], 5: [z64(SM + 2)], 6: [vm[2]], 7: [vm[5]]}
        opt = dict(opt, ds='9901')
    for i in range(2, 8):
        if i % 2 == 0:
            L.wait(i + 1)
        A(Qb(i))
        for x in g1.get(i, []):
            A(x)
        if i >= 6:
            L.op(kk[i - 6])
    A(Qa(2)); L.op(kk[2])
    A(Qa(3)); A(hsum(qb)[0])
    A(Qa(4)); A(hsum(qb)[1])
    A(Qa(5)); A(cvt(qb, qb, qb + 1))
    A(Qa(6)); L.op(kk[3])
    A(Qa(7)); L.op(vx[0], 'vx')
    M('qdone')
    w1 = wq(1)
    A(Kb(2)); L.op(vx[1], 'vx')
    A(Kb(3)); A(hsum(qa)[0])
    A(Kb(4)); A(hsum(qa)[1])
    A(Kb(5)); A(cvt(qa, qa, qa + 1))
    A(Kb(6)); L.op('ds_write2_b32 v%d, v%d, v%d offset1:72' % (aQEw, qa, qb), 'qw')
    A(Kb(7))
    A(Ka(2))
    A(Ka(3)); A(hsum(kb_)[0])
    A(Ka(4))
    L.wait('qw')
    A('s_barrier')
    M('qbar')
    def qt(ks):
        for u in range(2):
            L.op('ds_read_b64_tr_b16 v[%d:%d], v%d offset:%d' % (QF + 4 * ks + 2 * u, QF + 4 * ks + 2 * u + 1, aQEr, QE + ks * 576 + u * 32), 'q%d' % ks)
    def kt(t):
        for u in range(2):
            L.op('ds_read_b64_tr_b16 v[%d:%d], v%d offset:%d' % (KF + 4 * t + 2 * u, KF + 4 * t + 2 * u + 1, aKEr, KE + t * 1152 + u * 32), 'k')
    X = [mm(SX, KXR + 4 * ks, QF + 4 * ks, ks == 0) for ks in range(4)]
    dsl = [int(c) for c in opt.get('ds', '0135')]
    dseq = [[dk[1]], [dk[2]], [dk[4]], [dk[5]]]
    def D_(k):
        for q, sl in enumerate(dsl):
            if sl == k:
                for x in dseq[q]:
                    A(x)
    A(Ka(5)); qt(0)
    A(Ka(6)); qt(1)
    A(Ka(7)); qt(2)
    A(Va(1)); qt(3)
    A(Vb(1)); D_(0); L.wait('q1'); A(hsum(kb_)[1])
    A(X[0]); A(hsum(ka_)[0]); A(hsum(ka_)[1])
    A(X[1]); L.wait('q3'); A(cvt(kb_ + 3, kb_, kb_ + 1)); A(cvt(kb_ + 2, ka_, ka_ + 1))
    A(X[2]); L.op('ds_write_b64 v%d, v[%d:%d]' % (aKEw, kb_ + 2, kb_ + 3))
    A(X[3]); D_(1)
    PX, PM = U(0), U(0) + 4
    LS, ONE, G, OA, OT = U(1), vSel, U(4), U(5), AF + 8
    va, vb = VA, VA + 4
    one = lambda q: 'v_mov_b64 v[%d:%d], s[%d:%d]' % (ONE + 2 * q, ONE + 2 * q + 1, sOne2, sOne2 + 1)
    A(Va(2)); D_(2)
    A(Vb(2)); A(ex(SX)); A(ex(SX + 1))
    A(Va(3)); A(ex(SX + 2)); A(ex(SX + 3))
    A(cvt(SX, SX, SX + 1)); A(cvt(SX + 1, SX + 2, SX + 3))
    A(Vb(3)); L.op('ds_write_b64 v%d, v[%d:%d] offset:%d' % (aPE, SX, SX + 1, PE))
    A(Va(4)); D_(3)
    A(Vb(4)); D_(4)
    A(Va(5))
    L.all()
    A('s_barrier')
    M('kbar')
    A(Vb(5)); kt(0)
    A(Va(6)); kt(1)
    A(Va(7)); L.op('ds_read_b128 v[%d:%d], v%d offset:%d' % (PX, PX + 3, aL, PE), 'px')
    w2, w3, w0 = wq(2), wq(3), wq(0)
    A(Vb(6)); D_(5); A(zero(PM + 1))
    A(Vb(7)); L.wait('k')
    A(sm(SM, KF, QF, 'v')); L.op(*w1[0])
    A(sm(SM, KF + 4, QF + 8, 'v')); L.op(*w1[1])
    M('xdone')
    def m16(d, a_):
        return 'v_mfma_f32_16x16x16_bf16 v[%d:%d], v[%d:%d], v[%d:%d], v[%d:%d]' % (d, d + 3, a_, a_ + 1, PM, PM + 1, d, d + 3)
    L.wait('px')
    A(mm(LS, ONE, PX, True)); D_(6); A(hsum(va)[0]); A(hsum(va)[1])
    A(mm(OT, VXF, PX, True)); A(hsum(SM)[0]); A(hsum(SM)[1])
    A(mm(OT + 4, VXF + 4, PX, True)); A(ex(SM)); A(ex(SM + 1))
    A(cvt(va, va, va + 1)); A(cvt(PM, SM, SM + 1)); A(zero(va + 1)); A(hsum(vb)[0])
    A(m16(LS, ONE)); A(hsum(vb)[1]); A(cvt(vb, vb, vb + 1))
    A(m16(OT, va)); A(zero(vb + 1)); L.op(*w0[0])
    A(m16(OT + 4, vb)); L.op(*w0[1])
    M('pv')
    A('v_rcp_f32 v%d, v%d' % (TR, LS + 2))
    A('v_subrev_u32 v%d, s%d, v%d' % (TR + 1, sLo, LS + 2))
    A('L_c_norm%s:' % tag)
    for i in range(4):
        A('v_mul_f32 v%d, v%d, v%d' % (OT + i, OT + i, TR))
    GO = LS
    A(cvt(GO, OT, OT + 1)); A(cvt(GO + 1, OT + 2, OT + 3))
    for i in (2, 3):
        A('v_pk_mul_f32 v[%d:%d], v[%d:%d], v[%d:%d] op_sel_hi:[1,0]' % (OT + 2 * i, OT + 2 * i + 1, OT + 2 * i, OT + 2 * i + 1, TR, TR + 1))
    A(cvt(GO + 2, OT + 4, OT + 5)); A(cvt(GO + 3, OT + 6, OT + 7))
    L.op('ds_write_b128 v%d, v[%d:%d] offset:%d' % (aOEw, GO, GO + 3, OE), 'ow')
    M('ow')
    A('v_cmp_lt_u32 vcc, s%d, v%d' % (sRng, TR + 1))
    ZP = va + 2
    A(z64(ZP))
    L.op(*w2[0]); L.op(*w2[1])
    A('s_cbranch_vccnz L_c_slow%s' % tag)
    zm = lambda d: 'v_mfma_f32_32x32x8_bf16 v[%d:%d], v[%d:%d], v[%d:%d], 0' % (d, d + 15, ZP, ZP + 1, ZP, ZP + 1)
    A(zm(QA)); D_(7)
    L.wait('ow')
    A('s_barrier')
    M('obar')
    L.op('ds_read_b128 v[%d:%d], v%d offset:%d' % (OA, OA + 3, aOEr, OE), 'o0')
    L.op('ds_read_b128 v[%d:%d], v%d offset:%d' % (OA + 4, OA + 7, aOEr, OE + 1024), 'o1')
    A(zm(AF)); D_(8)
    L.op(*w3[0]); L.op(*w3[1])
    zz = []
    wr = []
    for k in range(4, 10):
        wr += wq(k)
    def nw(n=1):
        for _ in range(n):
            L.op(*wr.pop(0))
    def wreg(j, t):
        return wo_res(j, t) if j < 3 else WU[WO_L.index((j, t))]
    def O(j, t):
        A(sm(OCt[j], OA + 4 * t, wreg(j, t), 'v'))
    def hs(j): return hsum(OCt[j])
    def cv(hf, hi):
        j = 4 * hf + 2 * hi
        return [cvt(G + 4 * hf + 2 * hi + b, OCt[j] + b, OCt[j + 1] + b) for b in range(2)]
    bfi = lambda hf: 'v_bfi_b32 v%d, 1, s%d, v%d' % (G + 4 * hf, sTag, G + 4 * hf)
    st0 = lambda hf: 'buffer_store_dwordx4 v[%d:%d], v%d, %s, %s offen %s' % (G + 4 * hf, G + 4 * hf + 3, aPBst, S(WS), 's%d' % s32k if hf else '0', SC)
    SLOW = tag == '_s'
    st = lambda hf: ''.join('v_bfi_b32 v%d, 1, s%d, v%d\n' % (G + 4 * hf + u, sTag, G + 4 * hf + u) for u in range(1, 4) if SLOW) + st0(hf)
    def tagx(d, r):
        A('v_xor_b32 v%d, s%d, v%d' % (d, sTag, r))
        if SLOW:
            for u in range(1, 4):
                A('v_xor_b32 v%d, s%d, v%d' % (AF + 31, sTag, r + u))
                A('v_or_b32 v%d, v%d, v%d' % (d, d, AF + 31))
    for x in zz[6:]:
        A(x)
    L.wait('o0')
    M('oa')
    O(3, 0)
    L.wait('o1')
    O(3, 1); nw()
    O(2, 0); nw()
    O(2, 1); nw(); A(hs(3)[0])
    O(0, 0); nw(); A(hs(3)[1])
    O(0, 1); nw(); A(hs(2)[0])
    O(1, 0); nw(); A(hs(2)[1])
    O(1, 1); nw(); A(cv(0, 1)[0])
    L.wait('w3')
    O(4, 0); nw(); A(cv(0, 1)[1]); A(hs(0)[0])
    O(4, 1); nw(2); A(hs(0)[1]); A(hs(1)[0])
    L.wait('w5')
    O(5, 0); nw(2); A(hs(1)[1]); A(cv(0, 0)[0])
    O(5, 1); A(cv(0, 0)[1]); A(bfi(0))
    L.wait('w7')
    O(6, 0); A(st(0)); A(hs(4)[0]); A(hs(4)[1])
    M('s1')
    O(6, 1); A(hs(5)[0]); A(hs(5)[1])
    L.wait('w9')
    O(7, 0); A(cv(1, 0)[0])
    O(7, 1)
    M('odone')
    for x in [cv(1, 0)[1], bfi(1)] + hs(6) + ['v_pk_add_f32 v[%d:%d], v[%d:%d], v[%d:%d]' % (OCt[7], OCt[7] + 1, OCt[7], OCt[7] + 1, OCt[7] + 2, OCt[7] + 3)] + cv(1, 1) + [st(1)]:
        A(x)
    M('s2')
    R, D = AF + 16, AF + 24
    R2 = AF + 8
    def pb_loads(R=R):
        A('buffer_load_dwordx4 v[%d:%d], v%d, %s, s%d offen sc1' % (R, R + 3, aL, S(WS), sPBld))
        A('buffer_load_dwordx4 v[%d:%d], v%d, %s, s%d offen offset:1024 sc1' % (R + 4, R + 7, aL, S(WS), sPBld))
    hk = [z64(QA + 2 * i) for i in range(12)]
    for r_ in (sRing, sRst):
        hk += ['s_add_u32 s%d, s%d, s%d' % (r_, r_, s8k), 's_cmp_eq_u32 s%d, s%d' % (r_, sMRend), 's_cselect_b32 s%d, %d, s%d' % (r_, MR, r_)]
    hk += ['s_add_u32 s%d, s%d, 1' % (sS, sS), 's_add_u32 s%d, s%d, s%d' % (sKoff, sKoff, s256k), 's_add_u32 s%d, s%d, s%d' % (sVoff, sVoff, s256k),
           's_add_u32 s%d, s%d, s%d' % (sMH, sMH, s8k), 'v_mov_b32 v%d, -1' % (D + 4)]
    advV = 's_add_u32 s%d, s%d, s%d' % (sVoff, sVoff, s256k)
    if o('de', 5) >= 3:
        hk.remove(advV)
    if o('de', 5) == 4:
        hk = [dk[1], dk[2], dk[4], dk[5], advV] + hk
    pr = pre_reads()
    P1 = o('p1', 12); P2 = o('p2', 12); P3 = o('p3', 12); HB = o('hb', 1)
    P0 = o('p0', 10)
    for x in hk + pr[:max(P0, 0)]:
        A(x)
    la, lb = A.label('L_c_h'), A.label('L_c_h')
    if P0 >= 0:
        A('s_cmp_ge_u32 s%d, 2' % sWAVE)
        A('s_cbranch_scc1 %s' % la)
        pb_loads()
        A('%s:' % la)
    for x in pr[max(P0, 0):P1]:
        A(x)
    if P0 >= 0:
        A('s_cbranch_scc0 %s' % lb)
    A.nop(o('db', 24))
    pb_loads()
    A('%s:' % lb)
    M('poll')
    for x in pr[P1:max(P1, P2)]:
        A(x)
    if HB:
        A.nop(o('ib', 20))
        pb_loads(R2)
    ND = 0
    if o('de', 5) == 3:
        ND = 4
        for x in (dk[1], dk[2], dk[4], dk[5], advV):
            A(x)
    for x in pr[max(P1, P2):P3]:
        A(x)
    A('s_waitcnt vmcnt(%d)' % (2 * HB + 1 + ND))
    A(mm(D, vSel, R, True))
    tagx(D + 5, R)
    A('s_waitcnt vmcnt(%d)' % (2 * HB + ND))
    A(mm(D, vSel, R + 4, False))
    M('pbd')
    tagx(D + 6, R + 4)
    A('L_c_pc%s:' % tag)
    A('v_or_b32 v%d, v%d, v%d' % (D + 5, D + 5, D + 6))
    A('v_and_b32 v%d, 1, v%d' % (D + 5, D + 5))
    A('v_cmp_ne_u32 vcc, 0, v%d' % (D + 5))
    for rot in (4, 8):
        A('v_add_f32_dpp v%d, v%d, v%d row_ror:%d row_mask:0xf bank_mask:0xf' % (D, D, D, rot))
        A('v_add_f32_dpp v%d, v%d, v%d row_ror:%d row_mask:0xf bank_mask:0xf' % (D + 1, D + 1, D + 1, rot))
        if rot == 4:
            A('s_cbranch_vccnz L_c_px%s' % tag)
    A(cvt(vMem, D, D + 1))
    A('v_min_u32 v%d, -2, v%d' % (vMem, vMem))
    A('buffer_store_dword v%d, v%d, %s, s%d offen %s' % (vMem, aMRst, S(WS), sRing, SC))
    M('e')
    if o('de', 5) == 6:
        lab = A.label('L_c_nd')
        A(advV)
        A('s_cmp_ge_u32 s%d, 2' % sWAVE)
        A('s_cbranch_scc1 %s' % lab)
        A('s_lshl_b32 s57, s%d, 24' % sWAVE)
        A('s_add_u32 s57, s57, s%d' % sKoff)
        A('s_sub_u32 s57, s57, s%d' % s256k)
        A('s_lshl_b32 m0, s%d, 13' % sWAVE)
        A('s_add_u32 m0, m0, %d' % KB)
        for hh in range(2):
            if hh:
                A('s_add_u32 m0, m0, s%d' % sX2)
                A('s_add_u32 s57, s57, s%d' % sX2)
            for q in range(4):
                A('buffer_load_dwordx4 v%d, %s, s57 offen offset:%d sc1 lds' % (aL, S(WS), 1024 * q))
        A('%s:' % lab)
    if o('de', 5) == 5:
        for x in (dk[1], dk[2], dk[4], dk[5], advV):
            A(x)
    A('buffer_store_dword v%d, v%d, %s, s%d offen %s' % (D + 4, aMRst, S(WS), sRst, SC))
    A('s_xor_b32 s%d, s%d, 1' % (sTag, sTag))
    A('s_mov_b32 s%d, 0' % sH)
    A('s_cmp_eq_u32 s%d, 63' % sS)
    A('s_cbranch_scc1 L_c_done')
    ensure_kv(A)
    for x in pr[P3:]:
        A(x)
    A.nop(o('da', 20))
    if o('da2', 32):
        A('s_cmp_ge_u32 s%d, 2' % sWAVE)
        A('s_cbranch_scc1 L_c_ld%s' % tag)
        A.nop(o('da2', 32))
    A('s_branch L_c_ld%s' % tag)
    if o('tramp', 1):
        A('L_c_slow%s:' % tag)
        A('s_branch L_c_slow2%s' % tag)
    def cnt(i):
        if opt.get('stamp') == '2':
            A('s_add_u32 s%d, s%d, 62' % (chain3_ACC(i), chain3_ACC(i)))
    A('L_c_px%s:' % tag)
    spin_check(A); cnt(12)
    def look(Rx, y):
        A('s_waitcnt vmcnt(%d)' % y)
        A(mm(D, vSel, Rx, True))
        tagx(D + 5, Rx)
        A(mm(D, vSel, Rx + 4, False))
        tagx(D + 6, Rx + 4)
        A('s_branch L_c_pc%s' % tag)
    if HB:
        A('s_xor_b32 s%d, s%d, 1' % (sH, sH))
        A('s_bitcmp1_b32 s%d, 0' % sH)
        A('s_cbranch_scc0 L_c_py%s' % tag)
        pb_loads(R); look(R2, 2)
        A('L_c_py%s:' % tag)
        pb_loads(R2); look(R, 2)
    else:
        pb_loads(R2); look(R2, 0)
    A('L_c_x0%s:' % tag)
    spin_check(A); cnt(13)
    A('s_waitcnt vmcnt(0) lgkmcnt(0)')
    for i in range(4):
        A(z64(QA + 2 * i))
    A('s_branch L_c_ld%s' % tag)
    A('L_c_x1%s:' % tag)
    spin_check(A); cnt(14)
    def ldh(r): A('buffer_load_dwordx4 v[%d:%d], v%d, %s, s%d offen offset:1024 sc1' % (r, r + 3, aQ, S(WS), sRing))
    def look1(r, y):
        A('s_waitcnt vmcnt(%d) lgkmcnt(0)' % y)
        A('v_max3_u32 v%d, v%d, v%d, v%d' % (AF + 20, r, r + 1, r + 2))
        A('v_max_u32 v%d, v%d, v%d' % (AF + 20, AF + 20, r + 3))
        A('v_cmp_eq_u32 vcc, -1, v%d' % (AF + 20))
        A('v_mov_b64 v[%d:%d], v[%d:%d]' % (AF + 4, AF + 5, r, r + 1))
        A('v_mov_b64 v[%d:%d], v[%d:%d]' % (AF + 6, AF + 7, r + 2, r + 3))
        A(afw(1))
        A('s_cbranch_vccnz L_c_x1%s' % tag)
        A('s_branch L_c_r1%s' % tag)
    if HA:
        A('s_xor_b32 s%d, s%d, 2' % (sH, sH))
        A('s_bitcmp1_b32 s%d, 1' % sH)
        A('s_cbranch_scc0 L_c_y1%s' % tag)
        ldh(AF + 24); look1(AF + 28, 1)
        A('L_c_y1%s:' % tag)
        ldh(AF + 28); look1(AF + 24, 1)
    else:
        ldh(AF + 28); look1(AF + 28, 0)
    A(('L_c_slow2%s:' if o('tramp', 1) else 'L_c_slow%s:') % tag)
    T = OT
    SY = [SX, LS]
    A('s_sub_u32 s57, s%d, s%d' % (sKoff, s256k))
    A('s_waitcnt lgkmcnt(0)')
    qt(0); qt(1)
    A('s_waitcnt lgkmcnt(0)')
    for tile in range(2):
        for kp in range(2):
            for ks in range(2 * kp, 2 * kp + 2):
                A('buffer_load_dwordx4 v[%d:%d], v%d, %s, s57 offen offset:%d sc1' % (T + 4 * (ks % 2), T + 4 * (ks % 2) + 3, aL, S(WS), ks * 1024))
            A('s_waitcnt vmcnt(0)')
            for ks in range(2 * kp, 2 * kp + 2):
                A(mm(SY[tile], T + 4 * (ks % 2), QF + 4 * ks, ks == 0))
            A('s_nop 7')
        A('s_add_u32 s57, s57, 4096')
    A(z64(SM)); A(z64(SM + 2))
    A(sm(SM, KF, QF, 'v')); A(sm(SM, KF + 4, QF + 8, 'v'))
    for x in hsum(SM):
        A(x)
    al = [SM, SM + 1] + [SY[0] + i for i in range(4)] + [SY[1] + i for i in range(4)]
    A('v_max_f32 v%d, v%d, v%d' % (TR, al[0], al[1]))
    for i in range(2, 10, 2):
        A('v_max3_f32 v%d, v%d, v%d, v%d' % (TR, TR, al[i], al[i + 1]))
    for sw in ('16', '32'):
        A('v_mov_b32 v%d, v%d' % (TR + 1, TR))
        A('v_permlane%s_swap_b32 v%d, v%d' % (sw, TR, TR + 1))
        A('v_max_f32 v%d, v%d, v%d' % (TR, TR, TR + 1))
    for r_ in al:
        A('v_sub_f32 v%d, v%d, v%d' % (r_, r_, TR))
        A(ex(r_))
    for i in range(4):
        A(cvt(PX + i, al[2 + 2 * i], al[3 + 2 * i]))
    A(cvt(PM, SM, SM + 1))
    A(mm(LS, ONE, PX, True)); A(mm(OT, VXF, PX, True)); A(mm(OT + 4, VXF + 4, PX, True))
    A(m16(LS, ONE)); A(m16(OT, va)); A(m16(OT + 4, vb))
    A(w0[0][0]); A(w0[1][0])
    A('v_rcp_f32 v%d, v%d' % (TR, LS + 2))
    A(zero(TR + 1))
    A('s_nop 7')
    A('s_branch L_c_norm%s' % tag)

def chain3_ACC(i):
    import chain
    return chain.ACCS[i]

def chain(A, opt):
    n0 = len(A.lines)
    setup(A, opt, load_weights)
    A('s_cmp_lg_u32 s57, 0')
    A('s_cbranch_scc1 L_c_start_s')
    loop(A, opt, opt.get('fsc', ''), '_f')
    loop(A, opt, 'sc1', '_s')
    A('L_c_done:')
    A('buffer_store_dword v%d, v%d, %s, s%d offen sc1' % (vMem, aMRst, S(WS), sMH))
    if opt.get('clk'):
        A('s_memtime s[10:11]')
        A('s_waitcnt lgkmcnt(0)')
        A('s_sub_u32 s36, s10, s8')
    if 'rt' in opt:
        A('s_lshl_b32 s60, s%d, 2' % sIDX)
        A('s_add_u32 s60, s60, s%d' % sWAVE)
        A('s_lshl_b32 s60, s60, 9')
        A('s_add_u32 s60, s60, %d' % (TS + 0x40000))
        A('v_lshrrev_b32 v1, 2, v%d' % aL)
        A('buffer_store_dword v%d, v1, %s, s60 offen' % (vInc, S(WS)))
        A('buffer_store_dword v%d, v1, %s, s60 offen offset:256' % (aPF, S(WS)))
    rt_stamp(A, opt, 3)
    ph_out(A, opt, 15)
    A('s_endpgm')
    if opt.get('probe', '').startswith('i'):
        N = int(opt['probe'][1:])
        k = A.lines.index('  s_memtime s[8:9]') + 1
        n = 0; lst = []
        while not A.lines[k].startswith('L_c_px_f'):
            l = A.lines[k]; k += 1
            if l.endswith(':'):
                continue
            n += 1; lst.append('%d %s' % (n, l.strip()))
            if n == N:
                A.lines.insert(k, '  s_memtime s[10:11]'); k += 1
        open('probe_listing.txt', 'w').write('\n'.join(lst) + '\n')
    if opt.get('lsc'):
        k0 = A.lines.index('L_c_ld_f:'); k1 = A.lines.index('L_c_start_s:')
        for i in range(k0, k1):
            l = A.lines[i]
            if 'buffer_load_dwordx4' in l and 'lds' not in l and 's57' not in l:
                A.lines[i] = l.replace('sc1', opt['lsc'].replace('_', ' '))
    ex = opt.get('exp', '')
    for i in range(n0, len(A.lines)):
        l = A.lines[i]
        if 'm' in ex and ('buffer_store_dword v%d, v%d, %s, s%d offen sc1' % (vMem, aMRst, S(WS), sMH)) in l:
            A.lines[i] = '  s_nop 0'
        if 'p' in ex and ('v_add_u32 v%d, v%d, v%d' % (aPF, vInc, aPF)) in l:
            A.lines[i] = '  s_nop 0'
        if 'p' in ex and ('s%d' % s256k) in l and 's_add_u32' in l:
            A.lines[i] = '  s_nop 0'
        if 'd' in ex and 'sc1 lds' in l:
            A.lines[i] = '  s_nop 0'
        if 'f' in ex and flag_load() in l and 'smfmac' in A.lines[i - 1]:
            A.lines[i] = '  v_mov_b32 v%d, 99' % vFlag
        if 'b' in ex and 's_cbranch_vccnz L_c_slow' in l:
            A.lines[i] = '  s_nop 0'; continue
        if 'c' in ex and ('s_cbranch_vccnz L_c_x' in l or 's_cbranch_vccnz L_c_px' in l):
            A.lines[i] = '  s_nop 0'; continue
        if opt.get('free') and ('s_cbranch_vccnz L_c_x' in l or 's_cbranch_vccnz L_c_px' in l or 's_cbranch_vccnz L_c_slow' in l):
            A.lines[i] = l.replace('s_cbranch_vccnz', 's_cbranch_cdbgsys' if opt['free'] == '1' else 's_cbranch_execz')
```

```python
from common import *
from chain import wo_load, wo_fix, WOR, CA, ph, ph_init, ph_acc, ph_out

ST, QE, KE, OE, KB, VB, WSB = 0, 8192, 10496, 12800, 16384, 24576, 32768
vIdx, aPBst, aMRst, aQ, aL, aWS, aQEw, aQEr, aKEw, aKEr, aOEw, aOEr, vMem, vFlag, aPF, vInc = range(4, 20)
AF = 20
SB = 52
QA, KA, VA = 100, 108, 116
vSel = 124
sS, sRing, sRst, sTag, sG1, sK1, sC, sPBld, sCA, sM0K, sM0V = 70, 71, 72, 73, 74, 75, 77, 76, 79, 69, 59
sKoff, sVoff, sMH, sOne, s32k, sX1, sX2, sX3, s8k, s256k, sMRend = 60, 61, 62, 63, 64, 65, 66, 67, 68, 78, 58
mOW = 100
def sm(d, a_, b, kind):
    return 'v_smfmac_f32_16x16x64_bf16 v[%d:%d], v[%d:%d], %s[%d:%d], v%d' % (d, d + 3, a_, a_ + 3, kind, b, b + 7, vIdx)
def mm(d, a_, b, first):
    return 'v_mfma_f32_16x16x32_bf16 v[%d:%d], v[%d:%d], v[%d:%d], %s' % (d, d + 3, a_, a_ + 3, b, b + 3, '0' if first else 'v[%d:%d]' % (d, d + 3))
def z64(r):
    return 'v_mov_b64 v[%d:%d], 0' % (r, r + 1)

def weave(A, main, fill, per=1):
    fill = list(fill)
    for i, m in enumerate(main):
        A(m)
        k = per[i] if isinstance(per, (list, tuple)) else per
        for _ in range(k):
            if fill:
                A(fill.pop(0))
    for f in fill:
        A(f)

def arrive(A):
    A('s_barrier')
    A('s_cmp_lg_u32 s%d, 0' % sWAVE)
    A('s_cbranch_scc1 L_c_noarr')
    A('s_lshl_b32 s61, s%d, 16' % sFOR)
    A('s_add_u32 s61, s61, 1')
    A('v_mov_b32 v108, s61')
    A('v_mov_b32 v109, %d' % D_ARR)
    A('s_mov_b64 exec, 1')
    A('buffer_atomic_add v108, v109, %s, 0 offen' % S(DBG))
    A('s_mov_b64 exec, -1')
    A('L_c_noarr:')

def setup(A, opt, loader):
    A('L_chain:')
    A('s_setprio 3')
    if opt.get('cw', '0') == '1':
        A('s_getpc_b64 s[60:61]')
        A('v_lshlrev_b32 v1, 7, v0')
        A('s_lshl_b32 s62, s%d, 13' % sWAVE)
        A('v_add_u32 v1, s62, v1')
        A('global_load_dword v251, v1, s[60:61]')
    if opt.get('tlb', '0') == '1':
        A('v_lshlrev_b32 v1, 17, v0')
        A('s_lshl_b32 s62, s%d, 23' % sWAVE)
        A('s_add_u32 s62, s62, %d' % KX)
        A('buffer_load_dword v250, v1, %s, s62 offen sc1' % S(WS))
    ld = RowLoader(A, 100, 102, WSB, 64)
    for c in range(int(opt.get('depth', 8))):
        ld.dma(WQ, c)
    ld.init_tr()
    A('v_and_b32 v1, 15, v0')
    A('v_lshrrev_b32 v2, 4, v0')
    A('v_bfe_u32 v3, v0, 1, 1')
    A('v_and_b32 v28, 3, v0')
    A('v_and_b32 v29, 1, v0')
    A('v_and_b32 v30, 1, v2')
    A('v_lshrrev_b32 v31, 1, v2')
    A('v_lshrrev_b32 v26, 2, v1')
    A('v_lshlrev_b32 v%d, 4, v0' % aL)
    A('s_lshl_b32 s60, s%d, 11' % sWAVE)
    A('v_add_u32 v%d, s60, v%d' % (aQ, aL))
    A('s_lshl_b32 s%d, s60, 1' % sM0K)
    A('s_add_u32 s%d, s%d, %d' % (sM0K, sM0K, KB))
    A('v_add_u32 v%d, s64, v%d' % (aWS, aL))
    A('v_mov_b32 v%d, 0x4444' % vIdx)
    A('v_mov_b32 v27, 0xeeee')
    A('v_cmp_eq_u32 vcc, 1, v3')
    A('v_cndmask_b32 v%d, v%d, v27, vcc' % (vIdx, vIdx))
    A('v_mov_b32 v27, 0')
    A('v_mov_b32 v32, 0x3f80')
    A('v_cmp_eq_u32 vcc, 0, v28')
    A('v_cndmask_b32 v27, v27, v32, vcc')
    A('v_mov_b32 v32, 0x3f800000')
    A('v_cmp_eq_u32 vcc, 1, v28')
    A('v_cndmask_b32 v27, v27, v32, vcc')
    for u in range(4):
        A('v_cmp_eq_u32 vcc, %d, v26' % u)
        A('v_cndmask_b32 v%d, 0, v27, vcc' % (vSel + u))
    A('v_mov_b32 v32, 0x3f803f80')
    A('v_cmp_eq_u32 vcc, 2, v28')
    for u in range(4):
        A('v_cndmask_b32 v%d, v%d, v32, vcc' % (vSel + u, vSel + u))
    A('v_lshl_add_u32 v27, v26, 2, v2')
    A('v_lshlrev_b32 v27, 11, v27')
    A('v_lshl_add_u32 v27, v28, 4, v27')
    A('s_lshl_b32 s61, s%d, 16' % sWAVE)
    A('s_lshl_b32 s62, s%d, 6' % sIDX)
    A('s_add_u32 s61, s61, s62')
    A('s_add_u32 s61, s61, %d' % PB)
    A('v_add_u32 v%d, s61, v27' % aPBst)
    A('s_and_b32 s61, s%d, 1' % sWAVE)
    A('s_lshl_b32 s61, s61, 5')
    A('s_add_u32 s61, s61, s%d' % sIDX)
    A('s_lshr_b32 s62, s61, 4')
    A('s_lshl_b32 s62, s62, 5')
    A('s_and_b32 s61, s61, 15')
    A('s_add_u32 s61, s61, s62')
    A('s_lshr_b32 s62, s%d, 1' % sWAVE)
    A('s_lshl_b32 s62, s62, 4')
    A('s_add_u32 s%d, s61, s62' % sC)
    A('s_lshl_b32 s61, s%d, 11' % sC)
    A('s_add_u32 s%d, s61, %d' % (sPBld, PB))
    A('v_lshlrev_b32 v27, 4, v2')
    A('v_lshl_add_u32 v27, v28, 2, v27')
    A('s_lshl_b32 s61, s%d, 6' % sC)
    A('v_add_u32 v%d, s61, v27' % aMRst)
    A('v_mov_b32 v33, 0x80000000')
    A('v_cmp_lt_u32 vcc, 3, v1')
    A('v_cndmask_b32 v%d, v%d, v33, vcc' % (aMRst, aMRst))
    A('v_lshlrev_b32 v27, 4, v1')
    A('v_lshl_add_u32 v27, v2, 2, v27')
    A('s_mul_i32 s61, s%d, 576' % sWAVE)
    A('s_add_u32 s62, s61, %d' % QE)
    A('v_add_u32 v%d, s62, v27' % aQEw)
    A('v_lshrrev_b32 v27, 1, v26')
    A('v_mul_u32_u24 v27, 288, v27')
    A('v_lshl_add_u32 v27, v2, 6, v27')
    A('v_and_b32 v32, 1, v26')
    A('v_lshl_add_u32 v27, v32, 4, v27')
    A('v_lshl_add_u32 v%d, v3, 3, v27' % aQEr)
    A('v_mul_u32_u24 v27, 288, v30')
    A('v_lshl_add_u32 v27, v31, 7, v27')
    A('v_lshl_add_u32 v27, v1, 3, v27')
    A('s_add_u32 s62, s61, %d' % KE)
    A('v_add_u32 v%d, s62, v27' % aKEw)
    A('v_mul_u32_u24 v27, 576, v31')
    A('v_mul_u32_u24 v32, 288, v29')
    A('v_add_u32 v27, v27, v32')
    A('v_lshl_add_u32 v27, v3, 7, v27')
    A('v_lshl_add_u32 v27, v30, 6, v27')
    A('v_lshl_add_u32 v%d, v26, 3, v27' % aKEr)
    A('v_lshrrev_b32 v27, 3, v1')
    A('v_lshl_add_u32 v27, v27, 2, v28')
    A('v_lshlrev_b32 v27, 4, v27')
    A('v_lshl_add_u32 v27, v2, 7, v27')
    A('s_lshl_b32 s61, s%d, 9' % sWAVE)
    A('v_add_u32 v%d, s61, v27' % aOEw)
    A('v_lshl_add_u32 v27, v26, 1, v29')
    A('v_lshlrev_b32 v27, 4, v27')
    A('v_lshl_add_u32 v27, v2, 7, v27')
    A('v_lshl_add_u32 v%d, v3, 9, v27' % aOEr)
    A('v_and_b32 v27, 31, v0')
    A('v_lshlrev_b32 v27, 6, v27')
    A('v_add_u32 v27, s60, v27')
    A('v_add_u32 v%d, 262144, v27' % aPF)
    A('v_add_u32 v27, %d, v27' % (VX - KX + 262144))
    A('v_cmp_lt_u32 vcc, 31, v0')
    A('v_cndmask_b32 v%d, v%d, v27, vcc' % (aPF, aPF))
    A('s_mov_b32 s%d, 0x0f0f0f0f' % mOW); A('s_mov_b32 s%d, 0x0f0f0f0f' % (mOW + 1))
    A('s_and_b32 s61, s%d, 3' % sC)
    A('s_lshl_b32 s61, s61, 11')
    A('s_lshr_b32 s62, s%d, 2' % sC)
    A('s_lshl_b32 s62, s62, 5')
    A('s_add_u32 s61, s61, s62')
    A('v_lshlrev_b32 v27, 10, v30')
    A('v_lshl_add_u32 v27, v28, 3, v27')
    A('v_lshl_add_u32 v27, v31, 2, v27')
    A('v_add_u32 v27, s61, v27')
    A('buffer_load_dword v%d, v27, %s, 0 offen' % (vMem, S(MEM0)))
    A('v_lshlrev_b32 v27, 14, v30')
    A('v_lshl_add_u32 v27, v31, 12, v27')
    A('v_lshl_add_u32 v27, v1, 3, v27')
    A('s_lshl_b32 s61, s%d, 17' % sIDX)
    A('s_lshl_b32 s62, s%d, 8' % sWAVE)
    A('s_add_u32 s61, s61, s62')
    A('v_add_u32 v107, s61, v27')
    A('v_lshrrev_b32 v27, 2, v0')
    A('v_lshlrev_b32 v27, 13, v27')
    A('v_lshl_add_u32 v27, v28, 4, v27')
    A('s_lshl_b32 s61, s%d, 6' % sC)
    A('v_add_u32 v106, s61, v27')
    A('v_add_u32 v0, 0x10000, v%d' % aWS)
    for i in range(4):
        A('v_mov_b32 v%d, 0' % (108 + i))
        A('v_mov_b32 v%d, -1' % (112 + i))
    A('buffer_store_dwordx4 v[108:111], v%d, %s, 0 offen sc1' % (aPBst, S(WS)))
    A('s_mov_b32 s61, 32768')
    A('buffer_store_dwordx4 v[108:111], v%d, %s, s61 offen sc1' % (aPBst, S(WS)))
    for i in range(4):
        A('s_mov_b32 s61, %d' % (MH + i * 16 * 8192))
        A('buffer_store_dwordx4 v[112:115], v106, %s, s61 offen sc1' % S(WS))
    A('s_mov_b64 exec, 0xfff')
    A('s_mov_b32 s61, %d' % MR)
    A('buffer_store_dwordx4 v[112:115], v106, %s, s61 offen sc1' % S(WS))
    A('s_mov_b64 exec, -1')
    loader(A, opt, ld, 8)
    rt_stamp(A, opt, 1, 40)
    if opt.get('loadonly'):
        A('s_endpgm')
    A('v_readfirstlane_b32 s57, v3')
    A('s_cmp_lg_u32 s57, 0')
    A('s_cbranch_scc1 L_c_f1')
    wait_dbg_word(A, D_CLR, 1, 1, 2)
    A('v_mbcnt_lo_u32_b32 v1, -1, 0')
    A('v_and_b32 v1, 3, v1')
    A('v_lshlrev_b32 v1, 12, v1')
    A('s_lshl_b32 s%d, s%d, 7' % (sG1, sIDX))
    A('L_c_f0:')
    spin_check(A)
    A('buffer_load_dword v2, v1, %s, s%d offen sc1' % (S(WS), sG1))
    A('buffer_load_dword v%d, off, %s, 0 offset:%d sc1' % (vFlag, S(DBG), D_ARR))
    A('s_waitcnt vmcnt(0)')
    A('L_c_f1:')
    A('v_cmp_eq_u32 vcc, 0, v2')
    A('v_readfirstlane_b32 s57, v%d' % vFlag)
    A('s_cbranch_vccnz L_c_f0')
    A('s_and_b32 s58, s57, 0xffff')
    A('s_cmp_lt_u32 s58, 32')
    A('s_cbranch_scc1 L_c_f0')
    A('s_lshr_b32 s57, s57, 16')

def flag_load():
    return 'buffer_load_dword v%d, off, %s, s%d sc1' % (vFlag, S(WS), sG1)

def ensure_kv(A):
    ok = A.label('L_kv_ok'); lp = A.label('L_kv_lp')
    A('%s:' % lp)
    A('v_readfirstlane_b32 s57, v%d' % vFlag)
    A('s_cmp_gt_u32 s57, s%d' % sK1)
    A('s_cbranch_scc1 %s' % ok)
    spin_check(A)
    A(flag_load())
    A('s_waitcnt vmcnt(0)')
    A('s_branch %s' % lp)
    A('%s:' % ok)
    A('v_mov_b32 v%d, 0' % vFlag)
    A('s_add_u32 s%d, s%d, s%d' % (sG1, sG1, sX2))
    A('s_bitcmp1_b32 s%d, 14' % sG1)
    A('s_addc_u32 s%d, s%d, 0' % (sK1, sK1))
    A('s_bitset0_b32 s%d, 14' % sG1)
    A('s_min_u32 s%d, s%d, 15' % (sK1, sK1))

def dma_kv():
    d = ['buffer_load_dwordx4 v%d, %s, s%d offen offset:%d sc1 lds' % (aL, S(WS), sVoff, 1024 * q) for q in range(4)]
    return ['s_mov_b32 m0, s%d' % sM0K, d[0], d[1], '', d[2], d[3]]

def sb_reads(i):
    b = SB + 16 * (i % 3)
    return ['ds_read_b128 v[%d:%d], v%d offset:%d' % (b + 8 * m + 4 * hb, b + 8 * m + 4 * hb + 3, aWS, (2 * i + hb) * 2048 + m * 1024) for m in range(2) for hb in range(2)]

def loop(A, opt, SC, tag):
    DB = int(opt.get('db', 0)); DA = int(opt.get('da', 0)); DB2 = int(opt.get('db2', 0))
    A('L_c_start%s:' % tag)
    A('s_mov_b32 s%d, 0' % sS)
    A('s_mov_b32 s%d, %d' % (sRing, MR))
    A('s_mov_b32 s%d, %d' % (sRst, MR + 2 * 8192))
    A('s_mov_b32 s%d, %d' % (sMRend, MR + 3 * 8192))
    A('s_mov_b32 s%d, 1' % sTag)
    A('s_mov_b32 s%d, 32' % sG1)
    A('s_mov_b32 s%d, 0' % sK1)
    A('s_mov_b32 s%d, 0x%x' % (sCA, f2u(CA)))
    A('s_lshl_b32 s%d, s%d, 13' % (sKoff, sIDX))
    A('s_add_u32 s%d, s%d, %d' % (sVoff, sKoff, VX))
    A('s_add_u32 s%d, s%d, %d' % (sKoff, sKoff, KX))
    A('s_mov_b32 s%d, %d' % (sMH, MH))
    A('s_mov_b32 s%d, 0x3f803f80' % sOne)
    A('s_mov_b32 s%d, 32768' % s32k)
    A('s_mov_b32 s%d, 2048' % sX1); A('s_mov_b32 s%d, 4096' % sX2); A('s_mov_b32 s%d, 6144' % sX3)
    A('s_mov_b32 s%d, 8192' % s8k)
    A('s_mov_b32 s%d, 262144' % s256k)
    A('buffer_store_dword v%d, v%d, %s, s%d offen %s' % (vMem, aMRst, S(WS), sRing, SC))
    A('v_mov_b32 v%d, 0' % vFlag)
    ensure_kv(A)
    for x in dma_kv():
        A(x)
    A('s_add_u32 s%d, s%d, s%d' % (sKoff, sKoff, s256k))
    A('s_add_u32 s%d, s%d, s%d' % (sVoff, sVoff, s256k))
    ensure_kv(A)
    for i in range(3):
        for x in sb_reads(i):
            A(x)
    for i in range(12):
        A(z64(QA + 2 * i))
    rt_stamp(A, opt, 2)
    ph_init(A, opt)
    def Q(i, tile): return sm(QA + 4 * tile, AF + 4 * i, (8 * i) if tile == 0 else SB + 16 * (i % 3), 'a' if tile == 0 else 'v')
    def K(i, tile): return sm(KA + 4 * tile, AF + 4 * i, (64 + 8 * i) if tile == 0 else SB + 16 * (i % 3) + 8, 'a' if tile == 0 else 'v')
    V = [sm(VA + 4 * tile, AF + 4 * i, 128 + tile * 64 + 8 * i, 'a') for i in range(8) for tile in range(2)]
    def afl(i):
        return 'buffer_load_dwordx4 v[%d:%d], v%d, %s, s%d offen offset:%d sc1' % (AF + 4 * i, AF + 4 * i + 3, aQ, S(WS), sRing, i * 1024)
    def afw(i):
        return 'ds_write_b128 v%d, v[%d:%d] offset:%d' % (aQ, AF + 4 * i, AF + 4 * i + 3, ST + i * 1024)
    A('L_c_loop%s:' % tag)
    ph(A, opt, 0)
    A.nop(DA)
    A(afl(0)); A(afl(1))
    ensure_kv(A)
    A('v_xor_b32 v1, s%d, v%d' % (sX1, aQ))
    A('v_xor_b32 v2, s%d, v%d' % (sX2, aQ))
    A('v_xor_b32 v3, s%d, v%d' % (sX3, aQ))
    A('L_c_r0%s:' % tag)
    A('s_waitcnt vmcnt(1) lgkmcnt(0)')
    ph(A, opt, 1)
    A('v_cmp_eq_u32 vcc, -1, v%d' % AF)
    A(Q(0, 0))
    A(afw(0))
    A(Q(0, 1))
    A('s_cbranch_vccnz L_c_x0%s' % tag)
    A(K(0, 0))
    A('L_c_r1%s:' % tag)
    A('s_waitcnt vmcnt(0)')
    A('v_cmp_eq_u32 vcc, -1, v%d' % (AF + 4))
    A(afw(1))
    A('s_nop 2')
    A('s_cbranch_vccnz L_c_x1%s' % tag)
    A(K(0, 1))
    A('buffer_store_dword v%d, v%d, %s, s%d offen sc1' % (vMem, aMRst, S(WS), sMH))
    A(Q(1, 0))
    A('buffer_load_dword v%d, v%d, %s, 0 offen sc1' % (vFlag, aPF, S(WS)))
    A(Q(1, 1))
    A(K(1, 0))
    A('s_waitcnt lgkmcnt(0)')
    A('s_barrier')
    rd = ['ds_read_b128 v[%d:%d], v%d offset:%d' % (AF + 4 * i, AF + 4 * i + 3, i // 2, ST + (i % 2) * 1024) for i in range(2, 8)]
    A(rd[0]); A(rd[1])
    weave(A, [K(1, 1)] + V[0:4], rd[2:] + sb_reads(3) + sb_reads(4)[:2], per=2)
    ph(A, opt, 2)
    SM, SX = AF, AF + 4
    KXF = [SB + 32, SB]
    QF = SB + 16
    def kx(tile):
        kb = KXF[tile]
        return ['ds_read_b128 v[%d:%d], v%d offset:%d' % (kb + 4 * ks, kb + 4 * ks + 3, aL, KB + tile * 4096 + ks * 1024) for ks in range(4)]
    A('s_waitcnt lgkmcnt(11)')
    weave(A, [Q(2, 0), Q(2, 1), K(2, 0), K(2, 1)], sb_reads(4)[2:] + [z64(SM), z64(SM + 2)], per=1)
    A('s_waitcnt lgkmcnt(4)')
    weave(A, [Q(3, 0), Q(3, 1), K(3, 0), K(3, 1)], sb_reads(5), per=1)
    A('s_waitcnt lgkmcnt(4)')
    weave(A, [Q(4, 0), Q(4, 1), K(4, 0), K(4, 1)], sb_reads(6), per=1)
    A('s_waitcnt lgkmcnt(4)')
    weave(A, [Q(5, 0), Q(5, 1), K(5, 0), K(5, 1)], sb_reads(7), per=1)
    A('s_waitcnt lgkmcnt(4)')
    weave(A, [Q(6, 0), Q(6, 1), Q(7, 0)], kx(0)[:3], per=1)
    A('s_waitcnt lgkmcnt(3)')
    A(Q(7, 1)); A(kx(0)[3])
    def padd(acc):
        r = []
        for tile in range(2):
            d = acc + 4 * tile
            r += ['v_add_f32 v%d, v%d, v%d' % (d, d, d + 2), 'v_add_f32 v%d, v%d, v%d' % (d + 1, d + 1, d + 3)]
        return r
    qp = padd(QA) + ['v_cvt_pk_bf16_f32 v%d, v%d, v%d' % (QA, QA, QA + 1), 'v_cvt_pk_bf16_f32 v%d, v%d, v%d' % (QA + 4, QA + 4, QA + 5),
                     'ds_write2_b32 v%d, v%d, v%d offset1:72' % (aQEw, QA, QA + 4)]
    kp = padd(KA) + ['v_cvt_pk_bf16_f32 v%d, v%d, v%d' % (KA + 2, KA, KA + 1), 'v_cvt_pk_bf16_f32 v%d, v%d, v%d' % (KA + 3, KA + 4, KA + 5),
                     'ds_write_b64 v%d, v[%d:%d]' % (aKEw, KA + 2, KA + 3)]
    k1 = kx(1)
    A(K(6, 1)); A(K(6, 0)); A(k1[0]); A(qp[0])
    A(K(7, 0)); A(k1[1]); A(qp[1])
    A(K(7, 1)); A(k1[2]); A(qp[2])
    ph(A, opt, 3)
    A(V[4]); A(k1[3])
    for x in qp[3:]:
        A(x)
    for x in kp:
        A(x)
    for x in V[5:8]:
        A(x)
    A('s_waitcnt lgkmcnt(0)')
    A('s_barrier')
    ph(A, opt, 4)
    KF = QA
    def qtr(ks): return ['ds_read_b64_tr_b16 v[%d:%d], v%d offset:%d' % (QF + 4 * ks + 2 * u, QF + 4 * ks + 2 * u + 1, aQEr, QE + ks * 576 + u * 32) for u in range(2)]
    def ktr(t): return ['ds_read_b64_tr_b16 v[%d:%d], v%d offset:%d' % (KF + 4 * t + 2 * u, KF + 4 * t + 2 * u + 1, aKEr, KE + t * 1152 + u * 32) for u in range(2)]
    trs = qtr(0) + qtr(1) + qtr(2) + qtr(3) + ktr(0) + ktr(1)
    for x in trs[:4]:
        A(x)
    weave(A, V[8:12], trs[4:], per=2)
    OCt = [AF + 12, AF + 16, AF + 20, AF + 24, AF + 28, KA, KA + 4, QA]
    VXF = SB + 32
    A('s_waitcnt lgkmcnt(10)')
    A(mm(SX, KXF[0], QF, True)); A(z64(OCt[5])); A(z64(OCt[5] + 2))
    A('s_waitcnt lgkmcnt(8)')
    A(mm(SX, KXF[0] + 4, QF + 4, False)); A(z64(OCt[6])); A(z64(OCt[6] + 2))
    A('s_waitcnt lgkmcnt(6)')
    A(mm(SX, KXF[0] + 8, QF + 8, False)); A(z64(OCt[0])); A(z64(OCt[0] + 2))
    A('s_waitcnt lgkmcnt(4)')
    A(mm(SX, KXF[0] + 12, QF + 12, False)); A(z64(OCt[1])); A(z64(OCt[1] + 2))
    A('s_waitcnt lgkmcnt(0)')
    A(sm(SM, KF, QF, 'v'))
    A('ds_read_b128 v[%d:%d], v%d offset:%d' % (VXF, VXF + 3, aQ, VB))
    A(sm(SM, KF + 4, QF + 8, 'v'))
    A('ds_read_b128 v[%d:%d], v%d offset:%d' % (VXF + 4, VXF + 7, aQ, VB + 1024))
    A(mm(SX + 4, KXF[1], QF, True)); A(z64(OCt[2])); A(z64(OCt[2] + 2))
    A(mm(SX + 4, KXF[1] + 4, QF + 4, False))
    A('v_max3_f32 v1, v%d, v%d, v%d' % (SX, SX + 1, SX + 2))
    A(mm(SX + 4, KXF[1] + 8, QF + 8, False))
    A('v_add_f32 v%d, v%d, v%d' % (SM, SM, SM + 2))
    A('v_add_f32 v%d, v%d, v%d' % (SM + 1, SM + 1, SM + 3))
    A(mm(SX + 4, KXF[1] + 12, QF + 12, False))
    ph(A, opt, 5)
    A('v_max_f32 v1, v1, v%d' % (SX + 3))
    A(V[12])
    A('v_max3_f32 v1, v1, v%d, v%d' % (SM, SM + 1))
    A(V[13])
    A('v_max3_f32 v1, v1, v%d, v%d' % (SX + 4, SX + 5))
    A('v_max3_f32 v3, v1, v%d, v%d' % (SX + 6, SX + 7))
    A('v_max3_f32 v1, v1, v%d, v%d' % (SX + 6, SX + 7))
    A(V[14])
    A('v_permlane16_swap_b32 v1, v3')
    A('v_max_f32 v2, v1, v3')
    A('v_max_f32 v1, v1, v3')
    A(V[15])
    A('v_permlane32_swap_b32 v1, v2')
    A('v_max_f32 v1, v1, v2')
    A('v_mul_f32 v1, s%d, v1' % sCA)
    PX, PM, ONE = SB, SB + 4, SB + 8
    OT, LS = SB + 16, SB + 24
    for i in range(2):
        A('v_fma_f32 v%d, v%d, s%d, -v1' % (SM + i, SM + i, sCA))
    for i in range(2):
        A('v_exp_f32 v%d, v%d' % (SM + i, SM + i))
    for i in range(8):
        A('v_fma_f32 v%d, v%d, s%d, -v1' % (SX + i, SX + i, sCA))
    A('v_cvt_pk_bf16_f32 v%d, v%d, v%d' % (PM, SM, SM + 1))
    A('v_mov_b32 v%d, 0' % (PM + 1))
    for x in padd(VA):
        A(x)
    for tile in range(2):
        d = VA + 4 * tile
        A('v_cvt_pk_bf16_f32 v%d, v%d, v%d' % (d, d, d + 1))
        A('v_mov_b32 v%d, 0' % (d + 1))
    A('v_mov_b32 v%d, s%d' % (ONE, sOne)); A('v_mov_b32 v%d, s%d' % (ONE + 1, sOne))
    def m16(d, a_):
        return 'v_mfma_f32_16x16x16_bf16 v[%d:%d], v[%d:%d], v[%d:%d], 0' % (d, d + 3, a_, a_ + 1, PM, PM + 1)
    E = ['v_exp_f32 v%d, v%d' % (SX + i, SX + i) for i in range(8)]
    C = ['v_cvt_pk_bf16_f32 v%d, v%d, v%d' % (PX + i, SX + 2 * i, SX + 2 * i + 1) for i in range(4)]
    A(E[0]); A(m16(OT, VA)); A(E[1]); A(E[2]); A(m16(OT + 4, VA + 4)); A(E[3]); A(E[4]); A(m16(LS, ONE)); A(E[5]); A(E[6]); A(E[7])
    A('v_mov_b32 v%d, s%d' % (ONE + 2, sOne)); A('v_mov_b32 v%d, s%d' % (ONE + 3, sOne))
    for x in C:
        A(x)
    A('s_waitcnt lgkmcnt(0)')
    A(mm(LS, ONE, PX, False)); A(z64(OCt[3])); A(z64(OCt[3] + 2))
    A(mm(OT, VXF, PX, False)); A(z64(OCt[4])); A(z64(OCt[4] + 2))
    A(mm(OT + 4, VXF + 4, PX, False)); A(z64(OCt[7])); A(z64(OCt[7] + 2))
    ph(A, opt, 6)
    A('v_rcp_f32 v2, v%d' % LS)
    G = SB + 40
    A('s_mov_b64 exec, s[%d:%d]' % (mOW, mOW + 1))
    for i in range(4):
        A('v_pk_mul_f32 v[%d:%d], v[%d:%d], v[2:3] op_sel_hi:[1,0]' % (OT + 2 * i, OT + 2 * i + 1, OT + 2 * i, OT + 2 * i + 1))
    for i in range(4):
        A('v_cvt_pk_bf16_f32 v%d, v%d, v%d' % (G + i, OT + 2 * i, OT + 2 * i + 1))
    A('ds_write_b128 v%d, v[%d:%d] offset:%d' % (aOEw, G, G + 3, OE))
    A('s_mov_b64 exec, -1')
    ph(A, opt, 7)
    d = dma_kv()
    for x in d[:3]:
        A(x)
    A('s_waitcnt lgkmcnt(0)')
    A('s_barrier')
    OA = SB
    A('ds_read_b128 v[%d:%d], v%d offset:%d' % (OA, OA + 3, aOEr, OE))
    A('ds_read_b128 v[%d:%d], v%d offset:%d' % (OA + 4, OA + 7, aOEr, OE + 1024))
    for x in d[3:]:
        A(x)
    A('s_waitcnt lgkmcnt(1)')
    ph(A, opt, 8)
    O = [[sm(OCt[j], OA + 4 * t, WOR(j, t), 'v') for t in range(2) for j in range(4 * hf, 4 * hf + 4)] for hf in range(2)]
    for x in O[0][:4]:
        A(x)
    A('s_waitcnt lgkmcnt(0)')
    for x in O[0][4:]:
        A(x)
    def opack(hf, pk):
        r = []; Gh = G + 4 * hf
        for j in range(4 * hf, 4 * hf + 4):
            d = OCt[j]
            if pk:
                r.append('v_pk_add_f32 v[%d:%d], v[%d:%d], v[%d:%d]' % (d, d + 1, d, d + 1, d + 2, d + 3))
            else:
                r += ['v_add_f32 v%d, v%d, v%d' % (d, d, d + 2), 'v_add_f32 v%d, v%d, v%d' % (d + 1, d + 1, d + 3)]
        for u in range(4):
            hi, b = u >> 1, u & 1
            j = 4 * hf + 2 * hi
            r.append('v_cvt_pk_bf16_f32 v%d, v%d, v%d' % (Gh + u, OCt[j] + b, OCt[j + 1] + b))
        r.append('v_bfi_b32 v%d, 1, s%d, v%d' % (Gh, sTag, Gh))
        r.append('buffer_store_dwordx4 v[%d:%d], v%d, %s, %s offen %s' % (Gh, Gh + 3, aPBst, S(WS), 's%d' % s32k if hf else '0', SC))
        return r
    weave(A, O[1], opack(0, False), per=[2, 2, 2, 2, 2, 2, 2, 0])
    p1 = opack(1, False)
    for x in p1[0:4] + [p1[8], p1[9], p1[12]] + p1[4:8] + [p1[10], p1[11], p1[13]]:
        A(x)
    ph(A, opt, 9)
    R = AF
    A.nop(DB)
    if DB2:
        lab = A.label('L_c_d')
        A('s_cmp_lt_u32 s%d, 2' % sWAVE)
        A('s_cbranch_scc1 %s' % lab)
        A.nop(DB2)
        A('%s:' % lab)
    def pb_loads():
        A('buffer_load_dwordx4 v[%d:%d], v%d, %s, s%d offen sc1' % (R, R + 3, aL, S(WS), sPBld))
        A('buffer_load_dwordx4 v[%d:%d], v%d, %s, s%d offen offset:1024 sc1' % (R + 4, R + 7, aL, S(WS), sPBld))
    pb_loads()
    for i in range(3):
        for x in sb_reads(i):
            A(x)
    for i in range(12):
        A(z64(QA + 2 * i))
    for r in (sRing, sRst):
        A('s_add_u32 s%d, s%d, s%d' % (r, r, s8k))
        A('s_cmp_eq_u32 s%d, s%d' % (r, sMRend))
        A('s_cselect_b32 s%d, %d, s%d' % (r, MR, r))
    A('s_add_u32 s%d, s%d, 1' % (sS, sS))
    A('s_add_u32 s%d, s%d, s%d' % (sKoff, sKoff, s256k))
    A('s_add_u32 s%d, s%d, s%d' % (sVoff, sVoff, s256k))
    A('s_add_u32 s%d, s%d, s%d' % (sMH, sMH, s8k))
    A('v_add_u32 v%d, v%d, v%d' % (aPF, vInc, aPF))
    A('v_mov_b32 v3, -1')
    D = R + 8
    A('L_c_pbc%s:' % tag)
    A('s_waitcnt vmcnt(1)')
    A(mm(D, vSel, R, True))
    A('v_xor_b32 v1, s%d, v%d' % (sTag, R))
    A('s_waitcnt vmcnt(0)')
    A(mm(D, vSel, R + 4, False))
    A('v_xor_b32 v2, s%d, v%d' % (sTag, R + 4))
    A('v_or_b32 v1, v1, v2')
    A('v_and_b32 v1, 1, v1')
    A('v_cmp_ne_u32 vcc, 0, v1')
    ph(A, opt, 10)
    for rot in (4, 8):
        A('v_add_f32_dpp v%d, v%d, v%d row_ror:%d row_mask:0xf bank_mask:0xf' % (D, D, D, rot))
        A('v_add_f32_dpp v%d, v%d, v%d row_ror:%d row_mask:0xf bank_mask:0xf' % (D + 1, D + 1, D + 1, rot))
        if rot == 4:
            A('s_cbranch_vccnz L_c_pbx%s' % tag)
    A('v_cvt_pk_bf16_f32 v%d, v%d, v%d' % (vMem, D, D + 1))
    A('v_min_u32 v%d, -2, v%d' % (vMem, vMem))
    A('buffer_store_dword v%d, v%d, %s, s%d offen %s' % (vMem, aMRst, S(WS), sRing, SC))
    A('buffer_store_dword v3, v%d, %s, s%d offen %s' % (aMRst, S(WS), sRst, SC))
    A('s_xor_b32 s%d, s%d, 1' % (sTag, sTag))
    ph(A, opt, 11)
    ph_acc(A, opt, 11, 57)
    A('s_cmp_lt_u32 s%d, 63' % sS)
    A('s_cbranch_scc1 L_c_loop%s' % tag)
    A('s_branch L_c_done')
    A('L_c_pbx%s:' % tag)
    spin_check(A)
    pb_loads()
    A('s_branch L_c_pbc%s' % tag)
    A('L_c_x0%s:' % tag)
    spin_check(A)
    A('s_waitcnt vmcnt(0) lgkmcnt(0)')
    A(afl(0)); A(afl(1))
    for i in range(4):
        A(z64(QA + 2 * i))
    A('s_branch L_c_r0%s' % tag)
    A('L_c_x1%s:' % tag)
    spin_check(A)
    A('s_waitcnt lgkmcnt(0)')
    A(afl(1))
    A('s_branch L_c_r1%s' % tag)

def chain(A, opt):
    n0 = len(A.lines)
    setup(A, opt)
    A('s_cmp_lg_u32 s57, 0')
    A('s_cbranch_scc1 L_c_start_s')
    loop(A, opt, '', '_f')
    loop(A, opt, 'sc1', '_s')
    A('L_c_done:')
    A('buffer_store_dword v%d, v%d, %s, s%d offen sc1' % (vMem, aMRst, S(WS), sMH))
    rt_stamp(A, opt, 3)
    ph_out(A, opt, 12)
    A('s_endpgm')
    ex = opt.get('exp', '')
    for i in range(n0, len(A.lines)):
        l = A.lines[i]
        if 'm' in ex and ('buffer_store_dword v%d, v%d, %s, s%d offen sc1' % (vMem, aMRst, S(WS), sMH)) in l:
            A.lines[i] = '  s_nop 0'
        if 'p' in ex and ('v_add_u32 v%d, v%d, v%d' % (aPF, vInc, aPF)) in l:
            A.lines[i] = '  s_nop 0'
        if 'p' in ex and ('s%d' % s256k) in l and 's_add_u32' in l:
            A.lines[i] = '  s_nop 0'
        if 'd' in ex and 'sc1 lds' in l:
            A.lines[i] = '  s_nop 0'
    if opt.get('free'):
        for i in range(n0, len(A.lines)):
            l = A.lines[i]
            if 's_cbranch_vccnz L_c_x' in l or 's_cbranch_vccnz L_c_pbx' in l:
                A.lines[i] = l.replace('s_cbranch_vccnz', 's_cbranch_cdbgsys')
```

```python
import sys
from common import *
import aworker

def clear_flags(A):
    lab = A.label('L_noclr')
    A('s_cmp_lg_u32 s59, %d' % (5 * 32))
    A('s_cbranch_scc0 L_doclr')
    A('s_cmp_lg_u32 s59, %d' % (5 * 32 + 0x10000))
    A('s_cbranch_scc1 %s' % lab)
    A('L_doclr:')
    A('s_cmp_lg_u32 s%d, 3' % sWAVE)
    A('s_cbranch_scc1 %s' % lab)
    A('v_lshlrev_b32 v1, 7, v0')
    A('v_mov_b32 v2, 0')
    for i in range(NFLAGS // 64):
        A('s_mov_b32 s57, %d' % (FLG + i * 8192))
        A('buffer_store_dword v2, v1, %s, s57 offen sc1' % S(WS))
    A('s_waitcnt vmcnt(0)')
    A('v_mov_b32 v1, %d' % D_CLR)
    A('v_mov_b32 v2, 1')
    A('s_mov_b64 exec, 1')
    A('buffer_store_dword v2, v1, %s, 0 offen sc1' % S(DBG))
    A('s_mov_b64 exec, -1')
    A('%s:' % lab)

def build(opt):
    A = Asm()
    prologue(A, opt.get('fake'), opt.get('warm', 'qkvo').replace('-', ''), int(opt.get('wmode', 3)))
    rt_stamp(A, opt, 0)
    clear_flags(A)
    warm_b(A, opt.get('warm', 'qkvo').replace('-', ''), int(opt.get('wmode', 3)))
    A('s_cmp_eq_u32 s%d, 0' % sGRP)
    A('s_cbranch_scc1 L_chain')
    A('s_cmp_ge_u32 s%d, 5' % sGRP)
    A('s_cbranch_scc1 L_bworker')
    aworker.p_phase(A, opt)
    if 'o' in opt['roles']:
        aworker.o_phase(A, opt)
    A('s_endpgm')
    if 'c' in opt['roles']:
        import chain10
        chain10.chain(A, opt)
    else:
        A('L_chain:')
        A('s_endpgm')
    if 'b' in opt['roles']:
        import bworker
        bworker.bworker(A, opt)
    else:
        A('L_bworker:')
        A('s_endpgm')
    epilogue(A)
    osc = opt.get('osc', '-').replace('-', '').replace('_', ' ')
    A.lines = [l + ' ' + osc if ('buffer_store' in l and S(OUT) in l) else l for l in A.lines]
    lines, n = hazard.fix(A.lines)
    if opt.get('a8'):
        import align8
        lines, n_, miss = align8.run(lines, 'L_c_ld_f:', 'L_c_px_f:', opt['a8'] == '2')
        print('align8', n_, miss)
    body = '\n'.join(lines) + '\n'
    return kernel_file([dict(name=NAME + '_kernel', body=body, grid=(256, 1, 1), block=(256, 1, 1), lds=163840, vgpr=512, accum=256)])

if __name__ == '__main__':
    out = sys.argv[1]
    opt = dict(roles=sys.argv[2])
    for kv in sys.argv[3:]:
        k, v_ = kv.split('=')
        opt[k] = v_
    open(out, 'w').write(build(opt))
```

```python
from common import *
from chain import wo_load, wo_fix, WOR, CA, ph, ph_init, ph_acc, ph_out
from chain3 import *
import chain3

def U(i): return SB + 8 * i
WQA, WQB, WOV = 128, 192, 208
QU = {i: i for i in range(6)}
def qb_reg(i): return U(QU[i]) if i in QU else WQB + 8 * (i - 6)
def wo_res(j, t): return WOV + (j * 2 + t) * 8
aWS2 = 0
WO_L = [(j, t) for j in range(3, 8) for t in range(2)]
BLK_ORDER = [1, 3, 5, 0, 2, 4, 6, 7]
_order = [(4 * (blk & 1) + jj, blk >> 2, (blk >> 1) & 1) for blk in BLK_ORDER for jj in range(4) if 4 * (blk & 1) + jj >= 3]
def wo_cell(j, t, hb): return 12 + _order.index((j, t, hb))
def cell_ad(x):
    off = (x // 4) * 16384 + (x % 4) * 1024
    return (aWS, off) if off < 65536 else (aWS2, off - 65536)
def cell_rd(dst, x): return 'ds_read_b128 v[%d:%d], v%d offset:%d' % ((dst, dst + 3) + cell_ad(x))
def cell_wr(src, x):
    ad, off = cell_ad(x)
    return 'ds_write_b128 v%d, v[%d:%d] offset:%d' % (ad, src, src + 3, off)
def wo_rd(dst, j, t):
    return [cell_rd(dst + 4 * hb, wo_cell(j, t, hb)) for hb in range(2)]
def pre_reads():
    return [cell_rd(U(i) + 4 * hb, 2 * i + hb) for i in range(6) for hb in range(2)]

def load_weights(A, opt, ld, extra):
    mats = [WQ, WK, WV]
    RAW = {1: 208, 3: 224, 5: 240, 0: 20, 2: 36, 4: 108, 6: 52, 7: 68}
    TMP = 84
    def wl(blk):
        t, hb, half = blk >> 2, (blk >> 1) & 1, blk & 1
        for u in range(4):
            e0 = 64 * t + 32 * (u % 2) + 8 * hb + 2 * (u // 2)
            r = RAW[blk] + 4 * u
            A('s_mov_b32 s68, %d' % (e0 * 1024 + half * 128))
            A('buffer_load_dwordx2 v[%d:%d], v107, %s, s68 offen' % (r, r + 1, S(WO)))
            A('buffer_load_dwordx2 v[%d:%d], v107, %s, s68 offen offset:1024' % (r + 2, r + 3, S(WO)))
    def fix(blk):
        t, hb, half = blk >> 2, (blk >> 1) & 1, blk & 1
        for jj in range(4):
            j = 4 * half + jj
            d = wo_res(j, t) + 4 * hb if j < 3 else TMP + 4 * jj
            for u in range(4):
                r = RAW[blk] + 4 * u
                A('v_perm_b32 v%d, v%d, v%d, s%d' % (d + u, r + 2 + jj // 2, r + jj // 2, 62 if jj & 1 else 61))
            if j >= 3:
                A(cell_wr(d, wo_cell(j, t, hb)))
        A('s_waitcnt lgkmcnt(0)')
    DEP = int(opt.get('depth', 8))
    log = [('d', n) for n in range(DEP) for _ in range(4)] + [('x', 0)] * extra
    def wait_for(tag):
        last = max(i for i, t_ in enumerate(log) if t_ == tag)
        n = len(log) - 1 - last
        return min(n, 63)
    wl_at = {14: [1], 15: [3], 16: [5], 17: [0], 18: [2], 19: [4], 20: [6], 21: [7]}
    for n in range(24):
        m, c = n // 8, n % 8
        A('s_waitcnt vmcnt(%d) lgkmcnt(0)' % wait_for(('d', n)))
        if n == int(opt.get('arn', 8)):
            arrive(A)
        else:
            A('s_barrier')
        nx_ = n + DEP - 1 if DEP == 8 else n + DEP
        if DEP <= nx_ <= 23:
            ld.dma(mats[nx_ // 8], nx_ % 8); log += [('d', nx_)] * 4
        end = A.label('L_c_tr')
        for w in range(4):
            nx = A.label('L_c_tr')
            if w < 3:
                A('s_cmp_lg_u32 s%d, %d' % (sWAVE, w))
                A('s_cbranch_scc1 %s' % nx)
            i = c ^ (2 * w)
            if m == 0:
                ld.tr(c, 0, 'v', WQA + 8 * i)
                ld.tr(c, 1, 'v', qb_reg(i))
            else:
                for tile in range(2):
                    ld.tr(c, tile, 'a', (m - 1) * 128 + tile * 64 + 8 * i)
            if w < 3:
                A('s_branch %s' % end)
                A('%s:' % nx)
        A('%s:' % end)
        if n == int(opt.get('arn', 8)):
            A('v_min_u32 v%d, -2, v%d' % (vMem, vMem))
            A('s_mov_b32 s57, %d' % MR)
            A('buffer_store_dword v%d, v%d, %s, s57 offen sc1' % (vMem, aMRst, S(WS))); log += [('x', 1)]
            A('buffer_load_dword v3, off, %s, 0 offset:%d sc1' % (S(DBG), D_CLR)); log += [('x', 1)]
        if 9 <= n <= 16:
            if n == 9:
                A('s_mov_b32 s66, 0x%x' % f2u(CA))
                A('s_mov_b32 s67, 0xffff0000')
            regs = ([WQA + i for i in range(80)] + [SB + i for i in range(48)])[16 * (n - 9):16 * (n - 8)]
            for r in regs:
                A('v_lshlrev_b32 v1, 16, v%d' % r)
                A('v_and_b32 v2, s67, v%d' % r)
                A('v_mul_f32 v1, s66, v1')
                A('v_mul_f32 v2, s66, v2')
                A('v_cvt_pk_bf16_f32 v%d, v1, v2' % r)
        if 17 <= n <= 19:
            for x in range(4 * (n - 17), 4 * (n - 17) + 4):
                A(cell_wr(SB + 4 * x, x))
        for blk in wl_at.get(n, []):
            wl(blk); log += [('w', blk)] * 8
        if n == int(opt.get('ldn', 21)) and opt.get('hold'):
            A('s_cmp_lg_u32 s%d, 0' % sWAVE)
            A('s_cbranch_scc1 L_c_nold')
            A('v_mov_b32 v1, 1')
            A('v_mov_b32 v2, %d' % D_LD)
            A('s_mov_b64 exec, 1')
            A('buffer_atomic_add v1, v2, %s, 0 offen' % S(DBG))
            A('s_mov_b64 exec, -1')
            A('L_c_nold:')
        if n == int(opt.get('fn', 22)):
            A('v_readfirstlane_b32 s57, v3')
            A('v_mov_b32 v2, 0')
            A('s_cmp_eq_u32 s57, 0')
            A('s_cbranch_scc1 L_c_nf')
            A('v_mbcnt_lo_u32_b32 v1, -1, 0')
            A('v_and_b32 v1, 3, v1')
            A('v_lshlrev_b32 v1, 12, v1')
            A('s_lshl_b32 s%d, s%d, 7' % (sG1, sIDX))
            A('buffer_load_dword v2, v1, %s, s%d offen sc1' % (S(WS), sG1))
            A('buffer_load_dword v%d, off, %s, 0 offset:%d sc1' % (vFlag, S(DBG), D_ARR))
            A('L_c_nf:')
        if n == 20:
            A('s_mov_b32 s61, 0x05040100')
            A('s_mov_b32 s62, 0x07060302')
        if n >= 20:
            todo = {20: [1], 21: [3], 22: [5], 23: [0, 2, 4, 6]}[n]
            for blk in todo:
                A('s_waitcnt vmcnt(%d)' % wait_for(('w', blk)))
                fix(blk)
    A('s_waitcnt vmcnt(0) lgkmcnt(0)')
    A('s_barrier')
    fix(7)
sLo, sRng, sOne2 = 96, 97, 98
aX = [aQ, 1, 2, 3]
sH = 100
TR = SB + 6
aKX, aPE = aPF, vInc
PE = 14848


class Trk:
    def __init__(self, A, name):
        self.A = A; self.name = name; self.log = []
    def op(self, x, tag=None):
        self.A(x); self.log.append(tag)
    def wait(self, tag):
        last = max(i for i, t in enumerate(self.log) if t == tag)
        n = len(self.log) - 1 - last
        assert n <= 15
        self.A('s_waitcnt %s(%d)' % (self.name, n))
        self.log = self.log[last + 1:]
    def all(self):
        self.A('s_waitcnt %s(0)' % self.name); self.log = []

def mark(A, opt, tag, name):
    if tag == '_f' and opt.get('probe') == name:
        A('s_memtime s[10:11]')
    if tag == '_f' and name in opt.get('rt', '').split(','):
        k = opt['rt'].split(',').index(name)
        A('s_memrealtime s[%d:%d]' % (12 + 2 * k, 13 + 2 * k))

def loop(A, opt, SC, tag):
    o = lambda k, d: int(opt.get(k, d))
    A('L_c_start%s:' % tag)
    A('s_add_u32 s84, s%d, %d' % (WS, 262144))
    A('s_addc_u32 s85, s%d, 0x40000' % (WS + 1))
    A('s_mov_b32 s86, 0x4000000')
    A('s_mov_b32 s87, 0x20000')
    A('s_mov_b32 s%d, 0' % sS)
    A('s_mov_b32 s%d, %d' % (sRing, MR))
    A('s_mov_b32 s%d, %d' % (sRst, MR + 2 * 8192))
    A('s_mov_b32 s%d, %d' % (sMRend, MR + 3 * 8192))
    A('s_mov_b32 s%d, 1' % sTag)
    A('s_lshl_b32 s%d, s%d, 7' % (sG1, sIDX))
    A('s_mov_b32 s%d, 0' % sK1)
    A('s_mov_b32 s%d, 0x%x' % (sCA, f2u(CA)))
    A('s_lshl_b32 s%d, s%d, 13' % (sKoff, sIDX))
    A('s_lshr_b32 s57, s%d, 1' % sWAVE)
    A('s_lshl_b32 s57, s57, 24')
    A('s_add_u32 s%d, s%d, s57' % (sVoff, sKoff))
    A('s_and_b32 s57, s%d, 1' % sWAVE)
    A('s_lshl_b32 s57, s57, 12')
    A('s_add_u32 s%d, s%d, s57' % (sVoff, sVoff))
    A('s_add_u32 s%d, s%d, %d' % (sVoff, sVoff, KX))
    A('s_add_u32 s%d, s%d, %d' % (sKoff, sKoff, KX))
    A('s_mov_b32 s%d, %d' % (sMH, MH))
    A('s_mov_b32 s%d, 0x3f803f80' % sOne)
    A('s_mov_b32 s%d, 32768' % s32k)
    A('s_mov_b32 s%d, 2048' % sX1); A('s_mov_b32 s%d, 4096' % sX2); A('s_mov_b32 s%d, 6144' % sX3)
    A('s_mov_b32 s%d, 8192' % s8k)
    A('s_mov_b32 s%d, 262144' % s256k)
    lo, hi = f2u(2.0 ** -30), f2u(2.0 ** 30)
    if opt.get('forceslow'):
        lo, hi = f2u(2.0 ** 100), f2u(2.0 ** 101)
    A('s_mov_b32 s%d, 0x3f803f80' % sOne2); A('s_mov_b32 s%d, 0x3f803f80' % (sOne2 + 1))
    A('s_mov_b32 s%d, 0x%x' % (sLo, lo))
    A('s_mov_b32 s%d, 0x%x' % (sRng, hi - lo))
    A('s_mov_b32 s%d, 0' % sH)
    A('s_mov_b32 s%d, 1' % sK1)
    A('v_mov_b32 v%d, 0' % vFlag)
    pf = 'buffer_load_dword v%d, v%d, %s, s%d offen sc1' % (vInc, aPF, S(WS), sKoff)
    for x in dma_kv():
        A(x)
    A('s_add_u32 s%d, s%d, s%d' % (sKoff, sKoff, s256k))
    A('s_add_u32 s%d, s%d, s%d' % (sVoff, sVoff, s256k))
    for x in pre_reads():
        A(x)
    for i in range(12):
        A(z64(QA + 2 * i))
    rt_stamp(A, opt, 2)
    ph_init(A, opt)
    if opt.get('clk'):
        A('s_memtime s[8:9]')
    def Qa(i): return sm(QA, AF + 4 * i, WQA + 8 * i, 'v')
    def Qb(i): return sm(QA + 4, AF + 4 * i, qb_reg(i), 'v')
    def Ka(i): return sm(KA, AF + 4 * i, 8 * i, 'a')
    def Kb(i): return sm(KA + 4, AF + 4 * i, 64 + 8 * i, 'a')
    def Va(i): return sm(VA, AF + 4 * i, 128 + 8 * i, 'a')
    def Vb(i): return sm(VA + 4, AF + 4 * i, 192 + 8 * i, 'a')
    def afl(i):
        return 'buffer_load_dwordx4 v[%d:%d], v%d, %s, s%d offen offset:%d sc1' % (AF + 4 * i, AF + 4 * i + 3, aQ, S(WS), sRing, i * 1024)
    def afw(i):
        return 'ds_write_b128 v%d, v[%d:%d] offset:%d' % (aQ, AF + 4 * i, AF + 4 * i + 3, ST + i * 1024)
    def add(d, x, y): return 'v_add_f32 v%d, v%d, v%d' % (d, x, y)
    def cvt(d, x, y): return 'v_cvt_pk_bf16_f32 v%d, v%d, v%d' % (d, x, y)
    def ex(r): return 'v_exp_f32 v%d, v%d' % (r, r)
    def hsum(d): return [add(d, d, d + 2), add(d + 1, d + 1, d + 3)]
    mul = lambda d: 'v_mul_f32 v%d, s%d, v%d' % (d, sCA, d)
    zero = lambda r: 'v_mov_b32 v%d, 0' % r
    cmp_ = lambda i: 'v_cmp_eq_u32 vcc, -1, v%d' % (AF + 4 * i)
    M = lambda name: mark(A, opt, tag, name)
    A('s_and_b32 s57, s%d, 1' % sWAVE)
    A('s_lshl_b32 s57, s57, 3')
    A('v_add_u32 v%d, s57, v%d' % (aPE, aL))
    A('s_lshl_b32 s57, s57, 9')
    A('v_add_u32 v%d, s57, v%d' % (aKX, aL))
    for i in range(3):
        A('v_xor_b32 v%d, s%d, v%d' % (1 + i, sX1 + i, aQ))
    HA = o('ha', 1)
    L = Trk(A, 'lgkmcnt')
    if 'al' in opt:
        A.lines.append('.p2alignl 6, 0xbf800000')
        for _ in range(o('al', 0)):
            A('s_nop 0')
    A('L_c_ld%s:' % tag)
    A(afl(0)); A.nop(o('da1', 0)); A(afl(1))
    if HA:
        A.nop(o('ia', 32)); A('buffer_load_dwordx4 v[%d:%d], v%d, %s, s%d offen offset:1024 sc1' % (AF + 28, AF + 31, aQ, S(WS), sRing))
    M('ld')
    if o('st2', 0):
        CT = AF + 20
        A('s_waitcnt vmcnt(%d) lgkmcnt(0)' % (1 + HA))
        M('t')
        L.op(afw(0))
        A('v_max3_u32 v%d, v%d, v%d, v%d' % (CT, AF, AF + 1, AF + 2))
        A('s_waitcnt vmcnt(%d)' % HA)
        A('L_c_r1%s:' % tag)
        L.op(afw(1))
        A('v_max3_u32 v%d, v%d, v%d, v%d' % (CT + 1, AF + 3, AF + 4, AF + 5))
        A(Qb(0))
        A('v_max3_u32 v%d, v%d, v%d, v%d' % (CT + 1, CT + 1, AF + 6, AF + 7))
        A('v_max_u32 v%d, v%d, v%d' % (CT + 1, CT + 1, CT))
        A('v_cmp_eq_u32 vcc, -1, v%d' % (CT + 1))
        pre = [Qa(0), Qb(1), Kb(0), Ka(0)]
        NP = o('np', 2)
        for x in pre[:NP]:
            A(x)
        A('s_cbranch_vccnz L_c_x1%s' % tag)
        post = pre[NP:] + [Qa(1), Kb(1), Ka(1), Va(0), Vb(0)]
    else:
        A('s_waitcnt vmcnt(%d) lgkmcnt(0)' % (1 + HA))
        M('t')
        if SC or o('full', 1):
            CT = AF + 20
            def mx(r, t): return ['v_max3_u32 v%d, v%d, v%d, v%d' % (t, r, r + 1, r + 2), 'v_max_u32 v%d, v%d, v%d' % (t, t, r + 3), 'v_cmp_eq_u32 vcc, -1, v%d' % t]
            c0, c1 = mx(AF, CT), mx(AF + 4, CT)
            L.op(afw(0)); A(c0[0]); A(c0[1]); A(c0[2])
            A(Qb(0)); A(Qa(0))
            A('s_cbranch_vccnz L_c_x0%s' % tag)
            A('s_waitcnt vmcnt(%d)' % HA)
            L.op(afw(1)); A(c1[0]); A(c1[1]); A(c1[2])
            A(Kb(0)); A(Ka(0))
            A('s_cbranch_vccnz L_c_x1%s' % tag)
        else:
            L.op(afw(0)); A(cmp_(0))
            A(Qb(0)); A(Qa(0))
            A('s_cbranch_vccnz L_c_x0%s' % tag)
            A('s_waitcnt vmcnt(%d)' % HA)
            L.op(afw(1)); A(cmp_(1))
            A(Kb(0)); A(Ka(0))
            A('s_cbranch_vccnz L_c_x1%s' % tag)
        A('L_c_r1%s:' % tag)
        A(Qb(1))
        post = [Qa(1), Kb(1), Ka(1), Va(0), Vb(0)]
    L.all()
    A('s_barrier')
    M('sbar')
    if tag == '_f' and 'probe' in opt:
        A('s_waitcnt lgkmcnt(0)')
        A('s_sub_u32 s57, s10, s8')
        A('s_cmp_eq_u32 s%d, 0' % sS)
        A('s_cselect_b32 s57, 0, s57')
        A('s_add_u32 s36, s36, s57')
        A('s_memtime s[8:9]')
    rd = {i: 'ds_read_b128 v[%d:%d], v%d offset:%d' % (AF + 4 * i, AF + 4 * i + 3, i // 2, ST + (i % 2) * 1024) for i in range(2, 8)}
    L.op(rd[2], 2)
    for q, m_ in enumerate(post):
        i = q + 3
        A(m_)
        if i == 6 and HA:
            A('s_waitcnt vmcnt(0)')
        if i < 8:
            L.op(rd[i], i)
    SM, SX = AF, AF + 4
    KXR = U(0); QF = U(4); KF = QA; VXF = U(2)
    kk = ['ds_read_b128 v[%d:%d], v%d offset:%d' % (KXR + 4 * q, KXR + 4 * q + 3, aKX, KB + q * 1024) for q in range(4)]
    vx = ['ds_read_b128 v[%d:%d], v%d offset:%d' % (VXF + 4 * q, VXF + 4 * q + 3, aQ, VB + 1024 * q) for q in range(2)]
    vm = {2: 'buffer_store_dword v%d, v%d, %s, s%d offen sc1' % (vMem, aMRst, S(WS), sMH), 5: flag_load()}
    dk = dma_kv()
    qb, qa, kb_, ka_ = QA + 4, QA, KA + 4, KA
    OCt = [KA, KA + 4, QA, QA + 4, AF, AF + 4, AF + 8, AF + 12]
    WU = [U(4), U(3), AF + 16, AF + 24, U(0), U(1), U(2), VA, U(3), AF + 16]
    def wq(k): return [(x, 'w%d' % k) for x in wo_rd(WU[k], *WO_L[k])]
    g1 = {2: [vm[2]], 3: [z64(SM)], 4: [vm[5]], 5: [z64(SM + 2)]}
    if o('de', 5) >= 3:
        pf4 = 'buffer_load_dword v%d, v%d, s[84:87], s%d idxen sc1' % (vFlag, aL, sVoff)
        g1 = {2: [pf4], 3: [z64(SM)], 4: [vm[2]], 5: [z64(SM + 2)], 6: [vm[5]]}
        opt = dict(opt, ds=opt.get('ds7', '2499'))
    if o('de', 5) == 1:
        g1 = {2: [dk[1]], 3: [dk[2], z64(SM)], 4: [dk[4]], 5: [dk[5], z64(SM + 2)], 6: [vm[2]], 7: [vm[5]]}
        opt = dict(opt, ds='9999')
    if o('de', 5) == 2:
        g1 = {2: [dk[1]], 3: [z64(SM)], 4: [dk[2]], 5: [z64(SM + 2)], 6: [vm[2]], 7: [vm[5]]}
        opt = dict(opt, ds='9901')
    for i in range(2, 8):
        if i % 2 == 0:
            L.wait(i + 1)
        A(Qb(i))
        for x in g1.get(i, []):
            A(x)
        if i >= 6:
            L.op(kk[i - 6])
    A(Qa(2)); L.op(kk[2])
    A(Qa(3)); A(hsum(qb)[0])
    A(Qa(4)); A(hsum(qb)[1])
    A(Qa(5)); A(cvt(qb, qb, qb + 1))
    A(Qa(6)); L.op(kk[3])
    A(Qa(7)); L.op(vx[0], 'vx')
    M('qdone')
    w1 = wq(1)
    A(Kb(2)); L.op(vx[1], 'vx')
    A(Kb(3)); A(hsum(qa)[0])
    A(Kb(4)); A(hsum(qa)[1])
    A(Kb(5)); A(cvt(qa, qa, qa + 1))
    A(Kb(6)); L.op('ds_write2_b32 v%d, v%d, v%d offset1:72' % (aQEw, qa, qb), 'qw')
    A(Kb(7))
    A(Ka(2))
    A(Ka(3)); A(hsum(kb_)[0])
    A(Ka(4))
    L.wait('qw')
    A('s_barrier')
    M('qbar')
    def qt(ks):
        for u in range(2):
            L.op('ds_read_b64_tr_b16 v[%d:%d], v%d offset:%d' % (QF + 4 * ks + 2 * u, QF + 4 * ks + 2 * u + 1, aQEr, QE + ks * 576 + u * 32), 'q%d' % ks)
    def kt(t):
        for u in range(2):
            L.op('ds_read_b64_tr_b16 v[%d:%d], v%d offset:%d' % (KF + 4 * t + 2 * u, KF + 4 * t + 2 * u + 1, aKEr, KE + t * 1152 + u * 32), 'k')
    X = [mm(SX, KXR + 4 * ks, QF + 4 * ks, ks == 0) for ks in range(4)]
    dsl = [int(c) for c in opt.get('ds', '0135')]
    dseq = [[dk[1]], [dk[2]], [dk[4]], [dk[5]]]
    def D_(k):
        for q, sl in enumerate(dsl):
            if sl == k:
                for x in dseq[q]:
                    A(x)
    A(Ka(5)); qt(0)
    A(Ka(6)); qt(1)
    A(Ka(7)); qt(2)
    A(Va(1)); qt(3)
    A(Vb(1)); D_(0); L.wait('q1'); A(hsum(kb_)[1])
    A(X[0]); A(hsum(ka_)[0]); A(hsum(ka_)[1])
    A(X[1]); L.wait('q3'); A(cvt(kb_ + 3, kb_, kb_ + 1)); A(cvt(kb_ + 2, ka_, ka_ + 1))
    A(X[2]); L.op('ds_write_b64 v%d, v[%d:%d]' % (aKEw, kb_ + 2, kb_ + 3))
    A(X[3]); D_(1)
    PX, PM = U(0), U(0) + 4
    LS, ONE, G, OA, OT = U(1), vSel, U(4), U(5), AF + 8
    va, vb = VA, VA + 4
    one = lambda q: 'v_mov_b64 v[%d:%d], s[%d:%d]' % (ONE + 2 * q, ONE + 2 * q + 1, sOne2, sOne2 + 1)
    A(Va(2)); D_(2)
    A(Vb(2)); A(ex(SX)); A(ex(SX + 1))
    A(Va(3)); A(ex(SX + 2)); A(ex(SX + 3))
    A(cvt(SX, SX, SX + 1)); A(cvt(SX + 1, SX + 2, SX + 3))
    A(Vb(3)); L.op('ds_write_b64 v%d, v[%d:%d] offset:%d' % (aPE, SX, SX + 1, PE))
    A(Va(4)); D_(3)
    A(Vb(4)); D_(4)
    A(Va(5))
    L.all()
    A('s_barrier')
    M('kbar')
    A(Vb(5)); kt(0)
    A(Va(6)); kt(1)
    A(Va(7)); L.op('ds_read_b128 v[%d:%d], v%d offset:%d' % (PX, PX + 3, aL, PE), 'px')
    w2, w3, w0 = wq(2), wq(3), wq(0)
    A(Vb(6)); D_(5); A(zero(PM + 1))
    A(Vb(7)); L.wait('k')
    A(sm(SM, KF, QF, 'v')); L.op(*w1[0])
    A(sm(SM, KF + 4, QF + 8, 'v')); L.op(*w1[1])
    M('xdone')
    def m16(d, a_):
        return 'v_mfma_f32_16x16x16_bf16 v[%d:%d], v[%d:%d], v[%d:%d], v[%d:%d]' % (d, d + 3, a_, a_ + 1, PM, PM + 1, d, d + 3)
    L.wait('px')
    A(mm(LS, ONE, PX, True)); D_(6); A(hsum(va)[0]); A(hsum(va)[1])
    A(mm(OT, VXF, PX, True)); A(hsum(SM)[0]); A(hsum(SM)[1])
    A(mm(OT + 4, VXF + 4, PX, True)); A(ex(SM)); A(ex(SM + 1))
    A(cvt(va, va, va + 1)); A(cvt(PM, SM, SM + 1)); A(zero(va + 1)); A(hsum(vb)[0])
    A(m16(LS, ONE)); A(hsum(vb)[1]); A(cvt(vb, vb, vb + 1))
    A(m16(OT, va)); A(zero(vb + 1)); L.op(*w0[0])
    A(m16(OT + 4, vb)); L.op(*w0[1])
    M('pv')
    A('v_rcp_f32 v%d, v%d' % (TR, LS + 2))
    A('v_subrev_u32 v%d, s%d, v%d' % (TR + 1, sLo, LS + 2))
    A('L_c_norm%s:' % tag)
    for i in range(4):
        A('v_mul_f32 v%d, v%d, v%d' % (OT + i, OT + i, TR))
    GO = LS
    A(cvt(GO, OT, OT + 1)); A(cvt(GO + 1, OT + 2, OT + 3))
    for i in (2, 3):
        A('v_pk_mul_f32 v[%d:%d], v[%d:%d], v[%d:%d] op_sel_hi:[1,0]' % (OT + 2 * i, OT + 2 * i + 1, OT + 2 * i, OT + 2 * i + 1, TR, TR + 1))
    A(cvt(GO + 2, OT + 4, OT + 5)); A(cvt(GO + 3, OT + 6, OT + 7))
    L.op('ds_write_b128 v%d, v[%d:%d] offset:%d' % (aOEw, GO, GO + 3, OE), 'ow')
    M('ow')
    A('v_cmp_lt_u32 vcc, s%d, v%d' % (sRng, TR + 1))
    ZP = va + 2
    A(z64(ZP))
    L.op(*w2[0]); L.op(*w2[1])
    A('s_cbranch_vccnz L_c_slow%s' % tag)
    zm = lambda d: 'v_mfma_f32_32x32x8_bf16 v[%d:%d], v[%d:%d], v[%d:%d], 0' % (d, d + 15, ZP, ZP + 1, ZP, ZP + 1)
    A(zm(QA)); D_(7)
    L.wait('ow')
    A('s_barrier')
    M('obar')
    L.op('ds_read_b128 v[%d:%d], v%d offset:%d' % (OA, OA + 3, aOEr, OE), 'o0')
    L.op('ds_read_b128 v[%d:%d], v%d offset:%d' % (OA + 4, OA + 7, aOEr, OE + 1024), 'o1')
    A(zm(AF)); D_(8)
    L.op(*w3[0]); L.op(*w3[1])
    zz = []
    wr = []
    for k in range(4, 10):
        wr += wq(k)
    def nw(n=1):
        for _ in range(n):
            L.op(*wr.pop(0))
    def wreg(j, t):
        return wo_res(j, t) if j < 3 else WU[WO_L.index((j, t))]
    def O(j, t):
        A(sm(OCt[j], OA + 4 * t, wreg(j, t), 'v'))
    def hs(j): return hsum(OCt[j])
    def cv(hf, hi):
        j = 4 * hf + 2 * hi
        return [cvt(G + 4 * hf + 2 * hi + b, OCt[j] + b, OCt[j + 1] + b) for b in range(2)]
    bfi = lambda hf: 'v_bfi_b32 v%d, 1, s%d, v%d' % (G + 4 * hf, sTag, G + 4 * hf)
    st0 = lambda hf: 'buffer_store_dwordx4 v[%d:%d], v%d, %s, %s offen %s' % (G + 4 * hf, G + 4 * hf + 3, aPBst, S(WS), 's%d' % s32k if hf else '0', SC)
    SLOW = tag == '_s'
    st = lambda hf: ''.join('v_bfi_b32 v%d, 1, s%d, v%d\n' % (G + 4 * hf + u, sTag, G + 4 * hf + u) for u in range(1, 4) if SLOW) + st0(hf)
    def tagx(d, r):
        A('v_xor_b32 v%d, s%d, v%d' % (d, sTag, r))
        if SLOW:
            for u in range(1, 4):
                A('v_xor_b32 v%d, s%d, v%d' % (AF + 31, sTag, r + u))
                A('v_or_b32 v%d, v%d, v%d' % (d, d, AF + 31))
    for x in zz[6:]:
        A(x)
    L.wait('o0')
    M('oa')
    if o('oe', 1) == 0:
        O(3, 0)
        L.wait('o1')
        O(3, 1); nw()
        O(2, 0); nw()
        O(2, 1); nw(); A(hs(3)[0])
        O(0, 0); nw(); A(hs(3)[1])
        O(0, 1); nw(); A(hs(2)[0])
        O(1, 0); nw(); A(hs(2)[1])
        O(1, 1); nw(); A(cv(0, 1)[0])
        L.wait('w3')
        O(4, 0); nw(); A(cv(0, 1)[1]); A(hs(0)[0])
        O(4, 1); nw(2); A(hs(0)[1]); A(hs(1)[0])
        L.wait('w5')
        O(5, 0); nw(2); A(hs(1)[1]); A(cv(0, 0)[0])
        O(5, 1); A(cv(0, 0)[1]); A(bfi(0))
        L.wait('w7')
        O(6, 0); A(st(0)); A(hs(4)[0]); A(hs(4)[1])
        M('s1')
        O(6, 1); A(hs(5)[0]); A(hs(5)[1])
        L.wait('w9')
        O(7, 0); A(cv(1, 0)[0])
        O(7, 1)
    else:
        O(3, 0); nw()
        L.wait('o1')
        O(3, 1); nw()
        O(2, 0); nw(2)
        O(2, 1); nw(); A(hs(3)[0])
        O(0, 0); nw(); A(hs(3)[1])
        O(0, 1); A(hs(2)[0]); A(hs(2)[1])
        O(1, 0); A(cv(0, 1)[0]); A(cv(0, 1)[1])
        O(1, 1); nw(); A(hs(0)[0]); A(hs(0)[1])
        L.wait('w5')
        O(4, 0); nw(2)
        O(4, 1); nw(); A(hs(1)[0]); A(hs(1)[1]); A(cv(0, 0)[0]); A(cv(0, 0)[1]); A(bfi(0)); A(st(0))
        M('s1')
        O(5, 0); nw(2)
        O(5, 1); A(hs(4)[0])
        L.wait('w8')
        O(6, 0); A(hs(4)[1])
        O(6, 1); A(hs(5)[0])
        O(7, 0); A(hs(5)[1])
        L.wait('w9')
        O(7, 1)
        A(cv(1, 0)[0])
    M('odone')
    for x in [cv(1, 0)[1], bfi(1)] + hs(6) + ['v_pk_add_f32 v[%d:%d], v[%d:%d], v[%d:%d]' % (OCt[7], OCt[7] + 1, OCt[7], OCt[7] + 1, OCt[7] + 2, OCt[7] + 3)] + cv(1, 1) + [st(1)]:
        A(x)
    M('s2')
    R, D = AF + 16, AF + 24
    R2 = AF + 8
    def pb_loads(R=R):
        A('buffer_load_dwordx4 v[%d:%d], v%d, %s, s%d offen sc1' % (R, R + 3, aL, S(WS), sPBld))
        A('buffer_load_dwordx4 v[%d:%d], v%d, %s, s%d offen offset:1024 sc1' % (R + 4, R + 7, aL, S(WS), sPBld))
    hk = [z64(QA + 2 * i) for i in range(12)]
    for r_ in (sRing, sRst):
        hk += ['s_add_u32 s%d, s%d, s%d' % (r_, r_, s8k), 's_cmp_eq_u32 s%d, s%d' % (r_, sMRend), 's_cselect_b32 s%d, %d, s%d' % (r_, MR, r_)]
    hk += ['s_add_u32 s%d, s%d, 1' % (sS, sS), 's_add_u32 s%d, s%d, s%d' % (sKoff, sKoff, s256k), 's_add_u32 s%d, s%d, s%d' % (sVoff, sVoff, s256k),
           's_add_u32 s%d, s%d, s%d' % (sMH, sMH, s8k), 'v_mov_b32 v%d, -1' % (D + 4)]
    advV = 's_add_u32 s%d, s%d, s%d' % (sVoff, sVoff, s256k)
    if o('de', 5) >= 3:
        hk.remove(advV)
    if o('de', 5) == 4:
        hk = [dk[1], dk[2], dk[4], dk[5], advV] + hk
    pr = pre_reads()
    P1 = o('p1', 12); P2 = o('p2', 12); P3 = o('p3', 12); HB = o('hb', 1)
    P0 = o('p0', 6)
    for x in hk + pr[:max(P0, 0)]:
        A(x)
    la, lb = A.label('L_c_h'), A.label('L_c_h')
    if P0 >= 0:
        A('s_cmp_ge_u32 s%d, 2' % sWAVE)
        A('s_cbranch_scc1 %s' % la)
        pb_loads()
        A('%s:' % la)
    for x in pr[max(P0, 0):P1]:
        A(x)
    if P0 >= 0:
        A('s_cbranch_scc0 %s' % lb)
    A.nop(o('db', 12))
    pb_loads()
    A('%s:' % lb)
    M('poll')
    for x in pr[P1:max(P1, P2)]:
        A(x)
    if HB:
        A.nop(o('ib', 24))
        pb_loads(R2)
    ND = 0
    if o('de', 5) == 3:
        ND = 4
        for x in (dk[1], dk[2], dk[4], dk[5], advV):
            A(x)
    for x in pr[max(P1, P2):P3]:
        A(x)
    A('s_waitcnt vmcnt(%d)' % (2 * HB + 1 + ND))
    A(mm(D, vSel, R, True))
    tagx(D + 5, R)
    A('s_waitcnt vmcnt(%d)' % (2 * HB + ND))
    A(mm(D, vSel, R + 4, False))
    M('pbd')
    tagx(D + 6, R + 4)
    A('L_c_pc%s:' % tag)
    A('v_or_b32 v%d, v%d, v%d' % (D + 5, D + 5, D + 6))
    A('v_and_b32 v%d, 1, v%d' % (D + 5, D + 5))
    A('v_cmp_ne_u32 vcc, 0, v%d' % (D + 5))
    FP = o('fp', 0)
    if FP:
        A('s_cbranch_vccnz L_c_px%s' % tag)
    for rot in (4, 8):
        A('v_add_f32_dpp v%d, v%d, v%d row_ror:%d row_mask:0xf bank_mask:0xf' % (D, D, D, rot))
        A('v_add_f32_dpp v%d, v%d, v%d row_ror:%d row_mask:0xf bank_mask:0xf' % (D + 1, D + 1, D + 1, rot))
        if rot == 4 and not FP:
            A('s_cbranch_vccnz L_c_px%s' % tag)
    A(cvt(vMem, D, D + 1))
    A('v_min_u32 v%d, -2, v%d' % (vMem, vMem))
    A('buffer_store_dword v%d, v%d, %s, s%d offen %s' % (vMem, aMRst, S(WS), sRing, SC))
    M('e')
    if o('de', 5) == 6:
        lab = A.label('L_c_nd')
        A(advV)
        A('s_cmp_ge_u32 s%d, 2' % sWAVE)
        A('s_cbranch_scc1 %s' % lab)
        A('s_lshl_b32 s57, s%d, 24' % sWAVE)
        A('s_add_u32 s57, s57, s%d' % sKoff)
        A('s_sub_u32 s57, s57, s%d' % s256k)
        A('s_lshl_b32 m0, s%d, 13' % sWAVE)
        A('s_add_u32 m0, m0, %d' % KB)
        for hh in range(2):
            if hh:
                A('s_add_u32 m0, m0, s%d' % sX2)
                A('s_add_u32 s57, s57, s%d' % sX2)
            for q in range(4):
                A('buffer_load_dwordx4 v%d, %s, s57 offen offset:%d sc1 lds' % (aL, S(WS), 1024 * q))
        A('%s:' % lab)
    if o('de', 5) == 5:
        for q, x in enumerate((dk[1], dk[2], dk[4], dk[5])):
            if opt['ds'][q] == '9':
                A(x)
        A(advV)
    A('buffer_store_dword v%d, v%d, %s, s%d offen %s' % (D + 4, aMRst, S(WS), sRst, SC))
    A('s_xor_b32 s%d, s%d, 1' % (sTag, sTag))
    A('s_mov_b32 s%d, 0' % sH)
    A('s_cmp_eq_u32 s%d, 63' % sS)
    A('s_cbranch_scc1 L_c_done')
    ensure_kv(A)
    for x in pr[P3:]:
        A(x)
    A.nop(o('da', 12))
    if o('da2', 32):
        A('s_cmp_ge_u32 s%d, 2' % sWAVE)
        A('s_cbranch_scc1 L_c_ld%s' % tag)
        A.nop(o('da2', 32))
    A('s_branch L_c_ld%s' % tag)
    if o('tramp', 1):
        A('L_c_slow%s:' % tag)
        A('s_branch L_c_slow2%s' % tag)
    def cnt(i):
        if opt.get('stamp') == '2':
            A('s_add_u32 s%d, s%d, 62' % (chain3_ACC(i), chain3_ACC(i)))
    A('L_c_px%s:' % tag)
    if FP and HB:
        def look2(Rx, Ry):
            A('s_waitcnt vmcnt(1)')
            A(mm(D, vSel, Rx, True))
            tagx(D + 5, Rx)
            A('s_waitcnt vmcnt(0)')
            A(mm(D, vSel, Rx + 4, False))
            pb_loads(Ry)
            tagx(D + 6, Rx + 4)
            A('s_branch L_c_pc%s' % tag)
        A('s_xor_b32 s%d, s%d, 1' % (sH, sH))
        A('s_bitcmp1_b32 s%d, 0' % sH)
        A('s_cbranch_scc0 L_c_py%s' % tag)
        look2(R2, R)
        A('L_c_py%s:' % tag)
        spin_check(A); cnt(12)
        look2(R, R2)
    else:
        spin_check(A); cnt(12)
        def look(Rx, y):
            A('s_waitcnt vmcnt(%d)' % y)
            A(mm(D, vSel, Rx, True))
            tagx(D + 5, Rx)
            A(mm(D, vSel, Rx + 4, False))
            tagx(D + 6, Rx + 4)
            A('s_branch L_c_pc%s' % tag)
        if HB:
            A('s_xor_b32 s%d, s%d, 1' % (sH, sH))
            A('s_bitcmp1_b32 s%d, 0' % sH)
            A('s_cbranch_scc0 L_c_py%s' % tag)
            pb_loads(R); look(R2, 2)
            A('L_c_py%s:' % tag)
            pb_loads(R2); look(R, 2)
        else:
            pb_loads(R2); look(R2, 0)
    A('L_c_x0%s:' % tag)
    spin_check(A); cnt(13)
    A('s_waitcnt vmcnt(0) lgkmcnt(0)')
    for i in range(4):
        A(z64(QA + 2 * i))
    A('s_branch L_c_ld%s' % tag)
    if o('st2', 0):
        A('L_c_x1%s:' % tag)
        A('v_max_u32 v%d, v%d, v%d' % (AF + 21, AF + 20, AF + 3))
        A('v_cmp_eq_u32 vcc, -1, v%d' % (AF + 21))
        for i in range(8):
            A(z64(QA + 2 * i))
        A('s_cbranch_vccnz L_c_x0%s' % tag)
        spin_check(A); cnt(14)
        def ldh(r): A('buffer_load_dwordx4 v[%d:%d], v%d, %s, s%d offen offset:1024 sc1' % (r, r + 3, aQ, S(WS), sRing))
        def look1(r, y):
            A('s_waitcnt vmcnt(%d) lgkmcnt(0)' % y)
            A('v_mov_b64 v[%d:%d], v[%d:%d]' % (AF + 4, AF + 5, r, r + 1))
            A('v_mov_b64 v[%d:%d], v[%d:%d]' % (AF + 6, AF + 7, r + 2, r + 3))
            A('s_branch L_c_r1%s' % tag)
        if HA:
            A('s_xor_b32 s%d, s%d, 2' % (sH, sH))
            A('s_bitcmp1_b32 s%d, 1' % sH)
            A('s_cbranch_scc0 L_c_y1%s' % tag)
            ldh(AF + 24); look1(AF + 28, 1)
            A('L_c_y1%s:' % tag)
            ldh(AF + 28); look1(AF + 24, 1)
        else:
            ldh(AF + 28); look1(AF + 28, 0)
    else:
        A('L_c_x1%s:' % tag)
        spin_check(A); cnt(14)
        def ldh(r): A('buffer_load_dwordx4 v[%d:%d], v%d, %s, s%d offen offset:1024 sc1' % (r, r + 3, aQ, S(WS), sRing))
        def look1(r, y):
            A('s_waitcnt vmcnt(%d) lgkmcnt(0)' % y)
            A('v_max3_u32 v%d, v%d, v%d, v%d' % (AF + 20, r, r + 1, r + 2))
            A('v_max_u32 v%d, v%d, v%d' % (AF + 20, AF + 20, r + 3))
            A('v_cmp_eq_u32 vcc, -1, v%d' % (AF + 20))
            A('v_mov_b64 v[%d:%d], v[%d:%d]' % (AF + 4, AF + 5, r, r + 1))
            A('v_mov_b64 v[%d:%d], v[%d:%d]' % (AF + 6, AF + 7, r + 2, r + 3))
            A(afw(1))
            A('s_cbranch_vccnz L_c_x1%s' % tag)
            A('s_branch L_c_r1%s' % tag)
        if HA:
            A('s_xor_b32 s%d, s%d, 2' % (sH, sH))
            A('s_bitcmp1_b32 s%d, 1' % sH)
            A('s_cbranch_scc0 L_c_y1%s' % tag)
            ldh(AF + 24); look1(AF + 28, 1)
            A('L_c_y1%s:' % tag)
            ldh(AF + 28); look1(AF + 24, 1)
        else:
            ldh(AF + 28); look1(AF + 28, 0)
    A(('L_c_slow2%s:' if o('tramp', 1) else 'L_c_slow%s:') % tag)
    T = OT
    SY = [SX, LS]
    A('s_sub_u32 s57, s%d, s%d' % (sKoff, s256k))
    A('s_waitcnt lgkmcnt(0)')
    qt(0); qt(1)
    A('s_waitcnt lgkmcnt(0)')
    for tile in range(2):
        for kp in range(2):
            for ks in range(2 * kp, 2 * kp + 2):
                A('buffer_load_dwordx4 v[%d:%d], v%d, %s, s57 offen offset:%d sc1' % (T + 4 * (ks % 2), T + 4 * (ks % 2) + 3, aL, S(WS), ks * 1024))
            A('s_waitcnt vmcnt(0)')
            for ks in range(2 * kp, 2 * kp + 2):
                A(mm(SY[tile], T + 4 * (ks % 2), QF + 4 * ks, ks == 0))
            A('s_nop 7')
        A('s_add_u32 s57, s57, 4096')
    A(z64(SM)); A(z64(SM + 2))
    A(sm(SM, KF, QF, 'v')); A(sm(SM, KF + 4, QF + 8, 'v'))
    for x in hsum(SM):
        A(x)
    al = [SM, SM + 1] + [SY[0] + i for i in range(4)] + [SY[1] + i for i in range(4)]
    A('v_max_f32 v%d, v%d, v%d' % (TR, al[0], al[1]))
    for i in range(2, 10, 2):
        A('v_max3_f32 v%d, v%d, v%d, v%d' % (TR, TR, al[i], al[i + 1]))
    for sw in ('16', '32'):
        A('v_mov_b32 v%d, v%d' % (TR + 1, TR))
        A('v_permlane%s_swap_b32 v%d, v%d' % (sw, TR, TR + 1))
        A('v_max_f32 v%d, v%d, v%d' % (TR, TR, TR + 1))
    for r_ in al:
        A('v_sub_f32 v%d, v%d, v%d' % (r_, r_, TR))
        A(ex(r_))
    for i in range(4):
        A(cvt(PX + i, al[2 + 2 * i], al[3 + 2 * i]))
    A(cvt(PM, SM, SM + 1))
    A(mm(LS, ONE, PX, True)); A(mm(OT, VXF, PX, True)); A(mm(OT + 4, VXF + 4, PX, True))
    A(m16(LS, ONE)); A(m16(OT, va)); A(m16(OT + 4, vb))
    A(w0[0][0]); A(w0[1][0])
    A('v_rcp_f32 v%d, v%d' % (TR, LS + 2))
    A(zero(TR + 1))
    A('s_nop 7')
    A('s_branch L_c_norm%s' % tag)

def chain3_ACC(i):
    import chain
    return chain.ACCS[i]

def chain(A, opt):
    n0 = len(A.lines)
    setup(A, opt, load_weights)
    A('s_cmp_lg_u32 s57, 0')
    A('s_cbranch_scc1 L_c_start_s')
    loop(A, opt, opt.get('fsc', ''), '_f')
    loop(A, opt, 'sc1', '_s')
    A('L_c_done:')
    A('buffer_store_dword v%d, v%d, %s, s%d offen sc1' % (vMem, aMRst, S(WS), sMH))
    if opt.get('clk'):
        A('s_memtime s[10:11]')
        A('s_waitcnt lgkmcnt(0)')
        A('s_sub_u32 s36, s10, s8')
    if 'rt' in opt:
        A('s_lshl_b32 s60, s%d, 2' % sIDX)
        A('s_add_u32 s60, s60, s%d' % sWAVE)
        A('s_lshl_b32 s60, s60, 9')
        A('s_add_u32 s60, s60, %d' % (TS + 0x40000))
        A('v_lshrrev_b32 v1, 2, v%d' % aL)
        A('buffer_store_dword v%d, v1, %s, s60 offen' % (vInc, S(WS)))
        A('buffer_store_dword v%d, v1, %s, s60 offen offset:256' % (aPF, S(WS)))
    rt_stamp(A, opt, 3)
    ph_out(A, opt, 15)
    A('s_endpgm')
    if opt.get('probe', '').startswith('i'):
        N = int(opt['probe'][1:])
        k = A.lines.index('  s_memtime s[8:9]') + 1
        n = 0; lst = []
        while not A.lines[k].startswith('L_c_px_f'):
            l = A.lines[k]; k += 1
            if l.endswith(':'):
                continue
            n += 1; lst.append('%d %s' % (n, l.strip()))
            if n == N:
                A.lines.insert(k, '  s_memtime s[10:11]'); k += 1
        open('probe_listing.txt', 'w').write('\n'.join(lst) + '\n')
    if opt.get('lsc'):
        k0 = A.lines.index('L_c_ld_f:'); k1 = A.lines.index('L_c_start_s:')
        for i in range(k0, k1):
            l = A.lines[i]
            if 'buffer_load_dwordx4' in l and 'lds' not in l and 's57' not in l:
                A.lines[i] = l.replace('sc1', opt['lsc'].replace('_', ' '))
    ex = opt.get('exp', '')
    for i in range(n0, len(A.lines)):
        l = A.lines[i]
        if 'm' in ex and ('buffer_store_dword v%d, v%d, %s, s%d offen sc1' % (vMem, aMRst, S(WS), sMH)) in l:
            A.lines[i] = '  s_nop 0'
        if 'p' in ex and ('v_add_u32 v%d, v%d, v%d' % (aPF, vInc, aPF)) in l:
            A.lines[i] = '  s_nop 0'
        if 'p' in ex and ('s%d' % s256k) in l and 's_add_u32' in l:
            A.lines[i] = '  s_nop 0'
        if 'd' in ex and 'sc1 lds' in l:
            A.lines[i] = '  s_nop 0'
        if 'f' in ex and flag_load() in l and 'smfmac' in A.lines[i - 1]:
            A.lines[i] = '  v_mov_b32 v%d, 99' % vFlag
        if 'M' in ex and ('v_smfmac' in l or 'v_mfma' in l):
            A.lines[i] = '  s_nop 3'; continue
        if 'H' in ex and 'v_smfmac' in l and (i & 1):
            A.lines[i] = '  s_nop 3'; continue
        if 'b' in ex and 's_cbranch_vccnz L_c_slow' in l:
            A.lines[i] = '  s_nop 0'; continue
        if 'c' in ex and ('s_cbranch_vccnz L_c_x' in l or 's_cbranch_vccnz L_c_px' in l):
            A.lines[i] = '  s_nop 0'; continue
        if opt.get('free') and ('s_cbranch_vccnz L_c_x' in l or 's_cbranch_vccnz L_c_px' in l or 's_cbranch_vccnz L_c_slow' in l):
            A.lines[i] = l.replace('s_cbranch_vccnz', 's_cbranch_cdbgsys' if opt['free'] == '1' else 's_cbranch_execz')
```

```python
import sys
from common import *
import aworker

def clear_flags(A):
    lab = A.label('L_noclr')
    A('s_cmp_lg_u32 s59, %d' % (5 * 32))
    A('s_cbranch_scc0 L_doclr')
    A('s_cmp_lg_u32 s59, %d' % (5 * 32 + 0x10000))
    A('s_cbranch_scc1 %s' % lab)
    A('L_doclr:')
    A('s_cmp_lg_u32 s%d, 3' % sWAVE)
    A('s_cbranch_scc1 %s' % lab)
    A('v_lshlrev_b32 v1, 7, v0')
    A('v_mov_b32 v2, 0')
    for i in range(NFLAGS // 64):
        A('s_mov_b32 s57, %d' % (FLG + i * 8192))
        A('buffer_store_dword v2, v1, %s, s57 offen sc1' % S(WS))
    A('s_waitcnt vmcnt(0)')
    A('v_mov_b32 v1, %d' % D_CLR)
    A('v_mov_b32 v2, 1')
    A('s_mov_b64 exec, 1')
    A('buffer_store_dword v2, v1, %s, 0 offen sc1' % S(DBG))
    A('s_mov_b64 exec, -1')
    A('%s:' % lab)

def build(opt):
    A = Asm()
    if opt.get('mark'):
        A('s_memrealtime s[94:95]')
    prologue(A, opt.get('fake'), opt.get('warm', 'qkvo').replace('-', ''), int(opt.get('wmode', 3)))
    rt_stamp(A, opt, 0)
    if opt.get('mark'):
        A('v_mov_b32 v2, s94')
        A('s_mov_b64 exec, 1')
        A('buffer_store_dword v2, v1, %s, 0 offen offset:252' % S(WS))
        A('s_mov_b64 exec, -1')
    clear_flags(A)
    warm_b(A, opt.get('warm', 'qkvo').replace('-', ''), int(opt.get('wmode', 3)))
    A('s_cmp_eq_u32 s%d, 0' % sGRP)
    A('s_cbranch_scc1 L_chain')
    A('s_cmp_ge_u32 s%d, 5' % sGRP)
    A('s_cbranch_scc1 L_bworker')
    aworker.p_phase(A, opt)
    if 'o' in opt['roles']:
        aworker.o_phase(A, opt)
    A('s_endpgm')
    if 'c' in opt['roles']:
        import chain10
        chain10.chain(A, opt)
    else:
        A('L_chain:')
        A('s_endpgm')
    if 'b' in opt['roles']:
        import bworker
        bworker.bworker(A, opt)
    else:
        A('L_bworker:')
        A('s_endpgm')
    epilogue(A)
    osc = opt.get('osc', '-').replace('-', '').replace('_', ' ')
    A.lines = [l + ' ' + osc if ('buffer_store' in l and S(OUT) in l) else l for l in A.lines]
    lines, n = hazard.fix(A.lines)
    if opt.get('a8'):
        import align8
        lines, n_, miss = align8.run(lines, 'L_c_ld_f:', 'L_c_px_f:', opt['a8'] == '2')
        print('align8', n_, miss)
    body = '\n'.join(lines) + '\n'
    main_k = dict(name=NAME + '_kernel', body=body, grid=(256, 1, 1), block=(256, 1, 1), lds=163840, vgpr=512, accum=256)
    if opt.get('mark'):
        def mk(name, off):
            B = Asm()
            B('s_memrealtime s[10:11]')
            B('s_load_dwordx2 s[4:5], s[0:1], 96')
            B('s_waitcnt lgkmcnt(0)')
            srd(B, 12, 4, 1 << 28)
            B('s_memrealtime s[8:9]')
            B('s_waitcnt lgkmcnt(0)')
            B('v_mov_b32 v1, %d' % off)
            B('v_mov_b32 v2, s10'); B('v_mov_b32 v3, s8')
            B('buffer_store_dwordx2 v[2:3], v1, s[12:15], 0 offen')
            B('s_endpgm')
            return dict(name=name, body=B.text(), grid=(1, 1, 1), block=(64, 1, 1), lds=0, vgpr=8, accum=8)
        return kernel_file([mk('m0_kernel', TS + 0x50000), main_k, mk('m1_kernel', TS + 0x50008)], single=False)
    return kernel_file([main_k])

if __name__ == '__main__':
    out = sys.argv[1]
    opt = dict(roles=sys.argv[2])
    for kv in sys.argv[3:]:
        k, v_ = kv.split('=')
        opt[k] = v_
    open(out, 'w').write(build(opt))
```
